```python
import torch

def _softmax(x, axis=-1):
    return torch.softmax(x, dim=axis)
def _gelu(x):
    return torch.nn.functional.gelu(x, approximate="tanh")
def _silu(x):
    return torch.nn.functional.silu(x)
def _sigmoid(x):
    return torch.sigmoid(x)
def _layernorm(x, axis=-1, eps=1e-5):
    m = x.mean(dim=axis, keepdim=True)
    v = x.var(dim=axis, keepdim=True, unbiased=False)
    return (x - m) / torch.sqrt(v + eps)
def _scatter_add(tgt, idx, src, axis=0):
    return tgt.clone().index_add_(axis, idx, src)
def _segment_sum(src, seg, n):
    out = torch.zeros((n,) + src.shape[1:], dtype=src.dtype)
    return out.index_add_(0, seg, src)
def _pad(x, pw):
    flat = tuple(v for pair in reversed(pw) for v in pair)
    return torch.nn.functional.pad(x, flat)

kernel_name = 'gather_scatter__mpnn_edge_mlp__graph'

def setup_inputs():

    _w = (lambda a: (lambda t: t.to(torch.bfloat16) if t.is_floating_point() else t)(torch.as_tensor(a)))
    N, deg, D, De = 12500, 64, 64, max(0, 1)
    E = N * deg
    return {
        "x": _w((lambda *s: torch.randn(*s, dtype=torch.bfloat16) * 0.05)(N, D)),
        "e_attr": _w((lambda *s: torch.randn(*s, dtype=torch.bfloat16) * 0.4)(E, De)),
        "src": _w((lambda lo, hi, *s: torch.randint(lo, hi, s))(0, N, E).to(torch.int64)),
        "dst": _w((lambda lo, hi, *s: torch.randint(lo, hi, s))(0, N, E).to(torch.int64)),
        "w_msg": _w((lambda *s: torch.randn(*s, dtype=torch.bfloat16) * 0.4)(2 * D + De, D)),
        "w_upd": _w((lambda *s: torch.randn(*s, dtype=torch.bfloat16) * 0.05)(2 * D, D)),
    }

def reference(x, e_attr, src, dst, w_msg, w_upd):
    N, D = x.shape
    m_in = torch.concatenate([x[src], x[dst], e_attr], axis=-1)
    msg = _silu(m_in @ w_msg)
    agg = _segment_sum(msg, dst, N)
    return _silu(torch.concatenate([x, agg], axis=-1) @ w_upd)
```

```python
import sys, struct

NODES = 12500
EDGES = 800000
NB = 49
G = 250
CH = 3200
K1_BLOCK = 400
K1_PWG = 131
WS_P = 0
WS_TAB = 0x200000
WS_REC = 0x300000
REC_STRIDE = 20480

def f32(x):
    return '0x%08x' % struct.unpack('<I', struct.pack('<f', x))[0]
NEG_LOG2E = f32(-1.4426950408889634)
NEG_LN2 = f32(-0.6931471805599453)

out = []
def e(s=''):
    for line in s.split('\n'):
        line = line.strip()
        if not line:
            continue
        if line.endswith(':') or line.startswith('.') or line.startswith(';'):
            out.append(line)
        else:
            out.append('    ' + line)

def vr(a, n=1):
    return f'v{a}' if n == 1 else f'v[{a}:{a+n-1}]'
def sr(a, n=1):
    return f's{a}' if n == 1 else f's[{a}:{a+n-1}]'

def scan(v):
    for d in ('row_shr:1', 'row_shr:2', 'row_shr:4', 'row_shr:8'):
        e('s_nop 1')
        e(f'v_add_u32_dpp v{v}, v{v}, v{v} {d} row_mask:0xf bank_mask:0xf bound_ctrl:0')
    e('s_nop 1')
    e(f'v_add_u32_dpp v{v}, v{v}, v{v} row_bcast:15 row_mask:0xa bank_mask:0xf')
    e('s_nop 1')
    e(f'v_add_u32_dpp v{v}, v{v}, v{v} row_bcast:31 row_mask:0xc bank_mask:0xf')

def kd(name, vgpr, sgpr):
    e(f'''.amdhsa_kernel {name}
.amdhsa_next_free_vgpr {vgpr}
.amdhsa_next_free_sgpr {sgpr}
.amdhsa_accum_offset {(vgpr+3)//4*4}
.amdhsa_group_segment_fixed_size 0
.amdhsa_kernarg_size 72
.amdhsa_user_sgpr_count 2
.amdhsa_user_sgpr_kernarg_segment_ptr 1
.amdhsa_system_sgpr_workgroup_id_x 1
.amdhsa_float_denorm_mode_32 3
.end_amdhsa_kernel''')

K1_LDS = 25600
K1_IMG = 1024
K1_GOFF = 21504

def k1():
    e('''.globl part_kernel
.p2align 8
.type part_kernel,@function
part_kernel:''')
    e(f'''
    s_cmp_ge_u32 s2, {G}
    s_cbranch_scc1 L_k1_p
    s_load_dwordx2 s[8:9], s[0:1], 24
    s_load_dwordx2 s[12:13], s[0:1], 16
    s_load_dwordx2 s[16:17], s[0:1], 8
    s_load_dwordx2 s[20:21], s[0:1], 64
    s_mov_b32 s10, {EDGES*4}
    s_mov_b32 s11, 0x20000
    s_mov_b32 s14, {EDGES*4}
    s_mov_b32 s15, 0x20000
    s_mov_b32 s18, {EDGES*2}
    s_mov_b32 s19, 0x20000
    s_mul_i32 s3, s2, {CH*4}
    s_add_u32 s4, s3, {CH*2}
    s_mul_i32 s5, s2, {CH*2}
    v_lshlrev_b32 v1, 4, v0
    v_lshlrev_b32 v2, 3, v0
    v_mov_b32 v24, 0
    v_mov_b32 v25, 0
    v_mov_b32 v26, 0
    v_mov_b32 v27, 0
    s_waitcnt lgkmcnt(0)
    buffer_load_dwordx4 v[4:7], v1, s[8:11], s3 offen
    buffer_load_dwordx4 v[8:11], v1, s[8:11], s4 offen
    buffer_load_dwordx4 v[12:15], v1, s[12:15], s3 offen
    buffer_load_dwordx4 v[16:19], v1, s[12:15], s4 offen
    buffer_load_dwordx2 v[20:21], v2, s[16:19], s5 offen
    buffer_load_dwordx2 v[22:23], v2, s[16:19], s5 offen offset:{CH}
    ds_write_b128 v1, v[24:27]
    ds_write_b128 v1, v[24:27] offset:6400
    ds_write_b128 v1, v[24:27] offset:12800
    ds_write_b128 v1, v[24:27] offset:19200
    s_lshl_b32 s6, s2, 10
    s_add_u32 s6, s6, {WS_TAB}
    s_add_u32 s24, s20, s6
    s_addc_u32 s25, s21, 0
    s_mov_b32 s26, 1024
    s_mov_b32 s27, 0x20000
    s_mul_i32 s6, s2, {REC_STRIDE}
    s_add_u32 s6, s6, {WS_REC}
    s_add_u32 s20, s20, s6
    s_addc_u32 s21, s21, 0
    s_mov_b32 s23, 0x20000
    s_mov_b32 s28, {-NB*4 & 0xffffffff}
    s_mov_b32 s29, 0xffff0000
    v_mov_b32 v3, 1
    v_readfirstlane_b32 s7, v0
    s_waitcnt lgkmcnt(0)
    s_barrier
    ''')
    for half in range(2):
        e(f's_waitcnt vmcnt({5-half})')
        for i in range(4*half, 4*half+4):
            e(f'v_mul_u32_u24 v{28+i}, 42800, v{4+i}')
        for i in range(4*half, 4*half+4):
            e(f'v_lshrrev_b32 v{28+i}, 21, v{28+i}')
        for i in range(4*half, 4*half+4):
            e(f'v_lshl_add_u32 v{4+i}, v{4+i}, 2, 4')
        for i in range(4*half, 4*half+4):
            e(f'v_mad_i32_i24 v{4+i}, v{28+i}, s28, v{4+i}')
            e(f'v_lshlrev_b32 v{28+i}, 2, v{28+i}')
            e(f'ds_add_rtn_u32 v{36+i}, v{28+i}, v3')
    e('s_waitcnt vmcnt(0)')
    for i in range(8):
        a = 20 + i//2
        if i % 2 == 0:
            e(f'v_lshl_or_b32 v{12+i}, v{a}, 16, v{12+i}')
        else:
            e(f'v_and_or_b32 v{12+i}, v{a}, s29, v{12+i}')
    e('s_waitcnt lgkmcnt(0)')
    e('s_barrier')
    e(f'''
    s_mov_b64 s[30:31], exec
    s_mov_b64 exec, -1
    v_mbcnt_lo_u32_b32 v60, -1, 0
    v_mbcnt_hi_u32_b32 v60, -1, v60
    v_lshlrev_b32 v60, 4, v60
    ds_read_b128 v[52:55], v60
    ''')
    for i in range(8):
        e(f'v_mul_u32_u24 v{44+i}, 43691, v{36+i}')
    for i in range(8):
        e(f'v_lshrrev_b32 v{44+i}, 17, v{44+i}')
    for i in range(8):
        e(f'v_add_lshl_u32 v{20+i}, v{36+i}, v{44+i}, 2')
        e(f'v_mad_u32_u24 v{44+i}, v{44+i}, 13, v{36+i}')
    e('s_waitcnt lgkmcnt(0)')
    for i in range(4):
        e(f'v_add_u32 v{52+i}, 2, v{52+i}')
    for i in range(4):
        e(f'v_mul_u32_u24 v{52+i}, 43691, v{52+i}')
    for i in range(4):
        e(f'v_lshrrev_b32 v{52+i}, 17, v{52+i}')
    e('''
    v_add_u32 v53, v52, v53
    v_add_u32 v54, v53, v54
    v_add_u32 v55, v54, v55
    v_mov_b32 v61, v55
    ''')
    scan(61)
    e(f'''
    v_sub_u32 v56, v61, v55
    v_add_u32 v57, v56, v52
    v_add_u32 v58, v56, v53
    v_add_u32 v59, v56, v54
    v_readlane_b32 s22, v61, 63
    v_lshlrev_b32 v52, 4, v56
    v_lshlrev_b32 v53, 4, v57
    v_lshlrev_b32 v54, 4, v58
    v_lshlrev_b32 v55, 4, v59
    ds_write_b128 v60, v[52:55] offset:{K1_GOFF}
    s_lshl_b32 s22, s22, 4
    s_cmp_lg_u32 s7, 0
    s_cbranch_scc1 L_k1_notab
    v_lshl_or_b32 v56, v57, 16, v56
    v_lshl_or_b32 v57, v58, 16, v57
    v_lshl_or_b32 v58, v59, 16, v58
    v_lshl_or_b32 v59, v61, 16, v59
    buffer_store_dwordx4 v[56:59], v60, s[24:27], 0 offen
L_k1_notab:
    s_mov_b64 exec, s[30:31]
    ''')
    for i in range(8):
        e(f'ds_read_b32 v{36+i}, v{28+i} offset:{K1_GOFF}')
    for i in range(8):
        e(f's_waitcnt lgkmcnt({min(15, 7-i+2*i)})')
        e(f'v_add_u32 v{20+i}, v{20+i}, v{36+i}')
        e(f'v_add_u32 v{44+i}, v{44+i}, v{36+i}')
        e(f'ds_write_b32 v{20+i}, v{12+i} offset:{K1_IMG}')
        e(f'ds_write_b8 v{44+i}, v{4+i} offset:{K1_IMG+12}')
    e(f'''
    s_waitcnt lgkmcnt(0)
    s_barrier
    ds_read_b128 v[4:7], v1 offset:{K1_IMG}
    ds_read_b128 v[8:11], v1 offset:{K1_IMG+6400}
    ds_read_b128 v[12:15], v1 offset:{K1_IMG+12800}
    s_mov_b32 s3, 6400
    s_mov_b32 s4, 12800
    s_mov_b32 s5, 19200
    s_waitcnt lgkmcnt(2)
    buffer_store_dwordx4 v[4:7], v1, s[20:23], 0 offen
    s_waitcnt lgkmcnt(1)
    buffer_store_dwordx4 v[8:11], v1, s[20:23], s3 offen
    s_waitcnt lgkmcnt(0)
    buffer_store_dwordx4 v[12:15], v1, s[20:23], s4 offen
    s_cmp_le_u32 s22, 19200
    s_cbranch_scc1 L_k1_end
    s_cmp_ge_u32 s7, 128
    s_cbranch_scc1 L_k1_end
    ds_read_b128 v[16:19], v1 offset:{K1_IMG+19200}
    s_waitcnt lgkmcnt(0)
    buffer_store_dwordx4 v[16:19], v1, s[20:23], s5 offen
L_k1_end:
    s_endpgm
    ''')
    e(f'''
L_k1_p:
    s_cmp_ge_u32 s2, {G+K1_PWG}
    s_cbranch_scc1 L_k1_end
    v_readfirstlane_b32 s7, v0
    s_load_dwordx2 s[8:9], s[0:1], 0
    s_load_dwordx2 s[12:13], s[0:1], 32
    s_load_dwordx2 s[16:17], s[0:1], 64
    s_lshr_b32 s7, s7, 6
    s_cmp_ge_u32 s7, 6
    s_cbranch_scc1 L_k1_end
    s_mov_b32 s10, {NODES*128}
    s_mov_b32 s11, 0x20000
    s_mov_b32 s14, 8192
    s_mov_b32 s15, 0x20000
    s_mov_b32 s18, {NODES*128}
    s_mov_b32 s19, 0x20000
    s_sub_u32 s3, s2, {G}
    s_mul_i32 s3, s3, 6
    s_add_u32 s3, s3, s7
    s_lshl_b32 s3, s3, 11
    s_mov_b32 s4, 6144
    v_lshlrev_b32 v1, 4, v0        ; 16*t
    v_and_b32 v2, 15, v0           ; l%16
    v_bfe_u32 v3, v0, 4, 2         ; kq
    v_lshlrev_b32 v4, 7, v2
    v_lshl_add_u32 v5, v3, 4, v4
    s_waitcnt lgkmcnt(0)
    buffer_load_dwordx4 v[8:11], v1, s[12:15], 0 offen
    buffer_load_dwordx4 v[12:15], v1, s[12:15], s4 offen
    buffer_load_dwordx4 v[16:19], v5, s[8:11], s3 offen
    buffer_load_dwordx4 v[20:23], v5, s[8:11], s3 offen offset:64
    v_bfe_u32 v6, v0, 2, 2
    v_lshl_add_u32 v6, v3, 3, v6
    v_lshlrev_b32 v6, 7, v6
    v_and_b32 v7, 3, v0
    v_lshl_add_u32 v6, v7, 5, v6
    v_lshrrev_b32 v7, 1, v3
    v_lshl_add_u32 v4, v7, 6, v4
    v_and_b32 v7, 1, v3
    v_lshl_add_u32 v4, v7, 3, v4
    s_mov_b32 s20, {NEG_LOG2E}
    s_waitcnt vmcnt(3)
    ds_write_b128 v1, v[8:11]
    s_waitcnt vmcnt(2)
    ds_write_b128 v1, v[12:15] offset:6144
    s_waitcnt lgkmcnt(0)
    s_barrier
    ''')
    for mt in range(4):
        for s in range(2):
            for h in range(2):
                r = 24 + 8*mt + 4*s + 2*h
                e(f'ds_read_b64_tr_b16 v[{r}:{r+1}], v6 offset:{s*4096 + h*512 + 8*mt}')
    e('s_waitcnt vmcnt(0)')
    for mt in range(4):
        e(f's_waitcnt lgkmcnt({12-4*mt})')
        d = 56 + 4*mt
        e(f'v_mfma_f32_16x16x32_bf16 v[{d}:{d+3}], v[{24+8*mt}:{27+8*mt}], v[16:19], 0')
        e(f'v_mfma_f32_16x16x32_bf16 v[{d}:{d+3}], v[{28+8*mt}:{31+8*mt}], v[20:23], v[{d}:{d+3}]')
    e('s_nop 7')
    for i in range(16):
        e(f'v_mul_f32 v{56+i}, s20, v{56+i}')
    for rr in range(4):
        e(f'v_cvt_pk_bf16_f32 v{8+2*rr}, v{56+rr}, v{60+rr}')
        e(f'v_cvt_pk_bf16_f32 v{9+2*rr}, v{64+rr}, v{68+rr}')
        e(f'buffer_store_dwordx2 v[{8+2*rr}:{9+2*rr}], v4, s[16:19], s3 offen offset:{16*rr}')
    e('s_endpgm')

CNT, BASE, ST, FLAG, NTAB, RECS = 0, 256, 512, 768, 1024, 6144
QS = 45568
PART = 61952
XS = 94720
W2S = XS + 9216
WUS = XS + 18432
AGG = 131584
K2_LDS = 144128
PADREC = 0x3fff
T0, T1, C, E, G0, G1, AX, BS0, BS1, BX, MK, N, D, TMP, ACC, DS = 0, 16, 32, 48, 64, 72, 80, 84, 88, 92, 96, 100, 104, 108, 112, 116
RA, RB, VO, CH16, X, Z, LQ, LA, AR, AN = 118, 119, 120, 121, 122, 123, 124, 125, 126, 127
S_B, S_WV, S_X0 = 3, 4, 5
SRD_P, SRD_TAB, SRD_REC, SRD_X, SRD_WM, SRD_WU, SRD_OUT = 8, 12, 16, 20, 24, 28, 32
S_MASK = 36
S_RND, S_SAFE, S_TOT, S_NT, S_QN, S_RN, S_128, S_FIRST, S_MORE = 54, 55, 56, 57, 58, 59, 60, 61, 62
S_TMP = 64
S_L2E = 72

def mf(T, a, b, c):
    e(f'v_mfma_f32_32x32x16_bf16 v[{T}:{T+15}], v[{a}:{a+3}], v[{b}:{b+3}], v[{c}:{c+15}]')
def build_ax(which):
    sel = 'op_sel_hi:[0,1]' if which == RA else 'op_sel:[1,0] op_sel_hi:[1,1]'
    e(f'v_pk_mul_f32 v[{AX}:{AX+1}], v[{RA}:{RB}], v[{MK}:{MK+1}] {sel}')
    e(f'v_pk_mul_f32 v[{AX+2}:{AX+3}], v[{RA}:{RB}], v[{MK+2}:{MK+3}] {sel}')
def gather(g, rec):
    e(f'v_mad_u32_u16 v{VO}, v{rec}, s{S_128}, v{CH16}')
    e(f'buffer_load_dwordx4 v[{g}:{g+3}], v{VO}, s[{SRD_P}:{SRD_P+3}], 0 offen')
    e(f'buffer_load_dwordx4 v[{g+4}:{g+7}], v{VO}, s[{SRD_P}:{SRD_P+3}], 0 offen offset:64')
def load_c():
    e(f'v_add_u32 v{VO}, v{X}, v{LQ}')
    for i in range(4):
        e(f'ds_read_b128 v[{C+4*i}:{C+4*i+3}], v{VO}')
def exps(T, a, b):
    for i in range(a, b):
        e(f'v_exp_f32 v{E+i}, v{T+i}')
def p2(r):
    return f'v[{r}:{r+1}]'
def pk_phase(T, first, safe):
    if safe:
        for i in range(8):
            e(f'v_pk_add_f32 {p2(E+2*i)}, {p2(E+2*i)}, 1.0 op_sel_hi:[1,0]')
        for i in range(16):
            e(f'v_rcp_f32 v{E+i}, v{E+i}')
        for gd in range(4):
            for s in range(2):
                if first and gd == 0:
                    e(f'v_pk_mul_f32 {p2(N+2*s)}, {p2(T+2*s)}, {p2(E+2*s)}')
                else:
                    e(f'v_pk_fma_f32 {p2(N+2*s)}, {p2(T+4*gd+2*s)}, {p2(E+4*gd+2*s)}, {p2(N+2*s)}')
        return
    for gd in range(4):
        if first and gd == 0:
            for s in range(2):
                e(f'v_pk_add_f32 {p2(D+2*s)}, {p2(E+2*s)}, 1.0 op_sel_hi:[1,0]')
            continue
        for s in range(2):
            ns = (T+2*s) if (first and gd == 1) else (N+2*s)
            e(f'v_pk_fma_f32 {p2(TMP+2*s)}, {p2(ns)}, {p2(E+4*gd+2*s)}, {p2(ns)}')
        for s in range(2):
            e(f'v_pk_fma_f32 {p2(N+2*s)}, {p2(T+4*gd+2*s)}, {p2(D+2*s)}, {p2(TMP+2*s)}')
        for s in range(2):
            e(f'v_pk_fma_f32 {p2(D+2*s)}, {p2(D+2*s)}, {p2(E+4*gd+2*s)}, {p2(D+2*s)}')

def main_loop(safe):
    L = 'L_safe' if safe else 'L_fast'
    e(f'{L}_loop:')
    e('s_waitcnt vmcnt(2)')
    mf(T1, G1, BS0, C)
    exps(T0, 0, 4)
    mf(T1, G1+4, BS1, T1)
    exps(T0, 4, 8)
    mf(T1, AX, BX, T1)
    e('s_waitcnt lgkmcnt(0)')
    load_c()
    gather(G1, RB)
    exps(T0, 8, 16)
    pk_phase(T0, True, safe)
    build_ax(RA)
    e(f'ds_read_b32 v{RA}, v{AR}')
    e('s_waitcnt vmcnt(2) lgkmcnt(1)')
    mf(T0, G0, BS0, C)
    exps(T1, 0, 4)
    mf(T0, G0+4, BS1, T0)
    exps(T1, 4, 8)
    mf(T0, AX, BX, T0)
    e('s_waitcnt lgkmcnt(0)')
    gather(G0, RA)
    e(f'ds_read_b128 v[{ACC}:{ACC+3}], v{Z}')
    exps(T1, 8, 16)
    pk_phase(T1, False, safe)
    if not safe:
        for i in range(4):
            e(f'v_rcp_f32 v{TMP+i}, v{D+i}')
        e(f'v_pk_fma_f32 {p2(DS)}, {p2(D)}, {p2(D+2)}, {p2(DS)}')
    build_ax(RB)
    e(f'ds_read_b32 v{RB}, v{AR} offset:16')
    e('s_waitcnt lgkmcnt(1)')
    for s in range(2):
        if safe:
            e(f'v_pk_add_f32 {p2(ACC+2*s)}, {p2(N+2*s)}, {p2(ACC+2*s)}')
        else:
            e(f'v_pk_fma_f32 {p2(ACC+2*s)}, {p2(N+2*s)}, {p2(TMP+2*s)}, {p2(ACC+2*s)}')
    e(f'''
    s_sub_u32 s{S_NT}, s{S_NT}, 1
    ds_write_b128 v{Z}, v[{ACC}:{ACC+3}]
    v_add_u32 v{Z}, v{X}, v{LA}
    ds_read_b32 v{X}, v{AN}
    v_add_u32 v{AR}, 32, v{AR}
    v_add_u32 v{AN}, 4, v{AN}
    s_cmp_lg_u32 s{S_NT}, 0
    s_cbranch_scc1 {L}_loop
    ''')

def k2():
    e('''.globl gather_scatter__mpnn_edge_mlp__graph_kernel
.p2align 8
.type gather_scatter__mpnn_edge_mlp__graph_kernel,@function
gather_scatter__mpnn_edge_mlp__graph_kernel:''')
    e(f'''
    s_cmp_ge_u32 s2, 256
    s_cbranch_scc1 L_k2_end
    s_load_dwordx2 s[{SRD_P}:{SRD_P+1}], s[0:1], 64
    s_load_dwordx2 s[{SRD_X}:{SRD_X+1}], s[0:1], 0
    s_load_dwordx2 s[{SRD_WM}:{SRD_WM+1}], s[0:1], 32
    s_load_dwordx2 s[{SRD_WU}:{SRD_WU+1}], s[0:1], 40
    s_load_dwordx2 s[{SRD_OUT}:{SRD_OUT+1}], s[0:1], 48
    v_readfirstlane_b32 s{S_WV}, v0
    s_and_b32 s{S_B}, s2, 7
    s_lshl_b32 s{S_B}, s{S_B}, 5
    s_lshr_b32 s{S_TMP}, s2, 3
    s_add_u32 s{S_B}, s{S_B}, s{S_TMP}
    s_mul_i32 s{S_X0}, s{S_B}, {NB*128}
    s_lshr_b32 s{S_WV}, s{S_WV}, 6
    s_mov_b32 s{SRD_P+2}, {NODES*128}
    s_mov_b32 s{SRD_P+3}, 0x20000
    s_mov_b32 s{SRD_TAB+2}, {G*1024}
    s_mov_b32 s{SRD_TAB+3}, 0x20000
    s_mov_b32 s{SRD_REC+2}, {G*REC_STRIDE}
    s_mov_b32 s{SRD_REC+3}, 0x20000
    s_mov_b32 s{SRD_X+2}, {NODES*128}
    s_mov_b32 s{SRD_X+3}, 0x20000
    s_mov_b32 s{SRD_WM+2}, {129*128}
    s_mov_b32 s{SRD_WM+3}, 0x20000
    s_mov_b32 s{SRD_WU+2}, {128*128}
    s_mov_b32 s{SRD_WU+3}, 0x20000
    s_mov_b32 s{SRD_OUT+2}, {NODES*128}
    s_mov_b32 s{SRD_OUT+3}, 0x20000
    s_mov_b32 s{S_RND}, 0
    s_mov_b32 s{S_SAFE}, 0
    s_mov_b32 s{S_FIRST}, 1
    s_movk_i32 s{S_128}, 128
    s_mov_b32 s{S_L2E}, {NEG_LOG2E}
    s_lshl_b32 s6, s{S_B}, 2
    v_lshrrev_b32 v2, 2, v0            ; g
    v_lshlrev_b32 v3, 10, v2           ; g*1024
    v_lshlrev_b32 v1, 4, v0            ; 16 t
    v_and_b32 v14, 15, v0              ; m
    v_lshlrev_b32 v15, 3, v14
    s_waitcnt lgkmcnt(0)
    s_add_u32 s{SRD_TAB}, s{SRD_P}, {WS_TAB}
    s_addc_u32 s{SRD_TAB+1}, s{SRD_P+1}, 0
    s_add_u32 s{SRD_REC}, s{SRD_P}, {WS_REC}
    s_addc_u32 s{SRD_REC+1}, s{SRD_P+1}, 0
    buffer_load_dword v46, v3, s[{SRD_TAB}:{SRD_TAB+3}], s6 offen
    s_cmp_ge_u32 s{S_WV}, 8
    s_cbranch_scc1 L_k2_ldw2
    buffer_load_dwordx4 v[4:7], v1, s[{SRD_X}:{SRD_X+3}], s{S_X0} offen
    s_branch L_k2_ld2
L_k2_ldw2:
    buffer_load_dwordx4 v[4:7], v1, s[{SRD_WM}:{SRD_WM+3}], 0 offen
L_k2_ld2:
    s_movk_i32 s7, 16384
    buffer_load_dwordx4 v[8:11], v1, s[{SRD_WU}:{SRD_WU+3}], 0 offen
    buffer_load_dwordx2 v[12:13], v15, s[{SRD_WM}:{SRD_WM+3}], s7 offen
    v_mov_b32 v{DS}, 0
    v_mov_b32 v{DS+1}, 0
    v_mov_b32 v47, {FLAG}
    ds_write_b32 v47, v{DS}
    s_branch L_round_go
L_round:
    s_barrier
    s_lshl_b32 s6, s{S_B}, 2
    v_lshrrev_b32 v2, 2, v0
    v_lshlrev_b32 v3, 10, v2
    v_lshlrev_b32 v1, 4, v0
    buffer_load_dword v46, v3, s[{SRD_TAB}:{SRD_TAB+3}], s6 offen
    s_waitcnt vmcnt(0)
L_round_go:
    v_mov_b32 v28, 0
    v_mov_b32 v29, 0
    v_mov_b32 v30, 0
    v_mov_b32 v31, 0
    v_add_u32 v32, {PART}, v1
    v_and_b32 v33, 0xfc, v0
    ds_write_b128 v32, v[28:31]
    ds_write_b128 v32, v[28:31] offset:16384
    ds_write_b32 v33, v28
    v_mul_u32_u24 v2, {REC_STRIDE}, v2
    v_and_b32 v3, 3, v0
    v_add_u32 v3, s{S_RND}, v3
    v_mov_b32 v34, 0x7ffffff0
    s_lshr_b32 s6, s2, 3
    s_mul_i32 s6, s6, {391*128}
    v_lshlrev_b32 v35, 7, v0
    v_cmp_gt_u32 vcc, 391, v0
    s_waitcnt vmcnt(3)
    v_and_b32 v36, 0xffff, v46         ; start
    v_cndmask_b32 v35, v34, v35, vcc
    v_lshrrev_b32 v37, 16, v46         ; end
    v_add_u32 v36, v36, v3             ; gi0
    v_lshl_add_u32 v2, v36, 4, v2
    v_sub_u32 v37, v37, v36
    v_cmp_lt_i32 s[{S_TMP}:{S_TMP+1}], 0, v37
    v_cmp_lt_i32 s[{S_TMP+2}:{S_TMP+3}], 4, v37
    v_cmp_lt_i32 s[{S_TMP+4}:{S_TMP+5}], 8, v37
    v_cmp_lt_i32 s[{S_TMP+6}:{S_TMP+7}], 12, v37
    v_cndmask_b32 v38, v34, v2, s[{S_TMP}:{S_TMP+1}]
    v_cndmask_b32 v39, v34, v2, s[{S_TMP+2}:{S_TMP+3}]
    v_cndmask_b32 v40, v34, v2, s[{S_TMP+4}:{S_TMP+5}]
    buffer_load_dwordx4 v[16:19], v38, s[{SRD_REC}:{SRD_REC+3}], 0 offen
    buffer_load_dwordx4 v[20:23], v39, s[{SRD_REC}:{SRD_REC+3}], 0 offen offset:64
    buffer_load_dwordx4 v[24:27], v40, s[{SRD_REC}:{SRD_REC+3}], 0 offen offset:128
    buffer_load_dword v{E+15}, v35, s[{SRD_P}:{SRD_P+3}], s6 offen
    s_cmp_eq_u32 s{S_FIRST}, 0
    s_cbranch_scc1 L_staged
    v_lshrrev_b32 v28, 3, v0
    v_mul_u32_u24 v28, 144, v28
    v_and_b32 v29, 7, v0
    v_lshl_add_u32 v28, v29, 4, v28
    v_add_u32 v28, {XS}, v28
    v_and_b32 v30, 63, v0              ; lane
    v_and_b32 v31, 3, v0
    v_lshlrev_b32 v{CH16}, 4, v31
    ''')
    for d in range(4):
        e(f'v_cmp_eq_u32 vcc, {d}, v31')
        e('s_nop 1')
        e(f'v_cndmask_b32 v{MK+d}, 0, 1.0, vcc')
    e(f'''
    v_lshrrev_b32 v32, 1, v30
    v_xor_b32 v32, v32, v30
    v_and_b32 v32, 16, v32
    v_and_b32 v33, 1, v0
    v_lshlrev_b32 v33, 4, v33
    v_mov_b32 v41, 0x3f80
    v_lshlrev_b32 v33, v33, v41
    v_bfe_u32 v41, v0, 1, 3
    v_or_b32 v41, v41, v32
    ''')
    for d in range(8):
        e(f'v_cmp_eq_u32 vcc, {d}, v41')
        e('s_nop 1')
        e(f'v_cndmask_b32 v{BS0+d}, 0, v33, vcc')
    e(f'''
    v_lshlrev_b32 v{LQ}, 4, v14
    v_lshrrev_b32 v41, 4, v0
    v_lshl_add_u32 v{LA}, v41, 8, v{LQ}
    v_add_u32 v{LA}, {PART}, v{LA}
    v_add_u32 v{LQ}, {QS}, v{LQ}
    v_cmp_eq_u32 vcc, 0, v32
    s_waitcnt vmcnt(4)
    ds_write_b128 v28, v[4:7]
    ds_write_b128 v28, v[8:11] offset:{WUS-XS}
    v_cndmask_b32 v12, 0, v12, vcc
    v_cndmask_b32 v13, 0, v13, vcc
    v_lshlrev_b32 v{BX}, 16, v12
    v_and_b32 v{BX+1}, 0xffff0000, v12
    v_lshlrev_b32 v{BX+2}, 16, v13
    v_and_b32 v{BX+3}, 0xffff0000, v13
    ''')
    for d in range(4):
        e(f'v_mul_f32 v{BX+d}, s{S_L2E}, v{BX+d}')
    for d in range(4):
        e(f'v_cvt_pk_bf16_f32 v{BX+d}, 0, v{BX+d}')
    def frag_addrs(vtr, vb, tmp):
        e(f'''
        v_bfe_u32 v{tmp}, v0, 4, 2         ; kq
        v_bfe_u32 v{vtr}, v0, 2, 2         ; r
        v_lshl_add_u32 v{vtr}, v{tmp}, 3, v{vtr}
        v_mul_u32_u24 v{vtr}, 144, v{vtr}
        v_and_b32 v{vb}, 3, v0
        v_lshl_add_u32 v{vtr}, v{vb}, 3, v{vtr}
        s_and_b32 s6, s{S_WV}, 3
        s_lshl_b32 s6, s6, 5
        s_add_u32 s6, s6, {XS}
        v_add_u32 v{vtr}, s6, v{vtr}
        v_and_b32 v{vb}, 15, v0
        s_lshr_b32 s7, s{S_WV}, 2
        s_lshl_b32 s7, s7, 4
        v_add_u32 v{vb+1}, s7, v{vb}       ; node
        v_mul_u32_u24 v{vb}, 144, v{vb+1}
        v_lshl_add_u32 v{vb}, v{tmp}, 4, v{vb}
        v_add_u32 v{vb}, {XS}, v{vb}
        ''')
    frag_addrs(28, 29, 31)
    e(f'''
    s_waitcnt lgkmcnt(0)
    s_barrier
    ''')
    for s in range(2):
        for h in range(2):
            e(f'ds_read_b64_tr_b16 v[{4+4*s+2*h}:{5+4*s+2*h}], v28 offset:{W2S-XS+(32*s+4*h)*144}')
    e(f'''
    ds_read_b128 v[32:35], v29
    ds_read_b128 v[36:39], v29 offset:64
    v_lshlrev_b32 v30, 8, v30
    v_lshl_add_u32 v30, v31, 4, v30
    s_and_b32 s6, s{S_WV}, 3
    s_lshl_b32 s6, s6, 6
    v_add_u32 v30, s6, v30
    s_waitcnt lgkmcnt(1)
    v_mfma_f32_16x16x32_bf16 v[40:43], v[4:7], v[32:35], 0
    s_waitcnt lgkmcnt(0)
    v_mfma_f32_16x16x32_bf16 v[40:43], v[8:11], v[36:39], v[40:43]
    s_nop 7
    v_mul_f32 v40, s{S_L2E}, v40
    v_mul_f32 v41, s{S_L2E}, v41
    v_mul_f32 v42, s{S_L2E}, v42
    v_mul_f32 v43, s{S_L2E}, v43
    ds_write_b128 v30, v[40:43] offset:{QS}
    s_mov_b32 s{S_FIRST}, 0
L_staged:
    s_waitcnt lgkmcnt(0)
    s_barrier
    ds_read_b128 v[4:7], v1 offset:{QS}
    v_mov_b32 v3, 1
    v_mov_b32 v2, 240
    s_mov_b64 exec, s[{S_TMP+6}:{S_TMP+7}]
    ds_write_b32 v2, v3
    s_mov_b64 exec, -1
    s_waitcnt lgkmcnt(0)
    ''')
    for i in range(4):
        e(f'v_exp_f32 v{8+i}, v{4+i}')
    for i in range(4):
        e(f'v_add_f32 v{8+i}, 1.0, v{8+i}')
    for i in range(4):
        e(f'v_rcp_f32 v{8+i}, v{8+i}')
    e('s_nop 0')
    for i in range(4):
        e(f'v_mul_f32 v{4+i}, v{4+i}, v{8+i}')
    for k in range(3):
        e(f's_waitcnt vmcnt({3-k})')
        m = 19 + 4*k
        for i in range(3):
            e(f'v_bfe_u32 v{28+3*k+i}, v{m}, {8*i}, 8')
        for i in range(3):
            e(f'v_cmp_ne_u32 s[{S_MASK+6*k+2*i}:{S_MASK+6*k+2*i+1}], 0, v{28+3*k+i}')
        e('s_nop 1')
        for i in range(3):
            e(f's_mov_b64 exec, s[{S_MASK+6*k+2*i}:{S_MASK+6*k+2*i+1}]')
            e(f'ds_add_rtn_u32 v{37+3*k+i}, v{28+3*k+i}, v3')
        e('s_mov_b64 exec, -1')
    e(f'''
    v_and_b32 v46, 63, v0
    v_lshlrev_b32 v47, 2, v46
    v_lshrrev_b32 v12, 4, v0           ; n
    v_lshlrev_b32 v13, 2, v12          ; 4n
    v_and_b32 v14, 15, v0              ; j
    s_waitcnt lgkmcnt(0)
    s_barrier
    ; ---- phase B
    ds_read_b32 v48, v47
    ds_read_b32 v8, v13 offset:4
    s_waitcnt lgkmcnt(1)
    v_add_u32 v49, 7, v48
    v_lshrrev_b32 v49, 3, v49
    v_mov_b32 v50, v49
    v_readlane_b32 s{S_MORE}, v48, 60
    ''')
    scan(50)
    e(f'''
    v_sub_u32 v49, v50, v49            ; uoff
    v_readlane_b32 s{S_TOT}, v50, 50
    v_lshlrev_b32 v51, 5, v49
    ds_write_b32 v47, v51 offset:{BASE}
    ''')
    for sl in range(9):
        e(f's_mov_b64 exec, s[{S_MASK+2*sl}:{S_MASK+2*sl+1}]')
        e(f'ds_read_b32 v{64+sl}, v{28+sl} offset:{BASE}')
    e(f'''
    s_mov_b64 exec, -1
    ds_read_b32 v9, v13 offset:{BASE+4}
    s_add_u32 s6, s{S_TOT}, 3
    s_lshr_b32 s6, s6, 2               ; nT
    s_lshr_b32 s{S_QN}, s6, 4
    s_and_b32 s{S_RN}, s6, 15
    s_add_u32 s6, s{S_QN}, 1
    s_lshl_b32 s{S_TMP}, s{S_RN}, 2    ; 4 rn
    s_mul_i32 s7, s{S_TMP}, s6         ; thr
    v_cvt_f32_u32 v52, s6
    v_cvt_f32_u32 v53, s{S_QN}
    v_rcp_f32 v52, v52
    v_rcp_f32 v53, v53
    v_subrev_u32 v54, s7, v49
    v_cvt_f32_u32 v55, v49
    v_cvt_f32_u32 v54, v54
    v_add_f32 v55, 0.5, v55
    v_add_f32 v54, 0.5, v54
    v_mul_f32 v55, v55, v52
    v_mul_f32 v54, v54, v53
    v_cvt_u32_f32 v55, v55
    v_cvt_u32_f32 v54, v54
    v_cmp_gt_u32 vcc, s7, v49
    v_min_u32 v54, 64, v54
    v_add_u32 v54, s{S_TMP}, v54
    v_cndmask_b32 v54, v54, v55, vcc
    v_min_u32 v54, 64, v54
    v_add_u32 v54, v54, v46            ; slot+1
    v_lshlrev_b32 v54, 8, v54
    v_add_u32 v54, {PART-256}, v54
    ds_write_b32 v47, v54 offset:{ST}
    ds_read_b32 v10, v13 offset:{ST+4}
    s_waitcnt lgkmcnt(0)
    ''')
    recreg = [16, 17, 18, 20, 21, 22, 24, 25, 26]
    for sl in range(9):
        e(f'v_lshl_add_u32 v{64+sl}, v{37+sl}, 2, v{64+sl}')
    for sl in range(9):
        e(f's_mov_b64 exec, s[{S_MASK+2*sl}:{S_MASK+2*sl+1}]')
        e(f'ds_write_b32 v{64+sl}, v{recreg[sl]} offset:{RECS}')
    e(f'''
    s_mov_b64 exec, -1
    v_mov_b32 v11, {PADREC}
    s_cmp_eq_u32 s{S_WV}, 15
    s_cbranch_scc1 L_dummy
    v_cmp_gt_u32 vcc, {NB}, v12
    s_and_b64 exec, exec, vcc
    s_cbranch_execz L_tables_done
    v_sub_u32 v15, 0, v8
    v_and_b32 v15, 7, v15              ; npad
    v_cvt_f32_u32 v56, v15
    v_lshl_add_u32 v10, v14, 4, v10
    v_mul_f32 v4, v56, -v4
    v_mul_f32 v5, v56, -v5
    v_mul_f32 v6, v56, -v6
    v_mul_f32 v7, v56, -v7
    ds_write_b128 v10, v[4:7]
    v_add_u32 v57, v8, v14
    v_lshl_add_u32 v57, v57, 2, v9
    v_add_u32 v58, 7, v8
    v_lshrrev_b32 v58, 3, v58          ; units
    v_lshrrev_b32 v59, 3, v9
    v_lshl_add_u32 v59, v14, 2, v59    ; 4*(uoff + j)
    v_lshlrev_b32 v60, 8, v12          ; n*256
    s_mov_b64 s[{S_TMP}:{S_TMP+1}], exec
    v_cmp_gt_u32 vcc, v15, v14
    s_and_b64 exec, exec, vcc
    ds_write_b32 v57, v11 offset:{RECS}
    s_mov_b64 exec, s[{S_TMP}:{S_TMP+1}]
L_ntab:
    v_cmp_gt_u32 vcc, v58, v14
    s_and_b64 exec, exec, vcc
    s_cbranch_execz L_tables_done
    ds_write_b32 v59, v60 offset:{NTAB}
    v_add_u32 v14, 16, v14
    v_add_u32 v59, 64, v59
    s_branch L_ntab
L_dummy:
    s_lshl_b32 s6, s{S_TOT}, 5
    s_lshl_b32 s7, s{S_TOT}, 2
    v_add_u32 v57, s6, v47
    v_add_u32 v59, s7, v47
    v_mov_b32 v60, {NB*256}
    s_mov_b64 exec, 0xffffff
    ds_write_b32 v57, v11 offset:{RECS}
    s_mov_b64 exec, 7
    ds_write_b32 v59, v60 offset:{NTAB}
L_tables_done:
    s_mov_b64 exec, -1
    s_cmp_lt_u32 s{S_WV}, s{S_RN}
    s_cselect_b32 s6, 1, 0
    s_add_u32 s{S_NT}, s{S_QN}, s6
    s_min_u32 s6, s{S_WV}, s{S_RN}
    s_mul_i32 s7, s{S_WV}, s{S_QN}
    s_add_u32 s6, s6, s7
    s_lshl_b32 s6, s6, 2               ; ustart
    v_bfe_u32 v2, v0, 2, 1
    v_bfe_u32 v3, v0, 5, 1
    v_lshl_add_u32 v2, v2, 1, v3       ; qg
    v_mul_u32_u24 v2, s{S_NT}, v2
    v_add_u32 v2, s6, v2
    v_bfe_u32 v3, v0, 3, 2             ; gD
    v_lshlrev_b32 v3, 2, v3
    v_lshl_add_u32 v{AR}, v2, 5, v3
    v_add_u32 v{AR}, {RECS}, v{AR}
    v_bfe_u32 v2, v0, 4, 2             ; qd
    v_mul_u32_u24 v2, s{S_NT}, v2
    v_add_u32 v2, s6, v2
    v_lshlrev_b32 v{AN}, 2, v2
    v_add_u32 v{AN}, {NTAB}, v{AN}
    s_waitcnt lgkmcnt(0)
    s_barrier
    s_cmp_eq_u32 s{S_NT}, 0
    s_cbranch_scc1 L_loop_done
    ds_read_b32 v{RA}, v{AR}
    ds_read_b32 v{RB}, v{AR} offset:16
    ds_read_b32 v{X}, v{AN}
    ds_read_b32 v{TMP}, v{AR} offset:32
    s_waitcnt lgkmcnt(3)
    ''')
    gather(G0, RA)
    e('s_waitcnt lgkmcnt(2)')
    gather(G1, RB)
    e('s_waitcnt lgkmcnt(1)')
    load_c()
    e(f'v_add_u32 v{Z}, v{X}, v{LA}')
    e(f'ds_read_b32 v{X}, v{AN} offset:4')
    build_ax(RA)
    e('s_waitcnt vmcnt(2) lgkmcnt(1)')
    e(f'v_mov_b32 v{RA}, v{TMP}')
    mf(T0, G0, BS0, C)
    mf(T0, G0+4, BS1, T0)
    mf(T0, AX, BX, T0)
    gather(G0, RA)
    build_ax(RB)
    e(f'''
    ds_read_b32 v{RB}, v{AR} offset:48
    v_add_u32 v{AR}, 64, v{AR}
    v_add_u32 v{AN}, 8, v{AN}
    s_nop 7
    s_cmp_lg_u32 s{S_SAFE}, 0
    s_cbranch_scc1 L_safe_loop
    ''')
    main_loop(False)
    e(f'''
L_loop_done:
    v_add_f32 v{TMP}, v{DS}, v{DS+1}
    s_movk_i32 s6, 0x207
    v_mbcnt_lo_u32_b32 v{N}, -1, 0
    v_cmp_class_f32 vcc, v{TMP}, s6
    v_mbcnt_hi_u32_b32 v{N}, -1, v{N}
    s_lshl_b32 s7, s{S_WV}, 6
    v_mov_b32 v{TMP+1}, {FLAG}
    v_mov_b32 v{TMP+2}, 1
    s_nop 4
    v_add_u32 v0, s7, v{N}
    s_and_b64 exec, exec, vcc
    ds_write_b32 v{TMP+1}, v{TMP+2}
    s_mov_b64 exec, -1
    ''')
    frag_addrs(28, 29, 31)
    for s in range(4):
        for h in range(2):
            e(f'ds_read_b64_tr_b16 v[{32+4*s+2*h}:{33+4*s+2*h}], v28 offset:{WUS-XS+(32*s+4*h)*144}')
    e(f'''
    ds_read_b128 v[48:51], v29
    ds_read_b128 v[52:55], v29 offset:64
    v_lshrrev_b32 v12, 4, v0           ; n
    v_lshlrev_b32 v13, 2, v12
    v_and_b32 v14, 15, v0              ; j
    v_lshlrev_b32 v1, 4, v0
    ds_read2_b32 v[10:11], v13 offset0:{(ST+4)//4} offset1:{(ST+8)//4}
    s_waitcnt lgkmcnt(0)
    v_mfma_f32_16x16x32_bf16 v[56:59], v[32:35], v[48:51], 0
    v_mfma_f32_16x16x32_bf16 v[56:59], v[36:39], v[52:55], v[56:59]
    v_lshl_add_u32 v10, v14, 4, v10
    v_mul_u32_u24 v15, 144, v12
    v_lshl_add_u32 v15, v14, 3, v15
    v_add_u32 v15, {W2S}, v15
    v_add_u32 v2, {AGG}, v1
    v_cmp_gt_u32 vcc, {NB}, v12
    s_barrier
    ; ---- fold
    s_and_b64 exec, exec, vcc
    s_cbranch_execz L_fold_done
    s_mov_b64 s[{S_TMP}:{S_TMP+1}], exec
    ds_read_b128 v[4:7], v10
L_fold:
    v_add_u32 v10, 256, v10
    v_cmp_lt_u32 vcc, v10, v11
    s_and_b64 exec, exec, vcc
    s_cbranch_execz L_fold2
    ds_read_b128 v[16:19], v10
    s_waitcnt lgkmcnt(0)
    v_pk_add_f32 v[4:5], v[4:5], v[16:17]
    v_pk_add_f32 v[6:7], v[6:7], v[18:19]
    s_branch L_fold
L_fold2:
    s_mov_b64 exec, s[{S_TMP}:{S_TMP+1}]
    s_cmp_eq_u32 s{S_RND}, 0
    s_cbranch_scc1 L_fold3
    ds_read_b128 v[16:19], v2
    s_waitcnt lgkmcnt(0)
    v_pk_add_f32 v[4:5], v[4:5], v[16:17]
    v_pk_add_f32 v[6:7], v[6:7], v[18:19]
L_fold3:
    s_waitcnt lgkmcnt(0)
    s_cmp_eq_u32 s{S_MORE}, 0
    s_cbranch_scc1 L_fold4
    ds_write_b128 v2, v[4:7]
    s_branch L_fold_done
L_fold4:
    s_mov_b32 s6, {NEG_LN2}
    v_mul_f32 v4, s6, v4
    v_mul_f32 v5, s6, v5
    v_mul_f32 v6, s6, v6
    v_mul_f32 v7, s6, v7
    v_cvt_pk_bf16_f32 v4, v4, v5
    v_cvt_pk_bf16_f32 v5, v6, v7
    ds_write_b64 v15, v[4:5]
L_fold_done:
    s_mov_b64 exec, -1
    s_waitcnt lgkmcnt(0)
    s_cmp_eq_u32 s{S_MORE}, 0
    s_cbranch_scc1 L_final
    s_add_u32 s{S_RND}, s{S_RND}, 12
    s_branch L_round
L_final:
    s_barrier
    ds_read_b128 v[48:51], v29 offset:{W2S-XS}
    ds_read_b128 v[52:55], v29 offset:{W2S-XS+64}
    v_lshlrev_b32 v20, 7, v30
    v_lshl_add_u32 v20, v31, 3, v20
    s_and_b32 s6, s{S_WV}, 3
    s_lshl_b32 s6, s6, 5
    s_add_u32 s6, s6, s{S_X0}
    v_cmp_gt_u32 vcc, {NB}, v30
    s_waitcnt lgkmcnt(1)
    v_mfma_f32_16x16x32_bf16 v[56:59], v[40:43], v[48:51], v[56:59]
    s_waitcnt lgkmcnt(0)
    v_mfma_f32_16x16x32_bf16 v[56:59], v[44:47], v[52:55], v[56:59]
    s_movk_i32 s7, 0x207
    s_nop 7
    s_and_b64 exec, exec, vcc
    ''')
    for i in range(4):
        e(f'v_mul_f32 v{4+i}, s{S_L2E}, v{56+i}')
    for i in range(4):
        e(f'v_exp_f32 v{4+i}, v{4+i}')
    e('v_cmp_class_f32 vcc, v56, s7')
    for i in range(4):
        e(f'v_add_f32 v{4+i}, 1.0, v{4+i}')
    for i in range(4):
        e(f'v_rcp_f32 v{4+i}, v{4+i}')
    e('s_nop 0')
    for i in range(4):
        e(f'v_mul_f32 v{4+i}, v{56+i}, v{4+i}')
    e(f'''
    v_cvt_pk_bf16_f32 v4, v4, v5
    v_cvt_pk_bf16_f32 v5, v6, v7
    buffer_store_dwordx2 v[4:5], v20, s[{SRD_OUT}:{SRD_OUT+3}], s6 offen
    s_cmp_lg_u32 s{S_SAFE}, 0
    s_cbranch_scc1 L_k2_end
    s_and_b64 exec, exec, vcc
    ds_write_b32 v{TMP+1}, v{TMP+2}
    s_mov_b64 exec, -1
    s_waitcnt lgkmcnt(0)
    s_barrier
    ds_read_b32 v2, v{TMP+1}
    s_waitcnt lgkmcnt(0)
    v_readfirstlane_b32 s6, v2
    s_cmp_eq_u32 s6, 0
    s_cbranch_scc1 L_k2_end
    s_mov_b32 s{S_SAFE}, 1
    s_mov_b32 s{S_RND}, 0
    v_mov_b32 v{DS}, 0
    v_mov_b32 v{DS+1}, 0
    s_waitcnt vmcnt(0)
    s_branch L_round
L_k2_end:
    s_endpgm
    ''')
    main_loop(True)
    e('s_branch L_loop_done')

HEADER = f'''; MPNN edge-MLP layer: two launches.
; @launch kernel=part_kernel grid=({G+K1_PWG},1,1) block=({K1_BLOCK},1,1) lds={K1_LDS}
; @launch kernel=gather_scatter__mpnn_edge_mlp__graph_kernel grid=(256,1,1) block=(1024,1,1) lds={K2_LDS}
.amdgcn_target "amdgcn-amd-amdhsa--gfx950"
.text'''

def main():
    k1()
    k2()
    e('.section .rodata,"a"')
    e('.p2align 6')
    kd('part_kernel', 72, 40)
    e('.p2align 6')
    kd('gather_scatter__mpnn_edge_mlp__graph_kernel', 128, 80)
    path = sys.argv[1] if len(sys.argv) > 1 else 'gather_scatter__mpnn_edge_mlp__graph.s'
    open(path, 'w').write(HEADER + '\n' + '\n'.join(out) + '\n')

main()
```

```python
import sys, struct

NODES = 12500
EDGES = 800000
NB = 49
G = 250
CH = 3200
K1_BLOCK = 400
K1_PWG = 131
WS_P = 0
WS_TAB = 0x200000
WS_REC = 0x300000
REC_STRIDE = 20480

def f32(x):
    return '0x%08x' % struct.unpack('<I', struct.pack('<f', x))[0]
NEG_LOG2E = f32(-1.4426950408889634)
NEG_LN2 = f32(-0.6931471805599453)

out = []
def e(s=''):
    for line in s.split('\n'):
        line = line.strip()
        if not line:
            continue
        if line.startswith('@STAMP'):
            stamp(line[6:].strip()); continue
        if line.startswith('@INIT'):
            stamp_init(); continue
        if line.startswith('@FLUSH'):
            stamp('end'); stamp_rt(1); stamp_flush(int(line[6:])); continue
        if line.endswith(':') or line.startswith('.') or line.startswith(';'):
            out.append(line)
        else:
            out.append('    ' + line)

import os
STAMP = int(os.environ.get('STAMP', '0'))
nstamp = [0]
def stamp(name=''):
    if not STAMP: return
    i = nstamp[0]; nstamp[0] += 1
    e(f'''s_waitcnt lgkmcnt(0)
    s_memtime s[98:99]
    s_waitcnt lgkmcnt(0)
    s_mov_b32 s{76+i}, s98''')
def stamp_rt(idx):
    if not STAMP: return
    e(f'''s_waitcnt lgkmcnt(0)
    s_memrealtime s[98:99]
    s_waitcnt lgkmcnt(0)
    s_mov_b32 s{74+idx}, s98''')
def stamp_flush(kidx):
    if not STAMP: return
    e(f'''s_mov_b64 exec, -1
    s_load_dwordx2 s[96:97], s[0:1], 64
    s_waitcnt lgkmcnt(0)
    s_add_u32 s96, s96, {(16+4*kidx)<<20}
    s_addc_u32 s97, s97, 0
    s_mov_b32 s98, 0x400000
    s_mov_b32 s99, 0x20000
    s_lshl_b32 s100, s2, 4
    s_add_u32 s100, s100, s95
    s_lshl_b32 s100, s100, 7
    v_mov_b32 v2, 0
    s_getreg_b32 s94, hwreg(HW_REG_HW_ID)
    s_getreg_b32 s93, hwreg(HW_REG_XCC_ID)''')
    for i in range(21):
        e(f'v_mov_b32 v3, s{74+i}')
        e(f'buffer_store_dword v3, v2, s[96:99], s100 offen offset:{4*i}')
    e('s_waitcnt vmcnt(0)')
def stamp_init():
    if not STAMP: return
    nstamp[0] = 0
    for i in range(74, 95): e(f's_mov_b32 s{i}, 0')
    e('v_readfirstlane_b32 s95, v0')
    e('s_lshr_b32 s95, s95, 6')
    stamp_rt(0)
    stamp('entry')

def vr(a, n=1):
    return f'v{a}' if n == 1 else f'v[{a}:{a+n-1}]'
def sr(a, n=1):
    return f's{a}' if n == 1 else f's[{a}:{a+n-1}]'

def scan(v):
    for d in ('row_shr:1', 'row_shr:2', 'row_shr:4', 'row_shr:8'):
        e('s_nop 1')
        e(f'v_add_u32_dpp v{v}, v{v}, v{v} {d} row_mask:0xf bank_mask:0xf bound_ctrl:0')
    e('s_nop 1')
    e(f'v_add_u32_dpp v{v}, v{v}, v{v} row_bcast:15 row_mask:0xa bank_mask:0xf')
    e('s_nop 1')
    e(f'v_add_u32_dpp v{v}, v{v}, v{v} row_bcast:31 row_mask:0xc bank_mask:0xf')

def kd(name, vgpr, sgpr):
    if STAMP: sgpr = 102
    e(f'''.amdhsa_kernel {name}
.amdhsa_next_free_vgpr {vgpr}
.amdhsa_next_free_sgpr {sgpr}
.amdhsa_accum_offset {(vgpr+3)//4*4}
.amdhsa_group_segment_fixed_size 0
.amdhsa_kernarg_size 72
.amdhsa_user_sgpr_count 2
.amdhsa_user_sgpr_kernarg_segment_ptr 1
.amdhsa_system_sgpr_workgroup_id_x 1
.amdhsa_float_denorm_mode_32 3
.end_amdhsa_kernel''')

K1_LDS = 25600
K1_IMG = 1024
K1_GOFF = 21504

def k1():
    e('''.globl part_kernel
.p2align 8
.type part_kernel,@function
part_kernel:''')
    e(f'''
    @INIT
    s_cmp_ge_u32 s2, {G}
    s_cbranch_scc1 L_k1_p
    s_load_dwordx2 s[8:9], s[0:1], 24
    s_load_dwordx2 s[12:13], s[0:1], 16
    s_load_dwordx2 s[16:17], s[0:1], 8
    s_load_dwordx2 s[20:21], s[0:1], 64
    s_mov_b32 s10, {EDGES*4}
    s_mov_b32 s11, 0x20000
    s_mov_b32 s14, {EDGES*4}
    s_mov_b32 s15, 0x20000
    s_mov_b32 s18, {EDGES*2}
    s_mov_b32 s19, 0x20000
    s_mul_i32 s3, s2, {CH*4}
    s_add_u32 s4, s3, {CH*2}
    s_mul_i32 s5, s2, {CH*2}
    v_lshlrev_b32 v1, 4, v0
    v_lshlrev_b32 v2, 3, v0
    v_mov_b32 v24, 0
    v_mov_b32 v25, 0
    v_mov_b32 v26, 0
    v_mov_b32 v27, 0
    s_waitcnt lgkmcnt(0)
    @STAMP kernarg
    buffer_load_dwordx4 v[4:7], v1, s[8:11], s3 offen
    buffer_load_dwordx4 v[8:11], v1, s[8:11], s4 offen
    buffer_load_dwordx4 v[12:15], v1, s[12:15], s3 offen
    buffer_load_dwordx4 v[16:19], v1, s[12:15], s4 offen
    buffer_load_dwordx2 v[20:21], v2, s[16:19], s5 offen
    buffer_load_dwordx2 v[22:23], v2, s[16:19], s5 offen offset:{CH}
    ds_write_b128 v1, v[24:27]
    ds_write_b128 v1, v[24:27] offset:6400
    ds_write_b128 v1, v[24:27] offset:12800
    ds_write_b128 v1, v[24:27] offset:19200
    s_lshl_b32 s6, s2, 10
    s_add_u32 s6, s6, {WS_TAB}
    s_add_u32 s24, s20, s6
    s_addc_u32 s25, s21, 0
    s_mov_b32 s26, 1024
    s_mov_b32 s27, 0x20000
    s_mul_i32 s6, s2, {REC_STRIDE}
    s_add_u32 s6, s6, {WS_REC}
    s_add_u32 s20, s20, s6
    s_addc_u32 s21, s21, 0
    s_mov_b32 s23, 0x20000
    s_mov_b32 s28, {-NB*4 & 0xffffffff}
    s_mov_b32 s29, 0xffff0000
    v_mov_b32 v3, 1
    v_readfirstlane_b32 s7, v0
    s_waitcnt lgkmcnt(0)
    s_barrier
    @STAMP bar1
    ''')
    for half in range(2):
        e(f's_waitcnt vmcnt({5-half})')
        e('@STAMP dst')
        for i in range(4*half, 4*half+4):
            e(f'v_mul_u32_u24 v{28+i}, 42800, v{4+i}')
        for i in range(4*half, 4*half+4):
            e(f'v_lshrrev_b32 v{28+i}, 21, v{28+i}')
        for i in range(4*half, 4*half+4):
            e(f'v_lshl_add_u32 v{4+i}, v{4+i}, 2, 4')
        for i in range(4*half, 4*half+4):
            e(f'v_mad_i32_i24 v{4+i}, v{28+i}, s28, v{4+i}')
            e(f'v_lshlrev_b32 v{28+i}, 2, v{28+i}')
            e(f'ds_add_rtn_u32 v{36+i}, v{28+i}, v3')
    e('s_waitcnt vmcnt(0)')
    e('@STAMP allloaded')
    for i in range(8):
        a = 20 + i//2
        if i % 2 == 0:
            e(f'v_lshl_or_b32 v{12+i}, v{a}, 16, v{12+i}')
        else:
            e(f'v_and_or_b32 v{12+i}, v{a}, s29, v{12+i}')
    e('s_waitcnt lgkmcnt(0)')
    e('s_barrier')
    e('@STAMP bar2')
    e(f'''
    s_mov_b64 s[30:31], exec
    s_mov_b64 exec, -1
    v_mbcnt_lo_u32_b32 v60, -1, 0
    v_mbcnt_hi_u32_b32 v60, -1, v60
    v_lshlrev_b32 v60, 4, v60
    ds_read_b128 v[52:55], v60
    ''')
    for i in range(8):
        e(f'v_mul_u32_u24 v{44+i}, 43691, v{36+i}')
    for i in range(8):
        e(f'v_lshrrev_b32 v{44+i}, 17, v{44+i}')
    for i in range(8):
        e(f'v_add_lshl_u32 v{20+i}, v{36+i}, v{44+i}, 2')
        e(f'v_mad_u32_u24 v{44+i}, v{44+i}, 13, v{36+i}')
    e('s_waitcnt lgkmcnt(0)')
    for i in range(4):
        e(f'v_add_u32 v{52+i}, 2, v{52+i}')
    for i in range(4):
        e(f'v_mul_u32_u24 v{52+i}, 43691, v{52+i}')
    for i in range(4):
        e(f'v_lshrrev_b32 v{52+i}, 17, v{52+i}')
    e('''
    v_add_u32 v53, v52, v53
    v_add_u32 v54, v53, v54
    v_add_u32 v55, v54, v55
    v_mov_b32 v61, v55
    ''')
    scan(61)
    e(f'''
    v_sub_u32 v56, v61, v55
    v_add_u32 v57, v56, v52
    v_add_u32 v58, v56, v53
    v_add_u32 v59, v56, v54
    v_readlane_b32 s22, v61, 63
    v_lshlrev_b32 v52, 4, v56
    v_lshlrev_b32 v53, 4, v57
    v_lshlrev_b32 v54, 4, v58
    v_lshlrev_b32 v55, 4, v59
    ds_write_b128 v60, v[52:55] offset:{K1_GOFF}
    s_lshl_b32 s22, s22, 4
    s_cmp_lg_u32 s7, 0
    s_cbranch_scc1 L_k1_notab
    v_lshl_or_b32 v56, v57, 16, v56
    v_lshl_or_b32 v57, v58, 16, v57
    v_lshl_or_b32 v58, v59, 16, v58
    v_lshl_or_b32 v59, v61, 16, v59
    buffer_store_dwordx4 v[56:59], v60, s[24:27], 0 offen
L_k1_notab:
    s_mov_b64 exec, s[30:31]
    @STAMP scan
    ''')
    for i in range(8):
        e(f'ds_read_b32 v{36+i}, v{28+i} offset:{K1_GOFF}')
    for i in range(8):
        e(f's_waitcnt lgkmcnt({min(15, 7-i+2*i)})')
        e(f'v_add_u32 v{20+i}, v{20+i}, v{36+i}')
        e(f'v_add_u32 v{44+i}, v{44+i}, v{36+i}')
        e(f'ds_write_b32 v{20+i}, v{12+i} offset:{K1_IMG}')
        e(f'ds_write_b8 v{44+i}, v{4+i} offset:{K1_IMG+12}')
    e(f'''
    s_waitcnt lgkmcnt(0)
    @STAMP placed
    s_barrier
    @STAMP bar3
    ds_read_b128 v[4:7], v1 offset:{K1_IMG}
    ds_read_b128 v[8:11], v1 offset:{K1_IMG+6400}
    ds_read_b128 v[12:15], v1 offset:{K1_IMG+12800}
    s_mov_b32 s3, 6400
    s_mov_b32 s4, 12800
    s_mov_b32 s5, 19200
    s_waitcnt lgkmcnt(2)
    buffer_store_dwordx4 v[4:7], v1, s[20:23], 0 offen
    s_waitcnt lgkmcnt(1)
    buffer_store_dwordx4 v[8:11], v1, s[20:23], s3 offen
    s_waitcnt lgkmcnt(0)
    buffer_store_dwordx4 v[12:15], v1, s[20:23], s4 offen
    s_cmp_le_u32 s22, 19200
    s_cbranch_scc1 L_k1_end
    s_cmp_ge_u32 s7, 128
    s_cbranch_scc1 L_k1_end
    ds_read_b128 v[16:19], v1 offset:{K1_IMG+19200}
    s_waitcnt lgkmcnt(0)
    buffer_store_dwordx4 v[16:19], v1, s[20:23], s5 offen
L_k1_end:
    @STAMP issued
    s_waitcnt vmcnt(0)
    @FLUSH 0
    s_endpgm
    ''')
    e(f'''
L_k1_p:
    s_cmp_ge_u32 s2, {G+K1_PWG}
    s_cbranch_scc1 L_k1_end
    v_readfirstlane_b32 s7, v0
    s_load_dwordx2 s[8:9], s[0:1], 0
    s_load_dwordx2 s[12:13], s[0:1], 32
    s_load_dwordx2 s[16:17], s[0:1], 64
    s_lshr_b32 s7, s7, 6
    s_cmp_ge_u32 s7, 6
    s_cbranch_scc1 L_k1_end
    s_mov_b32 s10, {NODES*128}
    s_mov_b32 s11, 0x20000
    s_mov_b32 s14, 8192
    s_mov_b32 s15, 0x20000
    s_mov_b32 s18, {NODES*128}
    s_mov_b32 s19, 0x20000
    s_sub_u32 s3, s2, {G}
    s_mul_i32 s3, s3, 6
    s_add_u32 s3, s3, s7
    s_lshl_b32 s3, s3, 11
    s_mov_b32 s4, 6144
    v_lshlrev_b32 v1, 4, v0        ; 16*t
    v_and_b32 v2, 15, v0           ; l%16
    v_bfe_u32 v3, v0, 4, 2         ; kq
    v_lshlrev_b32 v4, 7, v2
    v_lshl_add_u32 v5, v3, 4, v4
    s_waitcnt lgkmcnt(0)
    buffer_load_dwordx4 v[8:11], v1, s[12:15], 0 offen
    buffer_load_dwordx4 v[12:15], v1, s[12:15], s4 offen
    buffer_load_dwordx4 v[16:19], v5, s[8:11], s3 offen
    buffer_load_dwordx4 v[20:23], v5, s[8:11], s3 offen offset:64
    v_bfe_u32 v6, v0, 2, 2
    v_lshl_add_u32 v6, v3, 3, v6
    v_lshlrev_b32 v6, 7, v6
    v_and_b32 v7, 3, v0
    v_lshl_add_u32 v6, v7, 5, v6
    v_lshrrev_b32 v7, 1, v3
    v_lshl_add_u32 v4, v7, 6, v4
    v_and_b32 v7, 1, v3
    v_lshl_add_u32 v4, v7, 3, v4
    s_mov_b32 s20, {NEG_LOG2E}
    s_waitcnt vmcnt(3)
    ds_write_b128 v1, v[8:11]
    s_waitcnt vmcnt(2)
    ds_write_b128 v1, v[12:15] offset:6144
    s_waitcnt lgkmcnt(0)
    s_barrier
    ''')
    for mt in range(4):
        for s in range(2):
            for h in range(2):
                r = 24 + 8*mt + 4*s + 2*h
                e(f'ds_read_b64_tr_b16 v[{r}:{r+1}], v6 offset:{s*4096 + h*512 + 8*mt}')
    e('s_waitcnt vmcnt(0)')
    for mt in range(4):
        e(f's_waitcnt lgkmcnt({12-4*mt})')
        d = 56 + 4*mt
        e(f'v_mfma_f32_16x16x32_bf16 v[{d}:{d+3}], v[{24+8*mt}:{27+8*mt}], v[16:19], 0')
        e(f'v_mfma_f32_16x16x32_bf16 v[{d}:{d+3}], v[{28+8*mt}:{31+8*mt}], v[20:23], v[{d}:{d+3}]')
    e('s_nop 7')
    for i in range(16):
        e(f'v_mul_f32 v{56+i}, s20, v{56+i}')
    for rr in range(4):
        e(f'v_cvt_pk_bf16_f32 v{8+2*rr}, v{56+rr}, v{60+rr}')
        e(f'v_cvt_pk_bf16_f32 v{9+2*rr}, v{64+rr}, v{68+rr}')
        e(f'buffer_store_dwordx2 v[{8+2*rr}:{9+2*rr}], v4, s[16:19], s3 offen offset:{16*rr}')
    e('s_branch L_k1_end')

CNT, BASE, ST, FLAG, NTAB, RECS = 0, 256, 512, 768, 1024, 6144
QS = 45568
PART = 61952
XS = 94720
W2S = XS + 9216
WUS = XS + 18432
AGG = 131584
K2_LDS = 144128
PADREC = 0x3fff
T0, T1, C, E, G0, G1, AX, BS0, BS1, BX, MK, N, D, TMP, ACC, DS = 0, 16, 32, 48, 64, 72, 80, 84, 88, 92, 96, 100, 104, 108, 112, 116
RA, RB, VO, CH16, X, Z, LQ, LA, AR, AN = 118, 119, 120, 121, 122, 123, 124, 125, 126, 127
S_B, S_WV, S_X0 = 3, 4, 5
SRD_P, SRD_TAB, SRD_REC, SRD_X, SRD_WM, SRD_WU, SRD_OUT = 8, 12, 16, 20, 24, 28, 32
S_MASK = 36
S_RND, S_SAFE, S_TOT, S_NT, S_QN, S_RN, S_128, S_FIRST, S_MORE = 54, 55, 56, 57, 58, 59, 60, 61, 62
S_TMP = 64
S_L2E = 72

def mf(T, a, b, c):
    e(f'v_mfma_f32_32x32x16_bf16 v[{T}:{T+15}], v[{a}:{a+3}], v[{b}:{b+3}], v[{c}:{c+15}]')
def build_ax(which):
    sel = 'op_sel_hi:[0,1]' if which == RA else 'op_sel:[1,0] op_sel_hi:[1,1]'
    e(f'v_pk_mul_f32 v[{AX}:{AX+1}], v[{RA}:{RB}], v[{MK}:{MK+1}] {sel}')
    e(f'v_pk_mul_f32 v[{AX+2}:{AX+3}], v[{RA}:{RB}], v[{MK+2}:{MK+3}] {sel}')
def gather(g, rec):
    e(f'v_mad_u32_u16 v{VO}, v{rec}, s{S_128}, v{CH16}')
    e(f'buffer_load_dwordx4 v[{g}:{g+3}], v{VO}, s[{SRD_P}:{SRD_P+3}], 0 offen')
    e(f'buffer_load_dwordx4 v[{g+4}:{g+7}], v{VO}, s[{SRD_P}:{SRD_P+3}], 0 offen offset:64')
def load_c():
    e(f'v_add_u32 v{VO}, v{X}, v{LQ}')
    for i in range(4):
        e(f'ds_read_b128 v[{C+4*i}:{C+4*i+3}], v{VO}')
def exps(T, a, b):
    for i in range(a, b):
        e(f'v_exp_f32 v{E+i}, v{T+i}')
def p2(r):
    return f'v[{r}:{r+1}]'
def pk_phase(T, first, safe):
    if safe:
        for i in range(8):
            e(f'v_pk_add_f32 {p2(E+2*i)}, {p2(E+2*i)}, 1.0 op_sel_hi:[1,0]')
        for i in range(16):
            e(f'v_rcp_f32 v{E+i}, v{E+i}')
        for gd in range(4):
            for s in range(2):
                if first and gd == 0:
                    e(f'v_pk_mul_f32 {p2(N+2*s)}, {p2(T+2*s)}, {p2(E+2*s)}')
                else:
                    e(f'v_pk_fma_f32 {p2(N+2*s)}, {p2(T+4*gd+2*s)}, {p2(E+4*gd+2*s)}, {p2(N+2*s)}')
        return
    for gd in range(4):
        if first and gd == 0:
            for s in range(2):
                e(f'v_pk_add_f32 {p2(D+2*s)}, {p2(E+2*s)}, 1.0 op_sel_hi:[1,0]')
            continue
        for s in range(2):
            ns = (T+2*s) if (first and gd == 1) else (N+2*s)
            e(f'v_pk_fma_f32 {p2(TMP+2*s)}, {p2(ns)}, {p2(E+4*gd+2*s)}, {p2(ns)}')
        for s in range(2):
            e(f'v_pk_fma_f32 {p2(N+2*s)}, {p2(T+4*gd+2*s)}, {p2(D+2*s)}, {p2(TMP+2*s)}')
        for s in range(2):
            e(f'v_pk_fma_f32 {p2(D+2*s)}, {p2(D+2*s)}, {p2(E+4*gd+2*s)}, {p2(D+2*s)}')

def main_loop(safe):
    L = 'L_safe' if safe else 'L_fast'
    e(f'{L}_loop:')
    e('s_waitcnt vmcnt(2)')
    mf(T1, G1, BS0, C)
    exps(T0, 0, 4)
    mf(T1, G1+4, BS1, T1)
    exps(T0, 4, 8)
    mf(T1, AX, BX, T1)
    e('s_waitcnt lgkmcnt(0)')
    load_c()
    gather(G1, RB)
    exps(T0, 8, 16)
    pk_phase(T0, True, safe)
    build_ax(RA)
    e(f'ds_read_b32 v{RA}, v{AR}')
    e('s_waitcnt vmcnt(2) lgkmcnt(1)')
    mf(T0, G0, BS0, C)
    exps(T1, 0, 4)
    mf(T0, G0+4, BS1, T0)
    exps(T1, 4, 8)
    mf(T0, AX, BX, T0)
    e('s_waitcnt lgkmcnt(0)')
    gather(G0, RA)
    e(f'ds_read_b128 v[{ACC}:{ACC+3}], v{Z}')
    exps(T1, 8, 16)
    pk_phase(T1, False, safe)
    if not safe:
        for i in range(4):
            e(f'v_rcp_f32 v{TMP+i}, v{D+i}')
        e(f'v_pk_fma_f32 {p2(DS)}, {p2(D)}, {p2(D+2)}, {p2(DS)}')
    build_ax(RB)
    e(f'ds_read_b32 v{RB}, v{AR} offset:16')
    e('s_waitcnt lgkmcnt(1)')
    for s in range(2):
        if safe:
            e(f'v_pk_add_f32 {p2(ACC+2*s)}, {p2(N+2*s)}, {p2(ACC+2*s)}')
        else:
            e(f'v_pk_fma_f32 {p2(ACC+2*s)}, {p2(N+2*s)}, {p2(TMP+2*s)}, {p2(ACC+2*s)}')
    e(f'''
    s_sub_u32 s{S_NT}, s{S_NT}, 1
    ds_write_b128 v{Z}, v[{ACC}:{ACC+3}]
    v_add_u32 v{Z}, v{X}, v{LA}
    ds_read_b32 v{X}, v{AN}
    v_add_u32 v{AR}, 32, v{AR}
    v_add_u32 v{AN}, 4, v{AN}
    s_cmp_lg_u32 s{S_NT}, 0
    s_cbranch_scc1 {L}_loop
    ''')

def k2():
    e('''.globl gather_scatter__mpnn_edge_mlp__graph_kernel
.p2align 8
.type gather_scatter__mpnn_edge_mlp__graph_kernel,@function
gather_scatter__mpnn_edge_mlp__graph_kernel:''')
    e(f'''
    @INIT
    s_cmp_ge_u32 s2, 256
    s_cbranch_scc1 L_k2_end
    s_load_dwordx2 s[{SRD_P}:{SRD_P+1}], s[0:1], 64
    s_load_dwordx2 s[{SRD_X}:{SRD_X+1}], s[0:1], 0
    s_load_dwordx2 s[{SRD_WM}:{SRD_WM+1}], s[0:1], 32
    s_load_dwordx2 s[{SRD_WU}:{SRD_WU+1}], s[0:1], 40
    s_load_dwordx2 s[{SRD_OUT}:{SRD_OUT+1}], s[0:1], 48
    v_readfirstlane_b32 s{S_WV}, v0
    s_and_b32 s{S_B}, s2, 7
    s_lshl_b32 s{S_B}, s{S_B}, 5
    s_lshr_b32 s{S_TMP}, s2, 3
    s_add_u32 s{S_B}, s{S_B}, s{S_TMP}
    s_mul_i32 s{S_X0}, s{S_B}, {NB*128}
    s_lshr_b32 s{S_WV}, s{S_WV}, 6
    s_mov_b32 s{SRD_P+2}, {NODES*128}
    s_mov_b32 s{SRD_P+3}, 0x20000
    s_mov_b32 s{SRD_TAB+2}, {G*1024}
    s_mov_b32 s{SRD_TAB+3}, 0x20000
    s_mov_b32 s{SRD_REC+2}, {G*REC_STRIDE}
    s_mov_b32 s{SRD_REC+3}, 0x20000
    s_mov_b32 s{SRD_X+2}, {NODES*128}
    s_mov_b32 s{SRD_X+3}, 0x20000
    s_mov_b32 s{SRD_WM+2}, {129*128}
    s_mov_b32 s{SRD_WM+3}, 0x20000
    s_mov_b32 s{SRD_WU+2}, {128*128}
    s_mov_b32 s{SRD_WU+3}, 0x20000
    s_mov_b32 s{SRD_OUT+2}, {NODES*128}
    s_mov_b32 s{SRD_OUT+3}, 0x20000
    s_mov_b32 s{S_RND}, 0
    s_mov_b32 s{S_SAFE}, 0
    s_mov_b32 s{S_FIRST}, 1
    s_movk_i32 s{S_128}, 128
    s_mov_b32 s{S_L2E}, {NEG_LOG2E}
    s_lshl_b32 s6, s{S_B}, 2
    v_lshrrev_b32 v2, 2, v0            ; g
    v_lshlrev_b32 v3, 10, v2           ; g*1024
    v_lshlrev_b32 v1, 4, v0            ; 16 t
    v_and_b32 v14, 15, v0              ; m
    v_lshlrev_b32 v15, 3, v14
    s_waitcnt lgkmcnt(0)
    @STAMP kernarg
    s_add_u32 s{SRD_TAB}, s{SRD_P}, {WS_TAB}
    s_addc_u32 s{SRD_TAB+1}, s{SRD_P+1}, 0
    s_add_u32 s{SRD_REC}, s{SRD_P}, {WS_REC}
    s_addc_u32 s{SRD_REC+1}, s{SRD_P+1}, 0
    buffer_load_dword v46, v3, s[{SRD_TAB}:{SRD_TAB+3}], s6 offen
    s_cmp_ge_u32 s{S_WV}, 8
    s_cbranch_scc1 L_k2_ldw2
    buffer_load_dwordx4 v[4:7], v1, s[{SRD_X}:{SRD_X+3}], s{S_X0} offen
    s_branch L_k2_ld2
L_k2_ldw2:
    buffer_load_dwordx4 v[4:7], v1, s[{SRD_WM}:{SRD_WM+3}], 0 offen
L_k2_ld2:
    s_movk_i32 s7, 16384
    buffer_load_dwordx4 v[8:11], v1, s[{SRD_WU}:{SRD_WU+3}], 0 offen
    buffer_load_dwordx2 v[12:13], v15, s[{SRD_WM}:{SRD_WM+3}], s7 offen
    v_mov_b32 v{DS}, 0
    v_mov_b32 v{DS+1}, 0
    v_mov_b32 v47, {FLAG}
    ds_write_b32 v47, v{DS}
    s_branch L_round_go
L_round:
    s_barrier
    s_lshl_b32 s6, s{S_B}, 2
    v_lshrrev_b32 v2, 2, v0
    v_lshlrev_b32 v3, 10, v2
    v_lshlrev_b32 v1, 4, v0
    buffer_load_dword v46, v3, s[{SRD_TAB}:{SRD_TAB+3}], s6 offen
    s_waitcnt vmcnt(0)
L_round_go:
    v_mov_b32 v28, 0
    v_mov_b32 v29, 0
    v_mov_b32 v30, 0
    v_mov_b32 v31, 0
    v_add_u32 v32, {PART}, v1
    v_and_b32 v33, 0xfc, v0
    ds_write_b128 v32, v[28:31]
    ds_write_b128 v32, v[28:31] offset:16384
    ds_write_b32 v33, v28
    v_mul_u32_u24 v2, {REC_STRIDE}, v2
    v_and_b32 v3, 3, v0
    v_add_u32 v3, s{S_RND}, v3
    v_mov_b32 v34, 0x7ffffff0
    s_lshr_b32 s6, s2, 3
    s_mul_i32 s6, s6, {391*128}
    v_lshlrev_b32 v35, 7, v0
    v_cmp_gt_u32 vcc, 391, v0
    s_waitcnt vmcnt(3)
    @STAMP tab
    v_and_b32 v36, 0xffff, v46         ; start
    v_cndmask_b32 v35, v34, v35, vcc
    v_lshrrev_b32 v37, 16, v46         ; end
    v_add_u32 v36, v36, v3             ; gi0
    v_lshl_add_u32 v2, v36, 4, v2
    v_sub_u32 v37, v37, v36
    v_cmp_lt_i32 s[{S_TMP}:{S_TMP+1}], 0, v37
    v_cmp_lt_i32 s[{S_TMP+2}:{S_TMP+3}], 4, v37
    v_cmp_lt_i32 s[{S_TMP+4}:{S_TMP+5}], 8, v37
    v_cmp_lt_i32 s[{S_TMP+6}:{S_TMP+7}], 12, v37
    v_cndmask_b32 v38, v34, v2, s[{S_TMP}:{S_TMP+1}]
    v_cndmask_b32 v39, v34, v2, s[{S_TMP+2}:{S_TMP+3}]
    v_cndmask_b32 v40, v34, v2, s[{S_TMP+4}:{S_TMP+5}]
    buffer_load_dwordx4 v[16:19], v38, s[{SRD_REC}:{SRD_REC+3}], 0 offen
    buffer_load_dwordx4 v[20:23], v39, s[{SRD_REC}:{SRD_REC+3}], 0 offen offset:64
    buffer_load_dwordx4 v[24:27], v40, s[{SRD_REC}:{SRD_REC+3}], 0 offen offset:128
    buffer_load_dword v{E+15}, v35, s[{SRD_P}:{SRD_P+3}], s6 offen
    s_cmp_eq_u32 s{S_FIRST}, 0
    s_cbranch_scc1 L_staged
    v_lshrrev_b32 v28, 3, v0
    v_mul_u32_u24 v28, 144, v28
    v_and_b32 v29, 7, v0
    v_lshl_add_u32 v28, v29, 4, v28
    v_add_u32 v28, {XS}, v28
    v_and_b32 v30, 63, v0              ; lane
    v_and_b32 v31, 3, v0
    v_lshlrev_b32 v{CH16}, 4, v31
    ''')
    for d in range(4):
        e(f'v_cmp_eq_u32 vcc, {d}, v31')
        e('s_nop 1')
        e(f'v_cndmask_b32 v{MK+d}, 0, 1.0, vcc')
    e(f'''
    v_lshrrev_b32 v32, 1, v30
    v_xor_b32 v32, v32, v30
    v_and_b32 v32, 16, v32
    v_and_b32 v33, 1, v0
    v_lshlrev_b32 v33, 4, v33
    v_mov_b32 v41, 0x3f80
    v_lshlrev_b32 v33, v33, v41
    v_bfe_u32 v41, v0, 1, 3
    v_or_b32 v41, v41, v32
    ''')
    for d in range(8):
        e(f'v_cmp_eq_u32 vcc, {d}, v41')
        e('s_nop 1')
        e(f'v_cndmask_b32 v{BS0+d}, 0, v33, vcc')
    e(f'''
    v_lshlrev_b32 v{LQ}, 4, v14
    v_lshrrev_b32 v41, 4, v0
    v_lshl_add_u32 v{LA}, v41, 8, v{LQ}
    v_add_u32 v{LA}, {PART}, v{LA}
    v_add_u32 v{LQ}, {QS}, v{LQ}
    v_cmp_eq_u32 vcc, 0, v32
    s_waitcnt vmcnt(4)
    @STAMP staged
    ds_write_b128 v28, v[4:7]
    ds_write_b128 v28, v[8:11] offset:{WUS-XS}
    v_cndmask_b32 v12, 0, v12, vcc
    v_cndmask_b32 v13, 0, v13, vcc
    v_lshlrev_b32 v{BX}, 16, v12
    v_and_b32 v{BX+1}, 0xffff0000, v12
    v_lshlrev_b32 v{BX+2}, 16, v13
    v_and_b32 v{BX+3}, 0xffff0000, v13
    ''')
    for d in range(4):
        e(f'v_mul_f32 v{BX+d}, s{S_L2E}, v{BX+d}')
    for d in range(4):
        e(f'v_cvt_pk_bf16_f32 v{BX+d}, 0, v{BX+d}')
    def frag_addrs(vtr, vb, tmp):
        e(f'''
        v_bfe_u32 v{tmp}, v0, 4, 2         ; kq
        v_bfe_u32 v{vtr}, v0, 2, 2         ; r
        v_lshl_add_u32 v{vtr}, v{tmp}, 3, v{vtr}
        v_mul_u32_u24 v{vtr}, 144, v{vtr}
        v_and_b32 v{vb}, 3, v0
        v_lshl_add_u32 v{vtr}, v{vb}, 3, v{vtr}
        s_and_b32 s6, s{S_WV}, 3
        s_lshl_b32 s6, s6, 5
        s_add_u32 s6, s6, {XS}
        v_add_u32 v{vtr}, s6, v{vtr}
        v_and_b32 v{vb}, 15, v0
        s_lshr_b32 s7, s{S_WV}, 2
        s_lshl_b32 s7, s7, 4
        v_add_u32 v{vb+1}, s7, v{vb}       ; node
        v_mul_u32_u24 v{vb}, 144, v{vb+1}
        v_lshl_add_u32 v{vb}, v{tmp}, 4, v{vb}
        v_add_u32 v{vb}, {XS}, v{vb}
        ''')
    frag_addrs(28, 29, 31)
    e(f'''
    s_waitcnt lgkmcnt(0)
    s_barrier
    @STAMP bar1
    ''')
    for s in range(2):
        for h in range(2):
            e(f'ds_read_b64_tr_b16 v[{4+4*s+2*h}:{5+4*s+2*h}], v28 offset:{W2S-XS+(32*s+4*h)*144}')
    e(f'''
    ds_read_b128 v[32:35], v29
    ds_read_b128 v[36:39], v29 offset:64
    v_lshlrev_b32 v30, 8, v30
    v_lshl_add_u32 v30, v31, 4, v30
    s_and_b32 s6, s{S_WV}, 3
    s_lshl_b32 s6, s6, 6
    v_add_u32 v30, s6, v30
    s_waitcnt lgkmcnt(1)
    v_mfma_f32_16x16x32_bf16 v[40:43], v[4:7], v[32:35], 0
    s_waitcnt lgkmcnt(0)
    v_mfma_f32_16x16x32_bf16 v[40:43], v[8:11], v[36:39], v[40:43]
    s_nop 7
    v_mul_f32 v40, s{S_L2E}, v40
    v_mul_f32 v41, s{S_L2E}, v41
    v_mul_f32 v42, s{S_L2E}, v42
    v_mul_f32 v43, s{S_L2E}, v43
    ds_write_b128 v30, v[40:43] offset:{QS}
    s_mov_b32 s{S_FIRST}, 0
L_staged:
    s_waitcnt lgkmcnt(0)
    s_barrier
    @STAMP bar1b
    ds_read_b128 v[4:7], v1 offset:{QS}
    v_mov_b32 v3, 1
    v_mov_b32 v2, 240
    s_mov_b64 exec, s[{S_TMP+6}:{S_TMP+7}]
    ds_write_b32 v2, v3
    s_mov_b64 exec, -1
    s_waitcnt lgkmcnt(0)
    ''')
    for i in range(4):
        e(f'v_exp_f32 v{8+i}, v{4+i}')
    for i in range(4):
        e(f'v_add_f32 v{8+i}, 1.0, v{8+i}')
    for i in range(4):
        e(f'v_rcp_f32 v{8+i}, v{8+i}')
    e('s_nop 0')
    for i in range(4):
        e(f'v_mul_f32 v{4+i}, v{4+i}, v{8+i}')
    for k in range(3):
        e(f's_waitcnt vmcnt({3-k})')
        if k == 0: e('@STAMP rec0')
        m = 19 + 4*k
        for i in range(3):
            e(f'v_bfe_u32 v{28+3*k+i}, v{m}, {8*i}, 8')
        for i in range(3):
            e(f'v_cmp_ne_u32 s[{S_MASK+6*k+2*i}:{S_MASK+6*k+2*i+1}], 0, v{28+3*k+i}')
        e('s_nop 1')
        for i in range(3):
            e(f's_mov_b64 exec, s[{S_MASK+6*k+2*i}:{S_MASK+6*k+2*i+1}]')
            e(f'ds_add_rtn_u32 v{37+3*k+i}, v{28+3*k+i}, v3')
        e('s_mov_b64 exec, -1')
    e(f'''
    v_and_b32 v46, 63, v0
    v_lshlrev_b32 v47, 2, v46
    v_lshrrev_b32 v12, 4, v0           ; n
    v_lshlrev_b32 v13, 2, v12          ; 4n
    v_and_b32 v14, 15, v0              ; j
    s_waitcnt lgkmcnt(0)
    @STAMP atomics
    s_barrier
    @STAMP bar2
    ; ---- phase B
    ds_read_b32 v48, v47
    ds_read_b32 v8, v13 offset:4
    s_waitcnt lgkmcnt(1)
    v_add_u32 v49, 7, v48
    v_lshrrev_b32 v49, 3, v49
    v_mov_b32 v50, v49
    v_readlane_b32 s{S_MORE}, v48, 60
    ''')
    scan(50)
    e(f'''
    v_sub_u32 v49, v50, v49            ; uoff
    v_readlane_b32 s{S_TOT}, v50, 50
    v_lshlrev_b32 v51, 5, v49
    ds_write_b32 v47, v51 offset:{BASE}
    ''')
    for sl in range(9):
        e(f's_mov_b64 exec, s[{S_MASK+2*sl}:{S_MASK+2*sl+1}]')
        e(f'ds_read_b32 v{64+sl}, v{28+sl} offset:{BASE}')
    e(f'''
    s_mov_b64 exec, -1
    ds_read_b32 v9, v13 offset:{BASE+4}
    s_add_u32 s6, s{S_TOT}, 3
    s_lshr_b32 s6, s6, 2               ; nT
    s_lshr_b32 s{S_QN}, s6, 4
    s_and_b32 s{S_RN}, s6, 15
    s_add_u32 s6, s{S_QN}, 1
    s_lshl_b32 s{S_TMP}, s{S_RN}, 2    ; 4 rn
    s_mul_i32 s7, s{S_TMP}, s6         ; thr
    v_cvt_f32_u32 v52, s6
    v_cvt_f32_u32 v53, s{S_QN}
    v_rcp_f32 v52, v52
    v_rcp_f32 v53, v53
    v_subrev_u32 v54, s7, v49
    v_cvt_f32_u32 v55, v49
    v_cvt_f32_u32 v54, v54
    v_add_f32 v55, 0.5, v55
    v_add_f32 v54, 0.5, v54
    v_mul_f32 v55, v55, v52
    v_mul_f32 v54, v54, v53
    v_cvt_u32_f32 v55, v55
    v_cvt_u32_f32 v54, v54
    v_cmp_gt_u32 vcc, s7, v49
    v_min_u32 v54, 64, v54
    v_add_u32 v54, s{S_TMP}, v54
    v_cndmask_b32 v54, v54, v55, vcc
    v_min_u32 v54, 64, v54
    v_add_u32 v54, v54, v46            ; slot+1
    v_lshlrev_b32 v54, 8, v54
    v_add_u32 v54, {PART-256}, v54
    ds_write_b32 v47, v54 offset:{ST}
    ds_read_b32 v10, v13 offset:{ST+4}
    s_waitcnt lgkmcnt(0)
    ''')
    recreg = [16, 17, 18, 20, 21, 22, 24, 25, 26]
    for sl in range(9):
        e(f'v_lshl_add_u32 v{64+sl}, v{37+sl}, 2, v{64+sl}')
    for sl in range(9):
        e(f's_mov_b64 exec, s[{S_MASK+2*sl}:{S_MASK+2*sl+1}]')
        e(f'ds_write_b32 v{64+sl}, v{recreg[sl]} offset:{RECS}')
    e(f'''
    s_mov_b64 exec, -1
    v_mov_b32 v11, {PADREC}
    s_cmp_eq_u32 s{S_WV}, 15
    s_cbranch_scc1 L_dummy
    v_cmp_gt_u32 vcc, {NB}, v12
    s_and_b64 exec, exec, vcc
    s_cbranch_execz L_tables_done
    v_sub_u32 v15, 0, v8
    v_and_b32 v15, 7, v15              ; npad
    v_cvt_f32_u32 v56, v15
    v_lshl_add_u32 v10, v14, 4, v10
    v_mul_f32 v4, v56, -v4
    v_mul_f32 v5, v56, -v5
    v_mul_f32 v6, v56, -v6
    v_mul_f32 v7, v56, -v7
    ds_write_b128 v10, v[4:7]
    v_add_u32 v57, v8, v14
    v_lshl_add_u32 v57, v57, 2, v9
    v_add_u32 v58, 7, v8
    v_lshrrev_b32 v58, 3, v58          ; units
    v_lshrrev_b32 v59, 3, v9
    v_lshl_add_u32 v59, v14, 2, v59    ; 4*(uoff + j)
    v_lshlrev_b32 v60, 8, v12          ; n*256
    s_mov_b64 s[{S_TMP}:{S_TMP+1}], exec
    v_cmp_gt_u32 vcc, v15, v14
    s_and_b64 exec, exec, vcc
    ds_write_b32 v57, v11 offset:{RECS}
    s_mov_b64 exec, s[{S_TMP}:{S_TMP+1}]
L_ntab:
    v_cmp_gt_u32 vcc, v58, v14
    s_and_b64 exec, exec, vcc
    s_cbranch_execz L_tables_done
    ds_write_b32 v59, v60 offset:{NTAB}
    v_add_u32 v14, 16, v14
    v_add_u32 v59, 64, v59
    s_branch L_ntab
L_dummy:
    s_lshl_b32 s6, s{S_TOT}, 5
    s_lshl_b32 s7, s{S_TOT}, 2
    v_add_u32 v57, s6, v47
    v_add_u32 v59, s7, v47
    v_mov_b32 v60, {NB*256}
    s_mov_b64 exec, 0xffffff
    ds_write_b32 v57, v11 offset:{RECS}
    s_mov_b64 exec, 7
    ds_write_b32 v59, v60 offset:{NTAB}
L_tables_done:
    s_mov_b64 exec, -1
    s_cmp_lt_u32 s{S_WV}, s{S_RN}
    s_cselect_b32 s6, 1, 0
    s_add_u32 s{S_NT}, s{S_QN}, s6
    s_min_u32 s6, s{S_WV}, s{S_RN}
    s_mul_i32 s7, s{S_WV}, s{S_QN}
    s_add_u32 s6, s6, s7
    s_lshl_b32 s6, s6, 2               ; ustart
    v_bfe_u32 v2, v0, 2, 1
    v_bfe_u32 v3, v0, 5, 1
    v_lshl_add_u32 v2, v2, 1, v3       ; qg
    v_mul_u32_u24 v2, s{S_NT}, v2
    v_add_u32 v2, s6, v2
    v_bfe_u32 v3, v0, 3, 2             ; gD
    v_lshlrev_b32 v3, 2, v3
    v_lshl_add_u32 v{AR}, v2, 5, v3
    v_add_u32 v{AR}, {RECS}, v{AR}
    v_bfe_u32 v2, v0, 4, 2             ; qd
    v_mul_u32_u24 v2, s{S_NT}, v2
    v_add_u32 v2, s6, v2
    v_lshlrev_b32 v{AN}, 2, v2
    v_add_u32 v{AN}, {NTAB}, v{AN}
    s_waitcnt lgkmcnt(0)
    @STAMP phaseB
    s_barrier
    @STAMP bar3
    s_cmp_eq_u32 s{S_NT}, 0
    s_cbranch_scc1 L_loop_done
    ds_read_b32 v{RA}, v{AR}
    ds_read_b32 v{RB}, v{AR} offset:16
    ds_read_b32 v{X}, v{AN}
    ds_read_b32 v{TMP}, v{AR} offset:32
    s_waitcnt lgkmcnt(3)
    ''')
    gather(G0, RA)
    e('s_waitcnt lgkmcnt(2)')
    gather(G1, RB)
    e('s_waitcnt lgkmcnt(1)')
    load_c()
    e(f'v_add_u32 v{Z}, v{X}, v{LA}')
    e(f'ds_read_b32 v{X}, v{AN} offset:4')
    build_ax(RA)
    e('s_waitcnt vmcnt(2) lgkmcnt(1)')
    e(f'v_mov_b32 v{RA}, v{TMP}')
    mf(T0, G0, BS0, C)
    mf(T0, G0+4, BS1, T0)
    mf(T0, AX, BX, T0)
    gather(G0, RA)
    build_ax(RB)
    e(f'''
    ds_read_b32 v{RB}, v{AR} offset:48
    v_add_u32 v{AR}, 64, v{AR}
    v_add_u32 v{AN}, 8, v{AN}
    s_nop 7
    @STAMP pipeprologue
    s_cmp_lg_u32 s{S_SAFE}, 0
    s_cbranch_scc1 L_safe_loop
    ''')
    main_loop(False)
    e(f'''
L_loop_done:
    @STAMP loopdone
    v_add_f32 v{TMP}, v{DS}, v{DS+1}
    s_movk_i32 s6, 0x207
    v_mbcnt_lo_u32_b32 v{N}, -1, 0
    v_cmp_class_f32 vcc, v{TMP}, s6
    v_mbcnt_hi_u32_b32 v{N}, -1, v{N}
    s_lshl_b32 s7, s{S_WV}, 6
    v_mov_b32 v{TMP+1}, {FLAG}
    v_mov_b32 v{TMP+2}, 1
    s_nop 4
    v_add_u32 v0, s7, v{N}
    s_and_b64 exec, exec, vcc
    ds_write_b32 v{TMP+1}, v{TMP+2}
    s_mov_b64 exec, -1
    ''')
    frag_addrs(28, 29, 31)
    for s in range(4):
        for h in range(2):
            e(f'ds_read_b64_tr_b16 v[{32+4*s+2*h}:{33+4*s+2*h}], v28 offset:{WUS-XS+(32*s+4*h)*144}')
    e(f'''
    ds_read_b128 v[48:51], v29
    ds_read_b128 v[52:55], v29 offset:64
    v_lshrrev_b32 v12, 4, v0           ; n
    v_lshlrev_b32 v13, 2, v12
    v_and_b32 v14, 15, v0              ; j
    v_lshlrev_b32 v1, 4, v0
    ds_read2_b32 v[10:11], v13 offset0:{(ST+4)//4} offset1:{(ST+8)//4}
    s_waitcnt lgkmcnt(0)
    v_mfma_f32_16x16x32_bf16 v[56:59], v[32:35], v[48:51], 0
    v_mfma_f32_16x16x32_bf16 v[56:59], v[36:39], v[52:55], v[56:59]
    v_lshl_add_u32 v10, v14, 4, v10
    v_mul_u32_u24 v15, 144, v12
    v_lshl_add_u32 v15, v14, 3, v15
    v_add_u32 v15, {W2S}, v15
    v_add_u32 v2, {AGG}, v1
    v_cmp_gt_u32 vcc, {NB}, v12
    s_barrier
    @STAMP bar4
    ; ---- fold
    s_and_b64 exec, exec, vcc
    s_cbranch_execz L_fold_done
    s_mov_b64 s[{S_TMP}:{S_TMP+1}], exec
    ds_read_b128 v[4:7], v10
L_fold:
    v_add_u32 v10, 256, v10
    v_cmp_lt_u32 vcc, v10, v11
    s_and_b64 exec, exec, vcc
    s_cbranch_execz L_fold2
    ds_read_b128 v[16:19], v10
    s_waitcnt lgkmcnt(0)
    v_pk_add_f32 v[4:5], v[4:5], v[16:17]
    v_pk_add_f32 v[6:7], v[6:7], v[18:19]
    s_branch L_fold
L_fold2:
    s_mov_b64 exec, s[{S_TMP}:{S_TMP+1}]
    s_cmp_eq_u32 s{S_RND}, 0
    s_cbranch_scc1 L_fold3
    ds_read_b128 v[16:19], v2
    s_waitcnt lgkmcnt(0)
    v_pk_add_f32 v[4:5], v[4:5], v[16:17]
    v_pk_add_f32 v[6:7], v[6:7], v[18:19]
L_fold3:
    s_waitcnt lgkmcnt(0)
    s_cmp_eq_u32 s{S_MORE}, 0
    s_cbranch_scc1 L_fold4
    ds_write_b128 v2, v[4:7]
    s_branch L_fold_done
L_fold4:
    s_mov_b32 s6, {NEG_LN2}
    v_mul_f32 v4, s6, v4
    v_mul_f32 v5, s6, v5
    v_mul_f32 v6, s6, v6
    v_mul_f32 v7, s6, v7
    v_cvt_pk_bf16_f32 v4, v4, v5
    v_cvt_pk_bf16_f32 v5, v6, v7
    ds_write_b64 v15, v[4:5]
L_fold_done:
    s_mov_b64 exec, -1
    s_waitcnt lgkmcnt(0)
    s_cmp_eq_u32 s{S_MORE}, 0
    s_cbranch_scc1 L_final
    s_add_u32 s{S_RND}, s{S_RND}, 12
    s_branch L_round
L_final:
    s_barrier
    @STAMP bar5
    ds_read_b128 v[48:51], v29 offset:{W2S-XS}
    ds_read_b128 v[52:55], v29 offset:{W2S-XS+64}
    v_lshlrev_b32 v20, 7, v30
    v_lshl_add_u32 v20, v31, 3, v20
    s_and_b32 s6, s{S_WV}, 3
    s_lshl_b32 s6, s6, 5
    s_add_u32 s6, s6, s{S_X0}
    v_cmp_gt_u32 vcc, {NB}, v30
    s_waitcnt lgkmcnt(1)
    v_mfma_f32_16x16x32_bf16 v[56:59], v[40:43], v[48:51], v[56:59]
    s_waitcnt lgkmcnt(0)
    v_mfma_f32_16x16x32_bf16 v[56:59], v[44:47], v[52:55], v[56:59]
    s_movk_i32 s7, 0x207
    s_nop 7
    s_and_b64 exec, exec, vcc
    ''')
    for i in range(4):
        e(f'v_mul_f32 v{4+i}, s{S_L2E}, v{56+i}')
    for i in range(4):
        e(f'v_exp_f32 v{4+i}, v{4+i}')
    e('v_cmp_class_f32 vcc, v56, s7')
    for i in range(4):
        e(f'v_add_f32 v{4+i}, 1.0, v{4+i}')
    for i in range(4):
        e(f'v_rcp_f32 v{4+i}, v{4+i}')
    e('s_nop 0')
    for i in range(4):
        e(f'v_mul_f32 v{4+i}, v{56+i}, v{4+i}')
    e(f'''
    v_cvt_pk_bf16_f32 v4, v4, v5
    v_cvt_pk_bf16_f32 v5, v6, v7
    buffer_store_dwordx2 v[4:5], v20, s[{SRD_OUT}:{SRD_OUT+3}], s6 offen
    s_cmp_lg_u32 s{S_SAFE}, 0
    s_cbranch_scc1 L_k2_end
    s_and_b64 exec, exec, vcc
    ds_write_b32 v{TMP+1}, v{TMP+2}
    s_mov_b64 exec, -1
    s_waitcnt lgkmcnt(0)
    s_barrier
    ds_read_b32 v2, v{TMP+1}
    s_waitcnt lgkmcnt(0)
    v_readfirstlane_b32 s6, v2
    s_cmp_eq_u32 s6, 0
    s_cbranch_scc1 L_k2_end
    s_mov_b32 s{S_SAFE}, 1
    s_mov_b32 s{S_RND}, 0
    v_mov_b32 v{DS}, 0
    v_mov_b32 v{DS+1}, 0
    s_waitcnt vmcnt(0)
    s_branch L_round
L_k2_end:
    @FLUSH 1
    s_endpgm
    ''')
    main_loop(True)
    e('s_branch L_loop_done')

HEADER = f'''; MPNN edge-MLP layer: two launches.
; @launch kernel=part_kernel grid=({G+K1_PWG},1,1) block=({K1_BLOCK},1,1) lds={K1_LDS}
; @launch kernel=gather_scatter__mpnn_edge_mlp__graph_kernel grid=(256,1,1) block=(1024,1,1) lds={K2_LDS}
.amdgcn_target "amdgcn-amd-amdhsa--gfx950"
.text'''

def main():
    k1()
    k2()
    e('.section .rodata,"a"')
    e('.p2align 6')
    kd('part_kernel', 72, 40)
    e('.p2align 6')
    kd('gather_scatter__mpnn_edge_mlp__graph_kernel', 128, 80)
    path = sys.argv[1] if len(sys.argv) > 1 else 'gather_scatter__mpnn_edge_mlp__graph.s'
    open(path, 'w').write(HEADER + '\n' + '\n'.join(out) + '\n')

main()
```

```python
import sys, struct

NODES = 12500
EDGES = 800000
NB = 49
G = 250
CH = 3200
K1_BLOCK = 400
K1_PWG = 131
WS_P = 0
WS_TAB = 0x200000
WS_REC = 0x300000
REC_STRIDE = 20480

def f32(x):
    return '0x%08x' % struct.unpack('<I', struct.pack('<f', x))[0]
NEG_LOG2E = f32(-1.4426950408889634)
NEG_LN2 = f32(-0.6931471805599453)

out = []
def e(s=''):
    for line in s.split('\n'):
        line = line.strip()
        if not line:
            continue
        if line.startswith('@STAMP'):
            stamp(line[6:].strip()); continue
        if line.startswith('@INIT'):
            stamp_init(); continue
        if line.startswith('@FLUSH'):
            stamp('end'); stamp_rt(1); stamp_flush(int(line[6:])); continue
        if line.endswith(':') or line.startswith('.') or line.startswith(';'):
            out.append(line)
        else:
            out.append('    ' + line)

import os
STAMP = int(os.environ.get('STAMP', '0'))
nstamp = [0]
def stamp(name=''):
    if not STAMP: return
    if STAMP == 2 and name not in ('entry', 'end'): return
    if STAMP == 4:
        if name not in ('entry', 'end', 'bar3', 'bar4', 'bar3rt', 'bar4rt', 'loopdone', 'pipeprologue'): return
        if name in ('bar3', 'bar4'): stamp(name + 'rt')
    i = nstamp[0]; nstamp[0] += 1
    e(f'''s_waitcnt lgkmcnt(0)
    {'s_memrealtime' if (STAMP == 3 or name.endswith('rt')) else 's_memtime'} s[98:99]
    s_waitcnt lgkmcnt(0)
    s_mov_b32 s{76+i}, s98''')
def stamp_rt(idx):
    if not STAMP: return
    e(f'''s_waitcnt lgkmcnt(0)
    s_memrealtime s[98:99]
    s_waitcnt lgkmcnt(0)
    s_mov_b32 s{74+idx}, s98''')
def stamp_flush(kidx):
    if not STAMP: return
    e(f'''s_mov_b64 exec, -1
    s_load_dwordx2 s[96:97], s[0:1], 64
    s_waitcnt lgkmcnt(0)
    s_add_u32 s96, s96, {(16+4*kidx)<<20}
    s_addc_u32 s97, s97, 0
    s_mov_b32 s98, 0x400000
    s_mov_b32 s99, 0x20000
    s_lshl_b32 s100, s2, 4
    s_add_u32 s100, s100, s95
    s_lshl_b32 s100, s100, 7
    v_mov_b32 v2, 0
    s_getreg_b32 s94, hwreg(HW_REG_HW_ID)
    s_getreg_b32 s93, hwreg(HW_REG_XCC_ID)''')
    for i in range(4 if STAMP == 2 else 21):
        e(f'v_mov_b32 v3, s{74+i}')
        e(f'buffer_store_dword v3, v2, s[96:99], s100 offen offset:{4*i}')
def stamp_init():
    if not STAMP: return
    nstamp[0] = 0
    for i in range(74, 95): e(f's_mov_b32 s{i}, 0')
    e('v_readfirstlane_b32 s95, v0')
    e('s_lshr_b32 s95, s95, 6')
    stamp_rt(0)
    stamp('entry')

def vr(a, n=1):
    return f'v{a}' if n == 1 else f'v[{a}:{a+n-1}]'
def sr(a, n=1):
    return f's{a}' if n == 1 else f's[{a}:{a+n-1}]'

def scan(v):
    for d in ('row_shr:1', 'row_shr:2', 'row_shr:4', 'row_shr:8'):
        e('s_nop 1')
        e(f'v_add_u32_dpp v{v}, v{v}, v{v} {d} row_mask:0xf bank_mask:0xf bound_ctrl:0')
    e('s_nop 1')
    e(f'v_add_u32_dpp v{v}, v{v}, v{v} row_bcast:15 row_mask:0xa bank_mask:0xf')
    e('s_nop 1')
    e(f'v_add_u32_dpp v{v}, v{v}, v{v} row_bcast:31 row_mask:0xc bank_mask:0xf')

def kd(name, vgpr, sgpr):
    if STAMP: sgpr = 102
    e(f'''.amdhsa_kernel {name}
.amdhsa_next_free_vgpr {vgpr}
.amdhsa_next_free_sgpr {sgpr}
.amdhsa_accum_offset {(vgpr+3)//4*4}
.amdhsa_group_segment_fixed_size 0
.amdhsa_kernarg_size 72
.amdhsa_user_sgpr_count 2
.amdhsa_user_sgpr_kernarg_segment_ptr 1
.amdhsa_system_sgpr_workgroup_id_x 1
.amdhsa_float_denorm_mode_32 {0 if 'nodenorm' in os.environ.get('X','') else 3}
.end_amdhsa_kernel''')

K1_LDS = 25600
K1_IMG = 1024
K1_GOFF = 21504

STF = os.environ.get('STF', '')
LDF = os.environ.get('LDF', '')
def k1():
    e('''.globl part_kernel
.p2align 8
.type part_kernel,@function
part_kernel:''')
    e(f'''
    @INIT
    s_cmp_ge_u32 s2, {G}
    s_cbranch_scc1 L_k1_p
    s_load_dwordx2 s[8:9], s[0:1], 24
    s_load_dwordx2 s[12:13], s[0:1], 16
    s_load_dwordx2 s[16:17], s[0:1], 8
    s_load_dwordx2 s[20:21], s[0:1], 64
    s_mov_b32 s10, {EDGES*4}
    s_mov_b32 s11, 0x20000
    s_mov_b32 s14, {EDGES*4}
    s_mov_b32 s15, 0x20000
    s_mov_b32 s18, {EDGES*2}
    s_mov_b32 s19, 0x20000
    s_mul_i32 s3, s2, {CH*4}
    s_add_u32 s4, s3, {CH*2}
    s_mul_i32 s5, s2, {CH*2}
    v_lshlrev_b32 v1, 4, v0
    v_lshlrev_b32 v2, 3, v0
    v_mov_b32 v24, 0
    v_mov_b32 v25, 0
    v_mov_b32 v26, 0
    v_mov_b32 v27, 0
    s_waitcnt lgkmcnt(0)
    @STAMP kernarg
    buffer_load_dwordx4 v[4:7], v1, s[8:11], s3 offen {LDF}
    buffer_load_dwordx4 v[8:11], v1, s[8:11], s4 offen {LDF}
    buffer_load_dwordx4 v[12:15], v1, s[12:15], s3 offen {LDF}
    buffer_load_dwordx4 v[16:19], v1, s[12:15], s4 offen {LDF}
    buffer_load_dwordx2 v[20:21], v2, s[16:19], s5 offen {LDF}
    buffer_load_dwordx2 v[22:23], v2, s[16:19], s5 offen offset:{CH} {LDF}
    ds_write_b128 v1, v[24:27]
    ds_write_b128 v1, v[24:27] offset:6400
    ds_write_b128 v1, v[24:27] offset:12800
    ds_write_b128 v1, v[24:27] offset:19200
    s_lshl_b32 s6, s2, 10
    s_add_u32 s6, s6, {WS_TAB}
    s_add_u32 s24, s20, s6
    s_addc_u32 s25, s21, 0
    s_mov_b32 s26, 1024
    s_mov_b32 s27, 0x20000
    s_mul_i32 s6, s2, {REC_STRIDE}
    s_add_u32 s6, s6, {WS_REC}
    s_add_u32 s20, s20, s6
    s_addc_u32 s21, s21, 0
    s_mov_b32 s23, 0x20000
    s_mov_b32 s28, {-NB*4 & 0xffffffff}
    s_mov_b32 s29, 0xffff0000
    v_mov_b32 v3, 1
    v_readfirstlane_b32 s7, v0
    s_waitcnt lgkmcnt(0)
    s_barrier
    @STAMP bar1
    ''')
    for half in range(2):
        e(f's_waitcnt vmcnt({5-half})')
        e('@STAMP dst')
        for i in range(4*half, 4*half+4):
            e(f'v_mul_u32_u24 v{28+i}, 42800, v{4+i}')
        for i in range(4*half, 4*half+4):
            e(f'v_lshrrev_b32 v{28+i}, 21, v{28+i}')
        for i in range(4*half, 4*half+4):
            e(f'v_lshl_add_u32 v{4+i}, v{4+i}, 2, 4')
        for i in range(4*half, 4*half+4):
            e(f'v_mad_i32_i24 v{4+i}, v{28+i}, s28, v{4+i}')
            e(f'v_lshlrev_b32 v{28+i}, 2, v{28+i}')
            e(f'ds_add_rtn_u32 v{36+i}, v{28+i}, v3')
    e('s_waitcnt vmcnt(0)')
    e('@STAMP allloaded')
    for i in range(8):
        a = 20 + i//2
        if i % 2 == 0:
            e(f'v_lshl_or_b32 v{12+i}, v{a}, 16, v{12+i}')
        else:
            e(f'v_and_or_b32 v{12+i}, v{a}, s29, v{12+i}')
    e('s_waitcnt lgkmcnt(0)')
    e('s_barrier')
    e('@STAMP bar2')
    e(f'''
    s_mov_b64 s[30:31], exec
    s_mov_b64 exec, -1
    v_mbcnt_lo_u32_b32 v60, -1, 0
    v_mbcnt_hi_u32_b32 v60, -1, v60
    v_lshlrev_b32 v60, 4, v60
    ds_read_b128 v[52:55], v60
    ''')
    for i in range(8):
        e(f'v_mul_u32_u24 v{44+i}, 43691, v{36+i}')
    for i in range(8):
        e(f'v_lshrrev_b32 v{44+i}, 17, v{44+i}')
    for i in range(8):
        e(f'v_add_lshl_u32 v{20+i}, v{36+i}, v{44+i}, 2')
        e(f'v_mad_u32_u24 v{44+i}, v{44+i}, 13, v{36+i}')
    e('s_waitcnt lgkmcnt(0)')
    for i in range(4):
        e(f'v_add_u32 v{52+i}, 2, v{52+i}')
    for i in range(4):
        e(f'v_mul_u32_u24 v{52+i}, 43691, v{52+i}')
    for i in range(4):
        e(f'v_lshrrev_b32 v{52+i}, 17, v{52+i}')
    e('''
    v_add_u32 v53, v52, v53
    v_add_u32 v54, v53, v54
    v_add_u32 v55, v54, v55
    v_mov_b32 v61, v55
    ''')
    scan(61)
    e(f'''
    v_sub_u32 v56, v61, v55
    v_add_u32 v57, v56, v52
    v_add_u32 v58, v56, v53
    v_add_u32 v59, v56, v54
    v_readlane_b32 s22, v61, 63
    v_lshlrev_b32 v52, 4, v56
    v_lshlrev_b32 v53, 4, v57
    v_lshlrev_b32 v54, 4, v58
    v_lshlrev_b32 v55, 4, v59
    ds_write_b128 v60, v[52:55] offset:{K1_GOFF}
    s_lshl_b32 s22, s22, 4
    s_cmp_lg_u32 s7, 0
    s_cbranch_scc1 L_k1_notab
    v_lshl_or_b32 v56, v57, 16, v56
    v_lshl_or_b32 v57, v58, 16, v57
    v_lshl_or_b32 v58, v59, 16, v58
    v_lshl_or_b32 v59, v61, 16, v59
    buffer_store_dwordx4 v[56:59], v60, s[24:27], 0 offen {STF}
L_k1_notab:
    s_mov_b64 exec, s[30:31]
    @STAMP scan
    ''')
    for i in range(8):
        e(f'ds_read_b32 v{36+i}, v{28+i} offset:{K1_GOFF}')
    for i in range(8):
        e(f's_waitcnt lgkmcnt({min(15, 7-i+2*i)})')
        e(f'v_add_u32 v{20+i}, v{20+i}, v{36+i}')
        e(f'v_add_u32 v{44+i}, v{44+i}, v{36+i}')
        e(f'ds_write_b32 v{20+i}, v{12+i} offset:{K1_IMG}')
        e(f'ds_write_b8 v{44+i}, v{4+i} offset:{K1_IMG+12}')
    e(f'''
    s_waitcnt lgkmcnt(0)
    @STAMP placed
    s_barrier
    @STAMP bar3
    ds_read_b128 v[4:7], v1 offset:{K1_IMG}
    ds_read_b128 v[8:11], v1 offset:{K1_IMG+6400}
    ds_read_b128 v[12:15], v1 offset:{K1_IMG+12800}
    s_mov_b32 s3, 6400
    s_mov_b32 s4, 12800
    s_mov_b32 s5, 19200
    s_waitcnt lgkmcnt(2)
    buffer_store_dwordx4 v[4:7], v1, s[20:23], 0 offen {STF}
    s_waitcnt lgkmcnt(1)
    buffer_store_dwordx4 v[8:11], v1, s[20:23], s3 offen {STF}
    s_waitcnt lgkmcnt(0)
    buffer_store_dwordx4 v[12:15], v1, s[20:23], s4 offen {STF}
    s_cmp_le_u32 s22, 19200
    s_cbranch_scc1 L_k1_end
    s_cmp_ge_u32 s7, 128
    s_cbranch_scc1 L_k1_end
    ds_read_b128 v[16:19], v1 offset:{K1_IMG+19200}
    s_waitcnt lgkmcnt(0)
    buffer_store_dwordx4 v[16:19], v1, s[20:23], s5 offen {STF}
L_k1_end:
    @STAMP issued
    s_waitcnt vmcnt(0)
    @FLUSH 0
    s_endpgm
    ''')
    e(f'''
L_k1_p:
    s_cmp_ge_u32 s2, {G+K1_PWG}
    s_cbranch_scc1 L_k1_end
    v_readfirstlane_b32 s7, v0
    s_load_dwordx2 s[8:9], s[0:1], 0
    s_load_dwordx2 s[12:13], s[0:1], 32
    s_load_dwordx2 s[16:17], s[0:1], 64
    s_lshr_b32 s7, s7, 6
    s_cmp_ge_u32 s7, 6
    s_cbranch_scc1 L_k1_end
    s_mov_b32 s10, {NODES*128}
    s_mov_b32 s11, 0x20000
    s_mov_b32 s14, 8192
    s_mov_b32 s15, 0x20000
    s_mov_b32 s18, {NODES*128}
    s_mov_b32 s19, 0x20000
    s_sub_u32 s3, s2, {G}
    s_mul_i32 s3, s3, 6
    s_add_u32 s3, s3, s7
    s_lshl_b32 s3, s3, 11
    s_mov_b32 s4, 6144
    v_lshlrev_b32 v1, 4, v0        ; 16*t
    v_and_b32 v2, 15, v0           ; l%16
    v_bfe_u32 v3, v0, 4, 2         ; kq
    v_lshlrev_b32 v4, 7, v2
    v_lshl_add_u32 v5, v3, 4, v4
    s_waitcnt lgkmcnt(0)
    buffer_load_dwordx4 v[8:11], v1, s[12:15], 0 offen
    buffer_load_dwordx4 v[12:15], v1, s[12:15], s4 offen
    buffer_load_dwordx4 v[16:19], v5, s[8:11], s3 offen
    buffer_load_dwordx4 v[20:23], v5, s[8:11], s3 offen offset:64
    v_bfe_u32 v6, v0, 2, 2
    v_lshl_add_u32 v6, v3, 3, v6
    v_lshlrev_b32 v6, 7, v6
    v_and_b32 v7, 3, v0
    v_lshl_add_u32 v6, v7, 5, v6
    v_lshrrev_b32 v7, 1, v3
    v_lshl_add_u32 v4, v7, 6, v4
    v_and_b32 v7, 1, v3
    v_lshl_add_u32 v4, v7, 3, v4
    s_mov_b32 s20, {NEG_LOG2E}
    s_waitcnt vmcnt(3)
    ds_write_b128 v1, v[8:11]
    s_waitcnt vmcnt(2)
    ds_write_b128 v1, v[12:15] offset:6144
    s_waitcnt lgkmcnt(0)
    s_barrier
    ''')
    for mt in range(4):
        for s in range(2):
            for h in range(2):
                r = 24 + 8*mt + 4*s + 2*h
                e(f'ds_read_b64_tr_b16 v[{r}:{r+1}], v6 offset:{s*4096 + h*512 + 8*mt}')
    e('s_waitcnt vmcnt(0)')
    for mt in range(4):
        e(f's_waitcnt lgkmcnt({12-4*mt})')
        d = 56 + 4*mt
        e(f'v_mfma_f32_16x16x32_bf16 v[{d}:{d+3}], v[{24+8*mt}:{27+8*mt}], v[16:19], 0')
        e(f'v_mfma_f32_16x16x32_bf16 v[{d}:{d+3}], v[{28+8*mt}:{31+8*mt}], v[20:23], v[{d}:{d+3}]')
    e('s_nop 7')
    for i in range(16):
        e(f'v_mul_f32 v{56+i}, s20, v{56+i}')
    for rr in range(4):
        e(f'v_cvt_pk_bf16_f32 v{8+2*rr}, v{56+rr}, v{60+rr}')
        e(f'v_cvt_pk_bf16_f32 v{9+2*rr}, v{64+rr}, v{68+rr}')
        e(f'buffer_store_dwordx2 v[{8+2*rr}:{9+2*rr}], v4, s[16:19], s3 offen offset:{16*rr} {STF}')
    e('s_branch L_k1_end')

CNT, BASE, ST, FLAG, NTAB, RECS = 0, 256, 512, 768, 1024, 6144
QS = 45568
AGG = QS + 16384
PART = AGG + 16384
XS = PART + 32768
W2S = XS + 9216
WUS = XS + 18432
K2_LDS = XS + 36864
PADREC = 0x3fff
T0, T1, C, E, G0, G1, AX, BS0, BS1, BX, MK, N, D, TMP, ACC, DS = 0, 16, 32, 48, 64, 72, 80, 84, 88, 92, 96, 100, 104, 108, 112, 116
RA, RB, Y, CH16, X, Z, LQ, LA, AR, AN = 118, 119, 120, 121, 122, 123, 124, 125, 126, 127
VO = TMP
S_B, S_WV, S_X0 = 3, 4, 5
SRD_P, SRD_TAB, SRD_REC, SRD_X, SRD_WM, SRD_WU, SRD_OUT = 8, 12, 16, 20, 24, 28, 32
S_MASK = 36
S_RND, S_SAFE, S_TOT, S_NT, S_QN, S_RN, S_128, S_FIRST, S_MORE = 54, 55, 56, 57, 58, 59, 60, 61, 62
S_TMP = 64
S_L2E = 72

X_ = os.environ.get('X', '').split(',')
PRIO = [int(x) for x in os.environ.get('PRIO', '3,1').split(',') if x]
def mf(T, a, b, c):
    if 'nomfma' in X_: return
    e(f'v_mfma_f32_32x32x16_bf16 v[{T}:{T+15}], v[{a}:{a+3}], v[{b}:{b+3}], v[{c}:{c+15}]')
def build_ax(which):
    sel = 'op_sel_hi:[0,1]' if which == RA else 'op_sel:[1,0] op_sel_hi:[1,1]'
    e(f'v_pk_mul_f32 v[{AX}:{AX+1}], v[{RA}:{RB}], v[{MK}:{MK+1}] {sel}')
    e(f'v_pk_mul_f32 v[{AX+2}:{AX+3}], v[{RA}:{RB}], v[{MK+2}:{MK+3}] {sel}')
def gather(g, rec):
    e(f'v_mad_u32_u16 v{VO}, v{rec}, s{S_128}, v{CH16}')
    if 'nogather' in X_: return
    e(f'buffer_load_dwordx4 v[{g}:{g+3}], v{VO}, s[{SRD_P}:{SRD_P+3}], 0 offen')
    e(f'buffer_load_dwordx4 v[{g+4}:{g+7}], v{VO}, s[{SRD_P}:{SRD_P+3}], 0 offen offset:64')
def load_c():
    e(f'v_xor_b32 v{Y}, v{X}, v{LQ}')
    for i in range(4):
        e(f'ds_read_b128 v[{C+4*i}:{C+4*i+3}], v{Y} offset:{QS}')
def exps(T, a, b):
    if 'noexp' in X_: return
    for i in range(a, b):
        e(f'v_exp_f32 v{E+i}, v{T+i}')
def p2(r):
    return f'v[{r}:{r+1}]'
def pk_phase(T, first, safe):
    if 'nopk' in X_: return
    if safe:
        for i in range(8):
            e(f'v_pk_add_f32 {p2(E+2*i)}, {p2(E+2*i)}, 1.0 op_sel_hi:[1,0]')
        for i in range(16):
            e(f'v_rcp_f32 v{E+i}, v{E+i}')
        for gd in range(4):
            for s in range(2):
                if first and gd == 0:
                    e(f'v_pk_mul_f32 {p2(N+2*s)}, {p2(T+2*s)}, {p2(E+2*s)}')
                else:
                    e(f'v_pk_fma_f32 {p2(N+2*s)}, {p2(T+4*gd+2*s)}, {p2(E+4*gd+2*s)}, {p2(N+2*s)}')
        return
    for gd in range(4):
        if first and gd == 0:
            for s in range(2):
                e(f'v_pk_add_f32 {p2(D+2*s)}, {p2(E+2*s)}, 1.0 op_sel_hi:[1,0]')
            continue
        for s in range(2):
            ns = (T+2*s) if (first and gd == 1) else (N+2*s)
            e(f'v_pk_fma_f32 {p2(TMP+2*s)}, {p2(ns)}, {p2(E+4*gd+2*s)}, {p2(ns)}')
        for s in range(2):
            e(f'v_pk_fma_f32 {p2(N+2*s)}, {p2(T+4*gd+2*s)}, {p2(D+2*s)}, {p2(TMP+2*s)}')
        for s in range(2):
            e(f'v_pk_fma_f32 {p2(D+2*s)}, {p2(D+2*s)}, {p2(E+4*gd+2*s)}, {p2(D+2*s)}')

def capture(fn, *a):
    n0 = len(out)
    fn(*a)
    r = [x.strip() for x in out[n0:]]
    del out[n0:]
    return r

def weave(main, fillers, start=0, step=2):
    fillers = list(fillers)
    for i, m in enumerate(main):
        e(m)
        if i >= start and (i - start) % step == 0 and fillers:
            e(fillers.pop(0))
    for f in fillers:
        e(f)

NCOVER = int(os.environ.get('NCOVER', '12'))
GAP = int(os.environ.get('GAP', '3'))
WSTEP = int(os.environ.get('WSTEP', '2'))
def msection(Tn, Gn, Tc):
    mf(Tn, Gn, BS0, C)
    exps(Tc, 0, GAP)
    mf(Tn, Gn+4, BS1, Tn)
    exps(Tc, GAP, 2*GAP)
    mf(Tn, AX, BX, Tn)
    exps(Tc, 2*GAP, NCOVER)

def main_loop(safe):
    L = 'L_safe' if safe else 'L_fast'
    P = f's[{SRD_P}:{SRD_P+3}]'
    ng = 'nogather' in X_
    def ld(g, off):
        return 's_nop 0\ns_nop 0' if ng else f'buffer_load_dwordx4 v[{g}:{g+3}], v{VO}, {P}, 0 offen' + (f' offset:{off}' if off else '')
    e('.p2align 6')
    e(f'{L}_loop:')
    msection(T1, G1, T0)
    e(f'v_mad_u32_u16 v{VO}, v{RB}, s{S_128}, v{CH16}')
    e(f'ds_write_b128 v{Z}, v[{ACC}:{ACC+3}]')
    e(f'v_add_u32 v{Z}, v{Y}, v{LA}')
    e(f'v_xor_b32 v{Y}, v{X}, v{LQ}')
    cl = [f'ds_read_b128 v[{C+4*i}:{C+4*i+3}], v{Y} offset:{QS}' for i in range(1 if 'noc' in X_ else 4)]
    e(ld(G1, 0))
    main = capture(exps, T0, NCOVER, 16)
    weave(main, [ld(G1+4, 64)] + cl[:1], 1, 2)
    main = capture(build_ax, RA) + capture(pk_phase, T0, True, safe)
    fl = cl[1:] + [f'ds_read_b32 v{RA}, v{AR} offset:{RECS+64}', f'ds_read_b32 v{X}, v{AN} offset:{NTAB+8}', f'ds_read_b128 v[{ACC}:{ACC+3}], v{Z}']
    weave(main, fl, 1, WSTEP)
    e(f's_sub_u32 s{S_NT}, s{S_NT}, 1')
    e('s_waitcnt vmcnt(2) lgkmcnt(2)')
    msection(T0, G0, T1)
    e(f'v_mad_u32_u16 v{VO}, v{RA}, s{S_128}, v{CH16}')
    e(ld(G0, 0))
    main = capture(exps, T1, NCOVER, 16)
    weave(main, [ld(G0+4, 64)], 1, 2)
    main = capture(build_ax, RB) + capture(pk_phase, T1, False, safe)
    fl = [f'ds_read_b32 v{RB}, v{AR} offset:{RECS+80}']
    if 'iter' in X_ and not safe:
        fl += [('s_memrealtime' if 'iterrt' in X_ else 's_memtime') + ' s[98:99]', f's_mov_b32 m0, s{S_NT}\ns_nop 0']
    if PRIO and not safe:
        fl += [f's_cmp_eq_u32 s{S_NT}, {PRIO[0]}\ns_cbranch_scc0 {L}_p1\ns_setprio 2\n{L}_p1:\ns_cmp_eq_u32 s{S_NT}, {PRIO[1]}\ns_cbranch_scc0 {L}_p2\ns_setprio 1\n{L}_p2:']
    weave(main, fl, 1, WSTEP)
    if not safe:
        for i in range(4):
            e(f'v_rcp_f32 v{TMP+i}, v{D+i}')
    e(f'v_add_u32 v{AR}, 32, v{AR}')
    e(f'v_add_u32 v{AN}, 4, v{AN}')
    if not safe:
        e(f'v_pk_fma_f32 {p2(DS)}, {p2(D)}, {p2(D+2)}, {p2(DS)}')
    e(f's_cmp_lg_u32 s{S_NT}, 0')
    e('s_waitcnt vmcnt(2) lgkmcnt(0)')
    if 'iter' in X_ and not safe:
        e('s_movreld_b32 s84, s98\ns_nop 0')
    for s in range(2):
        if safe:
            e(f'v_pk_add_f32 {p2(ACC+2*s)}, {p2(N+2*s)}, {p2(ACC+2*s)}')
        else:
            e(f'v_pk_fma_f32 {p2(ACC+2*s)}, {p2(N+2*s)}, {p2(TMP+2*s)}, {p2(ACC+2*s)}')
    e(f's_cbranch_scc1 {L}_loop')
    e(f'ds_write_b128 v{Z}, v[{ACC}:{ACC+3}]')

def swz_x(dst, n, tmp):
    e(f"""
    v_bfe_i32 v{tmp}, v{n}, 2, 1
    v_and_b32 v{dst}, 3, v{n}
    v_xor_b32 v{dst}, v{dst}, v{tmp}
    v_and_b32 v{dst}, 15, v{dst}
    v_lshlrev_b32 v{dst}, 4, v{dst}
    v_lshl_add_u32 v{dst}, v{n}, 8, v{dst}
    """)

def frag_addrs(vtr, vb, vnode, vkq):
    e(f"""
    v_bfe_u32 v{vkq}, v0, 4, 2         ; kq
    v_bfe_u32 v{vtr}, v0, 2, 2         ; r
    v_lshl_add_u32 v{vtr}, v{vkq}, 3, v{vtr}
    v_mul_u32_u24 v{vtr}, 144, v{vtr}
    v_and_b32 v{vb}, 3, v0
    v_lshl_add_u32 v{vtr}, v{vb}, 3, v{vtr}
    s_and_b32 s6, s{S_WV}, 3
    s_lshl_b32 s6, s6, 5
    s_add_u32 s6, s6, {XS}
    v_add_u32 v{vtr}, s6, v{vtr}
    v_and_b32 v{vb}, 15, v0
    s_lshr_b32 s7, s{S_WV}, 2
    s_lshl_b32 s7, s7, 4
    v_add_u32 v{vnode}, s7, v{vb}      ; node
    v_mul_u32_u24 v{vb}, 144, v{vnode}
    v_lshl_add_u32 v{vb}, v{vkq}, 4, v{vb}
    v_add_u32 v{vb}, {XS}, v{vb}
    """)

NW = int(os.environ.get('NW', '16'))
PFPOS = int(os.environ.get('PFPOS', '1'))
PFSPREAD = int(os.environ.get('PFSPREAD', '1'))
def k2():
    PFA = 'v_lshlrev_b32 v115, 7, v0\nv_cmp_gt_u32 vcc, 391, v0'
    if PFSPREAD:
        PFA = f'v_and_b32 v114, 63, v0\ns_mul_i32 s6, s{S_WV}, 25\nv_add_u32 v115, s6, v114\nv_lshlrev_b32 v115, 7, v115\nv_cmp_gt_u32 vcc, 25, v114'
    PF = f'buffer_load_dword v{E+15}, v115, s[{SRD_P}:{SRD_P+3}], s6 offen'
    e(""".globl gather_scatter__mpnn_edge_mlp__graph_kernel
.p2align 8
.type gather_scatter__mpnn_edge_mlp__graph_kernel,@function
gather_scatter__mpnn_edge_mlp__graph_kernel:""")
    e(f"""
    @INIT
    s_cmp_ge_u32 s2, 256
    s_cbranch_scc1 L_k2_end
    s_load_dwordx2 s[{SRD_P}:{SRD_P+1}], s[0:1], 64
    s_load_dwordx2 s[{SRD_X}:{SRD_X+1}], s[0:1], 0
    s_load_dwordx2 s[{SRD_WM}:{SRD_WM+1}], s[0:1], 32
    s_load_dwordx2 s[{SRD_WU}:{SRD_WU+1}], s[0:1], 40
    s_load_dwordx2 s[{SRD_OUT}:{SRD_OUT+1}], s[0:1], 48
    v_readfirstlane_b32 s{S_WV}, v0
    s_and_b32 s{S_B}, s2, 7
    s_lshl_b32 s{S_B}, s{S_B}, 5
    s_lshr_b32 s{S_TMP}, s2, 3
    s_add_u32 s{S_B}, s{S_B}, s{S_TMP}
    s_mul_i32 s{S_X0}, s{S_B}, {NB*128}
    s_lshr_b32 s{S_WV}, s{S_WV}, 6
    s_mov_b32 s{SRD_TAB+2}, {G*1024}
    s_mov_b32 s{SRD_TAB+3}, 0x20000
    s_mov_b32 s{SRD_X+2}, {NODES*128}
    s_mov_b32 s{SRD_X+3}, 0x20000
    s_mov_b32 s{SRD_WM+2}, {129*128}
    s_mov_b32 s{SRD_WM+3}, 0x20000
    s_lshl_b32 s6, s{S_B}, 2
    s_movk_i32 s7, 16384
    v_lshrrev_b32 v2, 2, v0            ; g
    v_lshlrev_b32 v3, 10, v2           ; g*1024
    v_lshlrev_b32 v1, 4, v0            ; 16 t
    v_and_b32 v14, 15, v0              ; m
    v_lshlrev_b32 v15, 3, v14
    s_waitcnt lgkmcnt(0)
    @STAMP kernarg
    s_add_u32 s{SRD_TAB}, s{SRD_P}, {WS_TAB}
    s_addc_u32 s{SRD_TAB+1}, s{SRD_P+1}, 0
    buffer_load_dword v46, v3, s[{SRD_TAB}:{SRD_TAB+3}], s6 offen
    s_cmp_ge_u32 s{S_WV}, 8
    s_cbranch_scc1 L_k2_ldw2
    buffer_load_dwordx4 v[4:7], v1, s[{SRD_X}:{SRD_X+3}], s{S_X0} offen
    s_branch L_k2_ld2
L_k2_ldw2:
    buffer_load_dwordx4 v[4:7], v1, s[{SRD_WM}:{SRD_WM+3}], 0 offen
L_k2_ld2:
    buffer_load_dwordx2 v[12:13], v15, s[{SRD_WM}:{SRD_WM+3}], s7 offen
    s_mov_b32 s{SRD_WU+2}, {128*128}
    s_mov_b32 s{SRD_WU+3}, 0x20000
    buffer_load_dwordx4 v[8:11], v1, s[{SRD_WU}:{SRD_WU+3}], 0 offen
    s_add_u32 s{SRD_REC}, s{SRD_P}, {WS_REC}
    s_addc_u32 s{SRD_REC+1}, s{SRD_P+1}, 0
    s_mov_b32 s{SRD_P+2}, {NODES*128}
    s_mov_b32 s{SRD_P+3}, 0x20000
    s_mov_b32 s{SRD_REC+2}, {G*REC_STRIDE}
    s_mov_b32 s{SRD_REC+3}, 0x20000
    s_mov_b32 s{SRD_OUT+2}, {NODES*128}
    s_mov_b32 s{SRD_OUT+3}, 0x20000
    s_mov_b32 s{S_RND}, 0
    s_mov_b32 s{S_SAFE}, 0
    s_mov_b32 s{S_FIRST}, 1
    s_movk_i32 s{S_128}, 128
    s_mov_b32 s{S_L2E}, {NEG_LOG2E}
    v_mov_b32 v{DS}, 0
    v_mov_b32 v{DS+1}, 0
    v_mov_b32 v47, {FLAG}
    ds_write_b32 v47, v{DS}
    v_and_b32 v31, 3, v0
    v_lshlrev_b32 v{CH16}, 4, v31
    v_lshrrev_b32 v32, 1, v0
    v_xor_b32 v32, v32, v0
    v_and_b32 v32, 16, v32
    v_and_b32 v33, 1, v0
    v_lshlrev_b32 v33, 4, v33
    v_mov_b32 v41, 0x3f80
    v_lshlrev_b32 v33, v33, v41
    v_bfe_u32 v41, v0, 1, 3
    v_or_b32 v41, v41, v32
    """)
    for d in range(4):
        e(f'v_cmp_eq_u32 s[{S_MASK+2*d}:{S_MASK+2*d+1}], {d}, v31')
    for d in range(4):
        e(f'v_cndmask_b32 v{MK+d}, 0, 1.0, s[{S_MASK+2*d}:{S_MASK+2*d+1}]')
    for d in range(8):
        e(f'v_cmp_eq_u32 s[{S_MASK+2*d}:{S_MASK+2*d+1}], {d}, v41')
    for d in range(8):
        e(f'v_cndmask_b32 v{BS0+d}, 0, v33, s[{S_MASK+2*d}:{S_MASK+2*d+1}]')
    e(f"""
    v_cmp_eq_u32 s[{S_MASK+16}:{S_MASK+17}], 0, v32
    v_lshlrev_b32 v{LQ}, 4, v14
    v_lshrrev_b32 v41, 4, v0
    v_lshlrev_b32 v{LA}, 8, v41
    v_add_u32 v{LA}, {PART}, v{LA}
    s_branch L_round_go
L_round:
    ; later rounds / safe restart: v0 holds t
    s_barrier
    s_lshl_b32 s6, s{S_B}, 2
    v_lshrrev_b32 v2, 2, v0
    v_lshlrev_b32 v3, 10, v2
    v_lshlrev_b32 v1, 4, v0
    buffer_load_dword v46, v3, s[{SRD_TAB}:{SRD_TAB+3}], s6 offen
    s_waitcnt vmcnt(0)
L_round_go:
    v_mov_b32 v28, 0
    v_mov_b32 v29, 0
    v_mov_b32 v30, 0
    v_mov_b32 v31, 0
    v_add_u32 v32, {PART}, v1
    v_and_b32 v33, 0xfc, v0
    ds_write_b128 v32, v[28:31]
    ds_write_b128 v32, v[28:31] offset:16384
    ds_write_b32 v33, v28
    v_mul_u32_u24 v2, {REC_STRIDE}, v2
    v_and_b32 v3, 3, v0
    v_add_u32 v3, s{S_RND}, v3
    v_mov_b32 v34, 0x7ffffff0
    {PFA}
    v_lshrrev_b32 v108, 3, v0
    v_mul_u32_u24 v108, 144, v108
    v_cndmask_b32 v115, v34, v115, vcc
    v_and_b32 v109, 7, v0
    v_lshl_add_u32 v108, v109, 4, v108
    v_add_u32 v108, {XS}, v108
    """)
    frag_addrs(109, 110, 111, 112)
    swz_x(113, 111, 114)
    e(f"""
    s_and_b32 s6, s{S_WV}, 3
    s_lshl_b32 s6, s6, 2
    v_add_u32 v112, s6, v112
    v_lshlrev_b32 v112, 4, v112
    v_xor_b32 v113, v113, v112         ; vQ
    v_lshlrev_b32 v114, 2, v111        ; 4*node
    s_waitcnt vmcnt(3)
    @STAMP tab
    v_and_b32 v36, 0xffff, v46         ; start
    v_lshrrev_b32 v37, 16, v46         ; end
    v_add_u32 v36, v36, v3             ; gi0
    v_lshl_add_u32 v2, v36, 4, v2
    v_sub_u32 v37, v37, v36            ; end - gi0 (signed)
    v_cmp_lt_i32 s[{S_TMP}:{S_TMP+1}], 0, v37
    v_cmp_lt_i32 s[{S_TMP+2}:{S_TMP+3}], 4, v37
    v_cmp_lt_i32 s[{S_TMP+4}:{S_TMP+5}], 8, v37
    v_cmp_lt_i32 s[{S_TMP+6}:{S_TMP+7}], 12, v37
    v_cndmask_b32 v38, v34, v2, s[{S_TMP}:{S_TMP+1}]
    buffer_load_dwordx4 v[16:19], v38, s[{SRD_REC}:{SRD_REC+3}], 0 offen
    v_cndmask_b32 v39, v34, v2, s[{S_TMP+2}:{S_TMP+3}]
    buffer_load_dwordx4 v[20:23], v39, s[{SRD_REC}:{SRD_REC+3}], 0 offen offset:64
    v_cndmask_b32 v40, v34, v2, s[{S_TMP+4}:{S_TMP+5}]
    buffer_load_dwordx4 v[24:27], v40, s[{SRD_REC}:{SRD_REC+3}], 0 offen offset:128
    s_lshr_b32 s6, s2, 3
    s_mul_i32 s6, s6, {391*128}
    s_cmp_eq_u32 s{S_FIRST}, 0
    s_cbranch_scc1 L_notfirst
    s_waitcnt vmcnt(3)
    @STAMP staged
    ds_write_b128 v108, v[4:7]
    ds_write_b128 v108, v[8:11] offset:{WUS-XS}
    v_cndmask_b32 v12, 0, v12, s[{S_MASK+16}:{S_MASK+17}]
    v_cndmask_b32 v13, 0, v13, s[{S_MASK+16}:{S_MASK+17}]
    s_waitcnt lgkmcnt(0)
    s_barrier
    @STAMP bar1
    """)
    for s in range(2):
        for h in range(2):
            e(f'ds_read_b64_tr_b16 v[{64+4*s+2*h}:{65+4*s+2*h}], v109 offset:{W2S-XS+(32*s+4*h)*144}')
    e(f"""
    ds_read_b128 v[72:75], v110
    ds_read_b128 v[76:79], v110 offset:64
    {PF if PFPOS == 1 else ''}
    v_lshlrev_b32 v{BX}, 16, v12
    v_and_b32 v{BX+1}, 0xffff0000, v12
    v_lshlrev_b32 v{BX+2}, 16, v13
    v_and_b32 v{BX+3}, 0xffff0000, v13
    """)
    for d in range(4):
        e(f'v_mul_f32 v{BX+d}, s{S_L2E}, v{BX+d}')
    e(f"""
    s_waitcnt lgkmcnt(1)
    v_mfma_f32_16x16x32_bf16 v[100:103], v[64:67], v[72:75], 0
    s_waitcnt lgkmcnt(0)
    v_mfma_f32_16x16x32_bf16 v[100:103], v[68:71], v[76:79], v[100:103]
    """)
    for d in range(4):
        e(f'v_cvt_pk_bf16_f32 v{BX+d}, 0, v{BX+d}')
    e(f"""
    s_mov_b32 s{S_FIRST}, 0
    s_nop 2
    v_mul_f32 v100, s{S_L2E}, v100
    v_mul_f32 v101, s{S_L2E}, v101
    v_mul_f32 v102, s{S_L2E}, v102
    v_mul_f32 v103, s{S_L2E}, v103
    ds_write_b128 v113, v[100:103] offset:{QS}
    s_branch L_haveq
L_notfirst:
    ds_read_b128 v[100:103], v113 offset:{QS}
    s_waitcnt lgkmcnt(0)
    s_barrier
    {PF if PFPOS == 1 else ''}
L_haveq:
    v_mov_b32 v3, 1
    v_mov_b32 v2, 240
    s_mov_b64 exec, s[{S_TMP+6}:{S_TMP+7}]
    ds_write_b32 v2, v3
    s_mov_b64 exec, -1
    """)
    for i in range(4):
        e(f'v_exp_f32 v{104+i}, v{100+i}')
    e(f"""
    v_and_b32 v46, 63, v0
    v_lshlrev_b32 v47, 2, v46
    v_lshrrev_b32 v56, 4, v0           ; n
    v_lshlrev_b32 v57, 2, v56          ; 4n
    v_and_b32 v58, 15, v0              ; j
    """)
    for i in range(4):
        e(f'v_add_f32 v{104+i}, 1.0, v{104+i}')
    for i in range(4):
        e(f'v_rcp_f32 v{104+i}, v{104+i}')
    swz_x(59, 56, 60)
    for i in range(4):
        e(f'v_mul_f32 v{104+i}, v{100+i}, v{104+i}')
    e(f"""
    v_bfe_u32 v60, v0, 2, 1
    v_bfe_u32 v61, v0, 5, 1
    v_lshl_add_u32 v60, v60, 1, v61    ; qg
    v_lshlrev_b32 v60, 5, v60
    v_bfe_u32 v62, v0, 3, 2            ; gD
    v_lshlrev_b32 v62, 2, v62
    v_bfe_u32 v61, v0, 4, 2            ; qd
    v_lshlrev_b32 v61, 2, v61
    @STAMP qdone
    """)
    for k in range(3):
        if k == 2:
            e(f's_cmp_eq_u64 s[{S_TMP+4}:{S_TMP+5}], 0')
            e('s_cbranch_scc1 L_skipA')
        e(f's_waitcnt vmcnt({(3 if PFPOS == 1 else 2)-k})')
        if k == 0: e('@STAMP rec0')
        m = 19 + 4*k
        for i in range(3):
            e(f'v_bfe_u32 v{28+3*k+i}, v{m}, {8*i}, 8')
        for i in range(3):
            e(f'v_cmp_ne_u32 s[{S_MASK+6*k+2*i}:{S_MASK+6*k+2*i+1}], 0, v{28+3*k+i}')
        for i in range(3):
            e(f's_mov_b64 exec, s[{S_MASK+6*k+2*i}:{S_MASK+6*k+2*i+1}]')
            e(f'ds_add_rtn_u32 v{37+3*k+i}, v{28+3*k+i}, v3')
        e('s_mov_b64 exec, -1')
    e(f"""
L_skipA:
    {PF if PFPOS == 2 else ''}
    s_waitcnt lgkmcnt(0)
    @STAMP atomics
    s_barrier
    @STAMP bar2
    ; ---- phase B
    ds_read_b32 v48, v47
    ds_read_b32 v53, v114 offset:4
    ds_read_b32 v52, v57 offset:4
    s_waitcnt lgkmcnt(2)
    v_add_u32 v49, 7, v48
    v_lshrrev_b32 v49, 3, v49
    v_readlane_b32 s{S_MORE}, v48, 60
    s_nop 0
    v_add_u32_dpp v50, v49, v49 row_shr:1 row_mask:0xf bank_mask:0xf bound_ctrl:0
    """)
    for d in ('row_shr:2', 'row_shr:4', 'row_shr:8'):
        e('s_nop 1')
        e(f'v_add_u32_dpp v50, v50, v50 {d} row_mask:0xf bank_mask:0xf bound_ctrl:0')
    e(f"""
    s_nop 1
    v_add_u32_dpp v50, v50, v50 row_bcast:15 row_mask:0xa bank_mask:0xf
    s_nop 1
    v_add_u32_dpp v50, v50, v50 row_bcast:31 row_mask:0xc bank_mask:0xf
    v_sub_u32 v49, v50, v49            ; uoff
    v_readlane_b32 s{S_TOT}, v50, 50
    v_lshlrev_b32 v51, 5, v49
    ds_write_b32 v47, v51 offset:{BASE}
    """)
    for sl in range(6):
        e(f'ds_read_b32 v{64+sl}, v{28+sl} offset:{BASE}')
    e(f"""
    ds_read_b32 v54, v57 offset:{BASE+4}
    s_waitcnt lgkmcnt(8)
    v_sub_u32 v53, 0, v53
    v_and_b32 v53, 7, v53
    v_cvt_f32_u32 v53, v53
    s_add_u32 s6, s{S_TOT}, 3
    s_lshr_b32 s6, s6, 2               ; nT
    s_mul_i32 s{S_QN}, s6, {(65536+NW-1)//NW}
    s_lshr_b32 s{S_QN}, s{S_QN}, 16
    s_mul_i32 s7, s{S_QN}, {NW}
    s_sub_u32 s{S_RN}, s6, s7
    v_mul_f32 v104, v53, -v104
    v_mul_f32 v105, v53, -v105
    v_mul_f32 v106, v53, -v106
    v_mul_f32 v107, v53, -v107
    s_cmp_lt_u32 s{S_WV}, s{S_RN}
    s_cselect_b32 s6, 1, 0
    s_add_u32 s{S_NT}, s{S_QN}, s6
    s_cmp_lt_u32 s{S_WV}, {NW}
    s_cselect_b32 s{S_NT}, s{S_NT}, 0
    s_min_u32 s6, s{S_WV}, s{S_RN}
    s_mul_i32 s7, s{S_WV}, s{S_QN}
    s_add_u32 s6, s6, s7
    s_lshl_b32 s7, s6, 4               ; ustart*4
    s_lshl_b32 s6, s6, 7               ; ustart*32
    s_cmp_eq_u32 s{S_RND}, 0
    s_cbranch_scc1 L_agg0
    ds_read_b128 v[100:103], v113 offset:{AGG}
    s_waitcnt lgkmcnt(0)
    v_pk_add_f32 v[104:105], v[104:105], v[100:101]
    v_pk_add_f32 v[106:107], v[106:107], v[102:103]
L_agg0:
    s_waitcnt lgkmcnt(0)
    """)
    recreg = [16, 17, 18, 20, 21, 22, 24, 25, 26]
    for sl in range(6):
        e(f's_mov_b64 exec, s[{S_MASK+2*sl}:{S_MASK+2*sl+1}]')
        e(f'v_lshl_add_u32 v{64+sl}, v{37+sl}, 2, v{64+sl}')
        e(f'ds_write_b32 v{64+sl}, v{recreg[sl]} offset:{RECS}')
    e(f"""
    s_mov_b64 exec, -1
    s_cmp_eq_u64 s[{S_TMP+4}:{S_TMP+5}], 0
    s_cbranch_scc1 L_skipB
    """)
    for sl in range(6, 9):
        e(f'ds_read_b32 v{64+sl}, v{28+sl} offset:{BASE}')
    e('s_waitcnt lgkmcnt(0)')
    for sl in range(6, 9):
        e(f's_mov_b64 exec, s[{S_MASK+2*sl}:{S_MASK+2*sl+1}]')
        e(f'v_lshl_add_u32 v{64+sl}, v{37+sl}, 2, v{64+sl}')
        e(f'ds_write_b32 v{64+sl}, v{recreg[sl]} offset:{RECS}')
    e(f"""
    s_mov_b64 exec, -1
L_skipB:
    ds_write_b128 v113, v[104:107] offset:{AGG}
    v_mad_u32_u24 v{AR}, v60, s{S_NT}, v62
    v_mul_u32_u24 v{AN}, s{S_NT}, v61
    v_add_u32 v{AR}, s6, v{AR}
    v_add_u32 v{AN}, s7, v{AN}
    v_mov_b32 v55, {PADREC}
    s_cmp_ge_u32 s{S_WV}, 13
    s_cbranch_scc1 L_special
    v_cmp_gt_u32 vcc, {NB}, v56
    v_sub_u32 v15, 0, v52
    v_and_b32 v15, 7, v15              ; npad
    s_and_b64 exec, exec, vcc
    v_add_u32 v57, v52, v58
    v_lshl_add_u32 v57, v57, 2, v54
    v_cmp_gt_u32 vcc, v15, v58
    v_add_u32 v52, 7, v52
    v_lshrrev_b32 v52, 3, v52          ; units
    v_lshrrev_b32 v54, 3, v54
    v_lshl_add_u32 v54, v58, 2, v54    ; 4*(uoff + j)
    s_and_saveexec_b64 s[{S_TMP}:{S_TMP+1}], vcc
    ds_write_b32 v57, v55 offset:{RECS}
    s_mov_b64 exec, s[{S_TMP}:{S_TMP+1}]
L_ntab:
    v_cmp_gt_u32 vcc, v52, v58
    s_and_b64 exec, exec, vcc
    s_cbranch_execz L_tables_done
    ds_write_b32 v54, v59 offset:{NTAB}
    v_add_u32 v58, 16, v58
    v_add_u32 v54, 64, v54
    s_branch L_ntab
L_special:
    s_cmp_eq_u32 s{S_WV}, 14
    s_cbranch_scc0 L_special2
    s_add_u32 s6, s{S_QN}, 1
    s_lshl_b32 s{S_TMP}, s{S_RN}, 2    ; 4 rn
    s_mul_i32 s7, s{S_TMP}, s6         ; thr
    v_cvt_f32_u32 v52, s6
    v_cvt_f32_u32 v53, s{S_QN}
    v_rcp_f32 v52, v52
    v_rcp_f32 v53, v53
    v_subrev_u32 v54, s7, v49
    v_cvt_f32_u32 v55, v49
    v_cvt_f32_u32 v54, v54
    v_add_f32 v55, 0.5, v55
    v_add_f32 v54, 0.5, v54
    v_mul_f32 v55, v55, v52
    v_mul_f32 v54, v54, v53
    v_cvt_u32_f32 v55, v55
    v_cvt_u32_f32 v54, v54
    v_cmp_gt_u32 vcc, s7, v49
    v_min_u32 v54, 64, v54
    v_add_u32 v54, s{S_TMP}, v54
    v_cndmask_b32 v54, v54, v55, vcc
    v_min_u32 v54, 64, v54
    v_add_u32 v54, v54, v46            ; slot+1
    v_lshlrev_b32 v54, 8, v54
    v_add_u32 v54, {PART-256}, v54
    ds_write_b32 v47, v54 offset:{ST}
    s_branch L_tables_done
L_special2:
    s_cmp_eq_u32 s{S_WV}, 15
    s_cbranch_scc0 L_tables_done
    s_lshl_b32 s6, s{S_TOT}, 5
    s_lshl_b32 s7, s{S_TOT}, 2
    v_add_u32 v57, s6, v47
    v_add_u32 v54, s7, v47
    v_mov_b32 v59, {NB*256 + 16}
    s_mov_b64 exec, 0xffffff
    ds_write_b32 v57, v55 offset:{RECS}
    s_mov_b64 exec, 7
    ds_write_b32 v54, v59 offset:{NTAB}
L_tables_done:
    s_mov_b64 exec, -1
    s_waitcnt lgkmcnt(0)
    @STAMP phaseB
    s_barrier
    @STAMP bar3
    s_cmp_eq_u32 s{S_NT}, 0
    s_cbranch_scc1 L_skip_loop
    s_setprio {3 if PRIO else 0}
    ds_read_b32 v{RA}, v{AR} offset:{RECS}
    ds_read_b32 v{RB}, v{AR} offset:{RECS+16}
    ds_read_b32 v{X}, v{AN} offset:{NTAB}
    ds_read_b32 v{N}, v{AR} offset:{RECS+32}
    s_waitcnt lgkmcnt(3)
    """)
    gather(G0, RA)
    e('s_waitcnt lgkmcnt(2)')
    gather(G1, RB)
    e('s_waitcnt lgkmcnt(1)')
    load_c()
    e(f'v_add_u32 v{Z}, {PART+120*256}, v{LQ}')
    e(f'ds_read_b32 v{X}, v{AN} offset:{NTAB+4}')
    build_ax(RA)
    e('s_waitcnt vmcnt(2) lgkmcnt(1)')
    e(f'v_mov_b32 v{RA}, v{N}')
    mf(T0, G0, BS0, C)
    mf(T0, G0+4, BS1, T0)
    mf(T0, AX, BX, T0)
    gather(G0, RA)
    build_ax(RB)
    e(f"""
    ds_read_b32 v{RB}, v{AR} offset:{RECS+48}
    s_nop 3
    s_waitcnt vmcnt(2) lgkmcnt(0)
    @STAMP pipeprologue
    s_cmp_lg_u32 s{S_SAFE}, 0
    s_cbranch_scc1 L_safe_loop
    """)
    main_loop(False)
    e(f"""
L_loop_done:
    @STAMP loopdone
    s_setprio 0
    v_add_f32 v{TMP}, v{DS}, v{DS+1}
    s_movk_i32 s6, 0x207
    v_mbcnt_lo_u32_b32 v{N}, -1, 0
    v_cmp_class_f32 vcc, v{TMP}, s6
    v_mbcnt_hi_u32_b32 v{N}, -1, v{N}
    s_lshl_b32 s7, s{S_WV}, 6
    v_mov_b32 v{TMP+1}, {FLAG}
    v_mov_b32 v{TMP+2}, 1
    v_add_u32 v0, s7, v{N}
    s_and_b64 exec, exec, vcc
    ds_write_b32 v{TMP+1}, v{TMP+2}
    s_mov_b64 exec, -1
    """)
    frag_addrs(28, 29, 30, 31)
    for s in range(4):
        for h in range(2):
            e(f'ds_read_b64_tr_b16 v[{32+4*s+2*h}:{33+4*s+2*h}], v28 offset:{WUS-XS+(32*s+4*h)*144}')
    e(f"""
    ds_read_b128 v[48:51], v29
    ds_read_b128 v[52:55], v29 offset:64
    v_lshrrev_b32 v12, 4, v0           ; n
    v_lshlrev_b32 v13, 2, v12
    v_and_b32 v14, 15, v0              ; j
    v_lshlrev_b32 v1, 4, v0
    ds_read2_b32 v[10:11], v13 offset0:{(ST+4)//4} offset1:{(ST+8)//4}
    ds_read_b128 v[4:7], v1 offset:{AGG}
    v_bfe_i32 v2, v12, 2, 1
    v_and_b32 v3, 3, v12
    v_xor_b32 v3, v3, v2
    v_xor_b32 v3, v3, v14
    v_and_b32 v3, 15, v3               ; m = j ^ swz(n)
    v_mul_u32_u24 v15, 144, v12
    v_lshl_add_u32 v15, v3, 3, v15
    v_add_u32 v15, {W2S}, v15
    v_lshlrev_b32 v60, 7, v30
    v_lshl_add_u32 v60, v31, 3, v60
    s_waitcnt lgkmcnt(0)
    v_mfma_f32_16x16x32_bf16 v[56:59], v[32:35], v[48:51], 0
    v_mfma_f32_16x16x32_bf16 v[56:59], v[36:39], v[52:55], v[56:59]
    v_sub_u32 v11, v11, v10            ; 256*count
    v_lshl_add_u32 v10, v14, 4, v10
    s_movk_i32 s6, 256
    s_movk_i32 s7, 512
    v_cmp_gt_u32 vcc, {NB}, v12
    v_cmp_lt_u32 s[{S_TMP+2}:{S_TMP+3}], s6, v11
    v_cmp_lt_u32 s[{S_TMP+4}:{S_TMP+5}], s7, v11
    s_barrier
    @STAMP bar4
    ; ---- fold
    s_and_b64 exec, exec, vcc
    s_cbranch_execz L_fold_done
    s_mov_b64 s[{S_TMP}:{S_TMP+1}], exec
    ds_read_b128 v[16:19], v10
    ds_read_b128 v[20:23], v10 offset:256
    ds_read_b128 v[24:27], v10 offset:512
    s_waitcnt lgkmcnt(2)
    v_pk_add_f32 v[4:5], v[4:5], v[16:17]
    v_pk_add_f32 v[6:7], v[6:7], v[18:19]
    s_and_b64 exec, exec, s[{S_TMP+2}:{S_TMP+3}]
    s_waitcnt lgkmcnt(1)
    v_pk_add_f32 v[4:5], v[4:5], v[20:21]
    v_pk_add_f32 v[6:7], v[6:7], v[22:23]
    s_and_b64 exec, exec, s[{S_TMP+4}:{S_TMP+5}]
    s_waitcnt lgkmcnt(0)
    v_pk_add_f32 v[4:5], v[4:5], v[24:25]
    v_pk_add_f32 v[6:7], v[6:7], v[26:27]
L_fold:
    s_add_u32 s7, s7, 256
    v_cmp_lt_u32 vcc, s7, v11
    s_and_b64 exec, exec, vcc
    s_cbranch_execz L_fold2
    ds_read_b128 v[16:19], v10 offset:768
    v_add_u32 v10, 256, v10
    s_waitcnt lgkmcnt(0)
    v_pk_add_f32 v[4:5], v[4:5], v[16:17]
    v_pk_add_f32 v[6:7], v[6:7], v[18:19]
    s_branch L_fold
L_fold2:
    s_mov_b64 exec, s[{S_TMP}:{S_TMP+1}]
    s_cmp_eq_u32 s{S_MORE}, 0
    s_cbranch_scc1 L_fold4
    ds_write_b128 v1, v[4:7] offset:{AGG}
    s_branch L_fold_done
L_fold4:
    s_mov_b32 s6, {NEG_LN2}
    v_mul_f32 v4, s6, v4
    v_mul_f32 v5, s6, v5
    v_mul_f32 v6, s6, v6
    v_mul_f32 v7, s6, v7
    v_cvt_pk_bf16_f32 v4, v4, v5
    v_cvt_pk_bf16_f32 v5, v6, v7
    ds_write_b64 v15, v[4:5]
L_fold_done:
    s_mov_b64 exec, -1
    s_waitcnt lgkmcnt(0)
    s_cmp_eq_u32 s{S_MORE}, 0
    s_cbranch_scc1 L_final
    s_add_u32 s{S_RND}, s{S_RND}, 12
    s_branch L_round
L_final:
    s_barrier
    @STAMP bar5
    ds_read_b128 v[48:51], v29 offset:{W2S-XS}
    ds_read_b128 v[52:55], v29 offset:{W2S-XS+64}
    s_and_b32 s6, s{S_WV}, 3
    s_lshl_b32 s6, s6, 5
    s_add_u32 s6, s6, s{S_X0}
    v_cmp_gt_u32 vcc, {NB}, v30
    s_waitcnt lgkmcnt(1)
    v_mfma_f32_16x16x32_bf16 v[56:59], v[40:43], v[48:51], v[56:59]
    s_waitcnt lgkmcnt(0)
    v_mfma_f32_16x16x32_bf16 v[56:59], v[44:47], v[52:55], v[56:59]
    s_movk_i32 s7, 0x207
    s_nop 5
    s_and_b64 exec, exec, vcc
    """)
    for i in range(4):
        e(f'v_mul_f32 v{4+i}, s{S_L2E}, v{56+i}')
    for i in range(4):
        e(f'v_exp_f32 v{4+i}, v{4+i}')
    e('v_cmp_class_f32 vcc, v56, s7')
    for i in range(4):
        e(f'v_add_f32 v{4+i}, 1.0, v{4+i}')
    for i in range(4):
        e(f'v_rcp_f32 v{4+i}, v{4+i}')
    for i in range(4):
        e(f'v_mul_f32 v{4+i}, v{56+i}, v{4+i}')
    e(f"""
    v_cvt_pk_bf16_f32 v4, v4, v5
    v_cvt_pk_bf16_f32 v5, v6, v7
    buffer_store_dwordx2 v[4:5], v60, s[{SRD_OUT}:{SRD_OUT+3}], s6 offen
    s_cmp_lg_u32 s{S_SAFE}, 0
    s_cbranch_scc1 L_k2_end
    s_and_b64 exec, exec, vcc
    ds_write_b32 v{TMP+1}, v{TMP+2}
    s_mov_b64 exec, -1
    s_waitcnt lgkmcnt(0)
    s_barrier
    ds_read_b32 v2, v{TMP+1}
    s_waitcnt lgkmcnt(0)
    v_readfirstlane_b32 s6, v2
    s_cmp_eq_u32 s6, {'s6' if 'nosafe' in X_ else 0}
    s_cbranch_scc1 L_k2_end
    s_mov_b32 s{S_SAFE}, 1
    s_mov_b32 s{S_RND}, 0
    v_mov_b32 v{DS}, 0
    v_mov_b32 v{DS+1}, 0
    s_waitcnt vmcnt(0)
    s_branch L_round
L_k2_end:
    @FLUSH 1
    s_endpgm
    """)
    main_loop(True)
    e('L_skip_loop:')
    e('s_waitcnt vmcnt(0)')
    e('s_branch L_loop_done')

HEADER = f'''; MPNN edge-MLP layer: two launches.
;  part_kernel: buckets edges by destination range (LDS counting sort) and precomputes P = -log2e * x @ W1 (bf16)
;  main kernel: per bucket of {NB} nodes: sort by node, gather P rows, MFMA unpack(+a*w3+Q), silu sum, update GEMM
; @launch kernel=part_kernel grid=({G+K1_PWG},1,1) block=({K1_BLOCK},1,1) lds={K1_LDS}
; @launch kernel=gather_scatter__mpnn_edge_mlp__graph_kernel grid=(256,1,1) block=(1024,1,1) lds={K2_LDS}
.amdgcn_target "amdgcn-amd-amdhsa--gfx950"
.text'''

def main():
    k1()
    k2()
    e('.section .rodata,"a"')
    e('.p2align 6')
    kd('part_kernel', 72, 40)
    e('.p2align 6')
    kd('gather_scatter__mpnn_edge_mlp__graph_kernel', 128, 80)
    path = sys.argv[1] if len(sys.argv) > 1 else 'gather_scatter__mpnn_edge_mlp__graph.s'
    open(path, 'w').write(HEADER + '\n' + '\n'.join(out) + '\n')

main()
```

```python
import sys, struct

NODES = 12500
EDGES = 800000
NB = 49
G = 250
CH = 3200
K1_BLOCK = 896
WS_P = 0
WS_Q = 0x200000
WS_TAB = 0x520000
WS_WUF = 0x560000
WS_REC = 0x600000
REC_STRIDE = 20480
INC = 10923

def f32(x):
    return '0x%08x' % struct.unpack('<I', struct.pack('<f', x))[0]
NEG_LOG2E = f32(-1.4426950408889634)
NEG_LN2 = f32(-0.6931471805599453)

out = []
def e(s=''):
    for line in s.split('\n'):
        line = line.strip()
        if not line:
            continue
        if line.startswith('@STAMP'):
            stamp(line[6:].strip()); continue
        if line.startswith('@INIT'):
            stamp_init(); continue
        if line.startswith('@FLUSH'):
            stamp('end'); stamp_rt(1); stamp_flush(int(line[6:])); continue
        if line.endswith(':') or line.startswith('.') or line.startswith(';'):
            out.append(line)
        else:
            out.append('    ' + line)

import os
STAMP = int(os.environ.get('STAMP', '0'))
nstamp = [0]
def stamp(name=''):
    if not STAMP: return
    if STAMP == 2 and name not in ('entry', 'end'): return
    if STAMP == 4:
        if name not in ('entry', 'end', 'bar3', 'bar4', 'bar3rt', 'bar4rt', 'loopdone', 'pipeprologue'): return
        if name in ('bar3', 'bar4'): stamp(name + 'rt')
    i = nstamp[0]; nstamp[0] += 1
    e(f'''s_waitcnt lgkmcnt(0)
    {'s_memrealtime' if (STAMP == 3 or name.endswith('rt')) else 's_memtime'} s[98:99]
    s_waitcnt lgkmcnt(0)
    s_mov_b32 s{76+i}, s98''')
def stamp_rt(idx):
    if not STAMP: return
    e(f'''s_waitcnt lgkmcnt(0)
    s_memrealtime s[98:99]
    s_waitcnt lgkmcnt(0)
    s_mov_b32 s{74+idx}, s98''')
def stamp_flush(kidx):
    if not STAMP: return
    e(f'''s_mov_b64 exec, -1
    s_load_dwordx2 s[96:97], s[0:1], 64
    s_waitcnt lgkmcnt(0)
    s_add_u32 s96, s96, {(16+4*kidx)<<20}
    s_addc_u32 s97, s97, 0
    s_mov_b32 s98, 0x400000
    s_mov_b32 s99, 0x20000
    s_lshl_b32 s100, s2, 4
    s_add_u32 s100, s100, s95
    s_lshl_b32 s100, s100, 7
    v_mov_b32 v2, 0
    s_getreg_b32 s94, hwreg(HW_REG_HW_ID)
    s_getreg_b32 s93, hwreg(HW_REG_XCC_ID)''')
    for i in range(4 if STAMP == 2 else 21):
        e(f'v_mov_b32 v3, s{74+i}')
        e(f'buffer_store_dword v3, v2, s[96:99], s100 offen offset:{4*i}')
def stamp_init():
    if not STAMP: return
    nstamp[0] = 0
    for i in range(74, 95): e(f's_mov_b32 s{i}, 0')
    e('v_readfirstlane_b32 s95, v0')
    e('s_lshr_b32 s95, s95, 6')
    stamp_rt(0)
    stamp('entry')

def vr(a, n=1):
    return f'v{a}' if n == 1 else f'v[{a}:{a+n-1}]'
def sr(a, n=1):
    return f's{a}' if n == 1 else f's[{a}:{a+n-1}]'

def scan(v):
    for d in ('row_shr:1', 'row_shr:2', 'row_shr:4', 'row_shr:8'):
        e('s_nop 1')
        e(f'v_add_u32_dpp v{v}, v{v}, v{v} {d} row_mask:0xf bank_mask:0xf bound_ctrl:0')
    e('s_nop 1')
    e(f'v_add_u32_dpp v{v}, v{v}, v{v} row_bcast:15 row_mask:0xa bank_mask:0xf')
    e('s_nop 1')
    e(f'v_add_u32_dpp v{v}, v{v}, v{v} row_bcast:31 row_mask:0xc bank_mask:0xf')

def kd(name, vgpr, sgpr):
    if STAMP: sgpr = 102
    e(f'''.amdhsa_kernel {name}
.amdhsa_next_free_vgpr {vgpr}
.amdhsa_next_free_sgpr {sgpr}
.amdhsa_accum_offset {(vgpr+3)//4*4}
.amdhsa_group_segment_fixed_size 0
.amdhsa_kernarg_size 72
.amdhsa_user_sgpr_count 2
.amdhsa_user_sgpr_kernarg_segment_ptr 1
.amdhsa_system_sgpr_workgroup_id_x 1
.amdhsa_float_denorm_mode_32 {0 if 'nodenorm' in os.environ.get('X','') else 3}
.end_amdhsa_kernel''')

K1_GT = 1024
K1_CELL = 2560
K1_W = K1_CELL + 256*144
K1_X = K1_W + 128*192
K1_LDS = K1_X + 64*144
SDW = 'dst_sel:DWORD dst_unused:UNUSED_PAD'

def tr_addr(dst, cshift, t1, t2):
    e(f"""
    v_bfe_u32 v{t1}, v0, 4, 2
    v_bfe_u32 v{dst}, v0, 2, 2
    v_lshl_add_u32 v{dst}, v{t1}, 3, v{dst}
    v_lshlrev_b32 v{dst}, 7, v{dst}
    v_and_b32 v{t2}, 3, v0
    v_lshl_add_u32 v{dst}, v{t2}, {cshift}, v{dst}
    """)

STF = os.environ.get('STF', '')
LDF = os.environ.get('LDF', '')
def k1():
    e(""".globl part_kernel
.p2align 8
.type part_kernel,@function
part_kernel:""")
    NE = 5
    e(f"""
    @INIT
    v_readfirstlane_b32 s7, v0
    s_sub_u32 s33, s2, 1
    s_cmp_ge_u32 s33, {G}
    s_cbranch_scc1 L_k1_special
    s_cmp_lt_u32 s7, 256
    s_cbranch_scc1 L_k1_p
    s_load_dwordx2 s[8:9], s[0:1], 24
    s_load_dwordx2 s[12:13], s[0:1], 16
    s_load_dwordx2 s[16:17], s[0:1], 8
    s_load_dwordx2 s[20:21], s[0:1], 64
    s_mov_b32 s10, {EDGES*4}
    s_mov_b32 s11, 0x20000
    s_mov_b32 s14, {EDGES*4}
    s_mov_b32 s15, 0x20000
    s_mov_b32 s18, {EDGES*2}
    s_mov_b32 s19, 0x20000
    s_mul_i32 s3, s33, {CH*4}
    s_add_u32 s4, s3, {2560*4}
    s_mul_i32 s5, s33, {CH*2}
    s_add_u32 s6, s5, {2560*2}
    v_subrev_u32 v0, 256, v0
    v_lshlrev_b32 v1, 4, v0
    v_lshlrev_b32 v25, 2, v0
    v_lshlrev_b32 v2, 3, v0
    v_lshlrev_b32 v3, 1, v0
    s_waitcnt lgkmcnt(0)
    @STAMP kernarg
    buffer_load_dwordx4 v[4:7], v1, s[8:11], s3 offen {LDF}
    buffer_load_dword v8, v25, s[8:11], s4 offen {LDF}
    buffer_load_dwordx4 v[12:15], v1, s[12:15], s3 offen {LDF}
    buffer_load_dwordx2 v[20:21], v2, s[16:19], s5 offen {LDF}
    buffer_load_dword v16, v25, s[12:15], s4 offen {LDF}
    buffer_load_ushort v22, v3, s[16:19], s6 offen {LDF}
    v_mov_b32 v24, 0
    ds_write_b32 v25, v24
    s_lshl_b32 s6, s33, 10
    s_add_u32 s6, s6, {WS_TAB}
    s_add_u32 s24, s20, s6
    s_addc_u32 s25, s21, 0
    s_mov_b32 s26, 1024
    s_mov_b32 s27, 0x20000
    s_mul_i32 s6, s33, {REC_STRIDE}
    s_add_u32 s6, s6, {WS_REC}
    s_add_u32 s20, s20, s6
    s_addc_u32 s21, s21, 0
    s_mov_b32 s22, {REC_STRIDE}
    s_mov_b32 s23, 0x20000
    s_mov_b32 s28, {-NB*4 & 0xffffffff}
    s_mov_b32 s29, 0xffff0000
    s_mov_b32 s32, {32<<13}
    v_mov_b32 v3, {INC}
    v_lshrrev_b32 v26, 3, v0           ; cell
    v_and_b32 v27, 0x70, v1            ; 16*k
    v_mul_u32_u24 v62, 144, v26
    v_add_u32 v62, v62, v27
    v_lshlrev_b32 v26, 2, v26
    v_and_b32 v60, 0x3f0, v1           ; 16*lane
    s_waitcnt lgkmcnt(0)
    s_barrier
    @STAMP bar1
    s_waitcnt vmcnt(4)
    @STAMP dst
    """)
    R = range(NE)
    for i in R: e(f'v_mul_u32_u24 v{28+i}, 42800, v{4+i}')
    for i in R: e(f'v_lshrrev_b32 v{44+i}, 21, v{28+i}')
    for i in R:
        e(f'v_lshlrev_b32 v{28+i}, 2, v{44+i}')
        e(f'ds_add_rtn_u32 v{36+i}, v{28+i}, v3')
    for i in R: e(f'v_lshl_add_u32 v{4+i}, v{4+i}, 2, 4')
    for i in R: e(f'v_mad_i32_i24 v{4+i}, v{44+i}, s28, v{4+i}')
    e('s_waitcnt vmcnt(0)')
    e('@STAMP allloaded')
    for i in R:
        a = 20 + i//2
        if i % 2 == 0:
            e(f'v_lshl_or_b32 v{12+i}, v{a}, 16, v{12+i}')
        else:
            e(f'v_and_or_b32 v{12+i}, v{a}, s29, v{12+i}')
    for i in R:
        e(f's_waitcnt lgkmcnt({NE-1-i+2*i})')
        e(f'v_min_u32 v{44+i}, s32, v{36+i}')
        e(f'v_bfe_u32 v{52+i}, v{44+i}, 13, 2')
        e(f'v_lshrrev_b32 v{44+i}, 13, v{44+i}')
        e(f'v_mad_u32_u24 v{44+i}, v{28+i}, 9, v{44+i}')
        e(f'v_lshlrev_b32 v{44+i}, 2, v{44+i}')
        e(f'ds_write_b32 v{44+i}, v{12+i} offset:{K1_CELL}')
        e(f'v_mad_i32_i24 v{52+i}, v{52+i}, -3, v{44+i}')
        e(f'ds_write_b8 v{52+i}, v{4+i} offset:{K1_CELL+12}')
    e(f"""
    v_max3_u32 v2, v36, v37, v38
    v_max3_u32 v2, v2, v39, v40
    v_cmp_le_u32 s[34:35], s32, v2
    s_waitcnt lgkmcnt(0)
    @STAMP placed
    s_barrier
    @STAMP bar2
    ds_read_b128 v[52:55], v60
    """)
    NP = 4
    for p in range(NP):
        e(f'ds_read_b128 v[{64+4*p}:{67+4*p}], v62 offset:{K1_CELL + p*80*144}')
    e(f's_waitcnt lgkmcnt({NP})')
    for i in range(4): e(f'v_add_u32 v{44+i}, {2*INC}, v{52+i}')
    for i in range(4): e(f'v_lshrrev_b32 v{44+i}, 15, v{44+i}')
    e("""
    v_add_u32 v48, v44, v45
    v_add_u32 v49, v48, v46
    v_add_u32 v50, v49, v47
    s_nop 1
    v_add_u32_dpp v61, v50, v50 row_shr:1 row_mask:0xf bank_mask:0xf bound_ctrl:0
    """)
    for d in ('row_shr:2', 'row_shr:4', 'row_shr:8'):
        e('s_nop 1')
        e(f'v_add_u32_dpp v61, v61, v61 {d} row_mask:0xf bank_mask:0xf bound_ctrl:0')
    e(f"""
    s_nop 1
    v_add_u32_dpp v61, v61, v61 row_bcast:15 row_mask:0xa bank_mask:0xf
    s_nop 1
    v_add_u32_dpp v61, v61, v61 row_bcast:31 row_mask:0xc bank_mask:0xf
    v_sub_u32 v56, v61, v50
    v_add_u32 v57, v56, v44
    v_add_u32 v58, v56, v48
    v_add_u32 v59, v56, v49
    """)
    for i in range(4): e(f'v_lshl_or_b32 v{44+i}, v{44+i}, 16, v{56+i}')
    for i in range(4): e(f'v_lshlrev_b32 v{44+i}, 4, v{44+i}')
    e(f'ds_write_b128 v60, v[44:47] offset:{K1_GT}')
    for p in range(NP):
        e(f'ds_read_b32 v{84+p}, v26 offset:{K1_GT + p*320}')
    e(f"""
    s_cmp_lg_u32 s7, 832
    s_cbranch_scc1 L_k1_notab
    """)
    for i in range(4): e(f'v_lshl_add_u32 v{52+i}, v{52+i}, 1, v{52+i}')
    for i in range(4): e(f'v_lshrrev_b32 v{52+i}, 15, v{52+i}')
    for i in range(4): e(f'v_lshl_or_b32 v{52+i}, v{52+i}, 16, v{56+i}')
    e(f"""
    buffer_store_dwordx4 v[52:55], v60, s[24:27], 0 offen {STF}
L_k1_notab:
    @STAMP scan
    """)
    for p in range(NP):
        if p == NP-1:
            e('s_cmp_ge_u32 s7, 384')
            e('s_cbranch_scc1 L_k1_copied')
        e(f's_waitcnt lgkmcnt({NP-1-p})')
        e(f'v_cmp_lt_u32_sdwa vcc, v27, v{84+p} src0_sel:DWORD src1_sel:WORD_1')
        e(f'v_add_u32_sdwa v{84+p}, v27, v{84+p} {SDW} src0_sel:DWORD src1_sel:WORD_0')
        e('s_and_b64 exec, exec, vcc')
        e(f's_cbranch_execz L_k1_c{p}')
        e(f'buffer_store_dwordx4 v[{64+4*p}:{67+4*p}], v{84+p}, s[20:23], 0 offen {STF}')
        e(f'L_k1_c{p}:')
        e('s_mov_b64 exec, -1')
    e(f"""
L_k1_copied:
    s_cmp_eq_u64 s[34:35], 0
    s_cbranch_scc1 L_k1_end
    """)
    for i in R:
        e(f"""
        s_mov_b64 exec, -1
        v_cmp_le_u32 vcc, s32, v{36+i}
        s_and_b64 exec, exec, vcc
        s_cbranch_execz L_k1_o{i}
        ds_read_u16 v44, v{28+i} offset:{K1_GT}
        v_lshrrev_b32 v45, 13, v{36+i}
        v_and_b32 v46, 3, v45
        s_waitcnt lgkmcnt(0)
        v_lshl_add_u32 v45, v45, 2, v44
        v_mad_i32_i24 v46, v46, -3, v45
        buffer_store_dword v{12+i}, v45, s[20:23], 0 offen
        buffer_store_byte v{4+i}, v46, s[20:23], 0 offen offset:12
L_k1_o{i}:""")
    e(f"""
L_k1_end:
    @STAMP issued
    @FLUSH 0
    s_endpgm
    """)
    e(f"""
L_k1_p:
    s_load_dwordx2 s[8:9], s[0:1], 0
    s_load_dwordx2 s[12:13], s[0:1], 32
    s_load_dwordx2 s[16:17], s[0:1], 64
    s_mul_i32 s3, s33, {50*128}
    s_add_u32 s10, s3, {50*128}
    s_mov_b32 s11, 0x20000
    s_mov_b32 s14, 16384
    s_mov_b32 s15, 0x20000
    s_mov_b32 s19, 0x20000
    s_movk_i32 s4, 4096
    s_movk_i32 s5, 8192
    s_movk_i32 s6, 12288
    s_add_u32 s20, s3, 4096
    v_lshlrev_b32 v1, 4, v0
    s_waitcnt lgkmcnt(0)
    buffer_load_dwordx4 v[40:43], v1, s[8:11], s3 offen
    buffer_load_dwordx4 v[44:47], v1, s[8:11], s20 offen
    buffer_load_dwordx4 v[24:27], v1, s[12:15], 0 offen
    buffer_load_dwordx4 v[28:31], v1, s[12:15], s4 offen
    buffer_load_dwordx4 v[32:35], v1, s[12:15], s5 offen
    buffer_load_dwordx4 v[36:39], v1, s[12:15], s6 offen
    v_lshrrev_b32 v2, 3, v0
    v_and_b32 v3, 0x70, v1
    v_mul_u32_u24 v4, 192, v2
    v_add_u32 v4, v4, v3
    v_mul_u32_u24 v5, 144, v2
    v_add_u32 v5, v5, v3
    v_add_u32 v5, {K1_X}, v5
    v_bfe_u32 v6, v0, 5, 1             ; h
    v_bfe_u32 v7, v0, 2, 2             ; r
    v_lshl_add_u32 v8, v6, 3, v7
    v_mul_u32_u24 v8, 192, v8          ; (8h + r)*192
    v_bfe_u32 v9, v0, 4, 1
    v_and_b32 v10, 3, v0               ; c
    v_lshl_add_u32 v11, v9, 2, v10     ; gamma
    s_lshr_b32 s21, s7, 7              ; which
    s_bfe_u32 s22, s7, 0x10006
    s_sub_u32 s23, 4, s21
    v_lshlrev_b32 v11, s23, v11
    s_mul_i32 s23, s21, {64*192}
    v_add3_u32 v8, v8, v11, s23
    s_mul_i32 s23, s21, 56
    s_add_u32 s23, s23, 8
    v_add_u32 v12, s23, v8
    v_and_b32 v13, 31, v0
    v_mul_u32_u24 v14, 144, v13
    v_lshl_add_u32 v14, v6, 4, v14
    s_mul_i32 s23, s22, {32*144}
    s_add_u32 s23, s23, {K1_X}
    v_add_u32 v14, s23, v14
    s_lshl_b32 s22, s22, 12
    s_add_u32 s3, s3, s22
    s_mov_b32 s24, {NEG_LOG2E}
    s_waitcnt vmcnt(5)
    ds_write_b128 v5, v[40:43]
    s_waitcnt vmcnt(4)
    ds_write_b128 v5, v[44:47] offset:{32*144}
    """)
    for i in range(4):
        e(f's_waitcnt vmcnt({3-i})')
        e(f'ds_write_b128 v4, v[{24+4*i}:{27+4*i}] offset:{K1_W + 32*192*i}')
    e("""
    s_waitcnt lgkmcnt(0)
    s_barrier
    """)
    def step_reads(s_):
        e(f'ds_read_b128 v[{16+12*s_}:{19+12*s_}], v14 offset:{32*s_}')
        for t_ in range(2):
            for h in range(2):
                r = 20 + 12*s_ + 4*t_ + 2*h
                e(f'ds_read_b64_tr_b16 v[{r}:{r+1}], v{8 if t_ == 0 else 12} offset:{K1_W + (16*s_ + 4*h)*192}')
    for s_ in range(3): step_reads(s_)
    for s_ in range(4):
        e(f's_waitcnt lgkmcnt({[10, 10, 5, 0][s_]})')
        for t_ in range(2):
            d = 64 + 16*t_
            e(f'v_mfma_f32_32x32x16_bf16 v[{d}:{d+15}], v[{16+12*s_}:{19+12*s_}], v[{20+12*s_+4*t_}:{23+12*s_+4*t_}], ' + ('0' if s_ == 0 else f'v[{d}:{d+15}]'))
        if s_ == 0: step_reads(3)
    e(f"""
    s_cmp_eq_u32 s21, 0
    s_cbranch_scc0 L_k1_q
    s_mov_b32 s18, s10
    v_lshlrev_b32 v2, 6, v9
    v_lshl_add_u32 v2, v10, 4, v2
    v_lshl_add_u32 v2, v7, 2, v2
    v_lshl_add_u32 v2, v6, 9, v2       ; + 4h rows
    s_nop 7
    """)
    for v in range(16):
        e(f'v_mul_f32 v{64+v}, s24, v{64+v}')
        e(f'v_mul_f32 v{80+v}, s24, v{80+v}')
        e(f'v_cvt_pk_bf16_f32 v{64+v}, v{64+v}, v{80+v}')
        e(f'buffer_store_dword v{64+v}, v2, s[16:19], s3 offen offset:{(8*(v//4) + v%4)*128}')
    e(f"""
    s_barrier
    s_branch L_k1_end
L_k1_q:
    s_add_u32 s16, s16, {WS_Q}
    s_addc_u32 s17, s17, 0
    s_lshl_b32 s18, s10, 1
    s_lshl_b32 s3, s3, 1
    s_add_u32 s4, s3, 4096
    v_lshlrev_b32 v2, 2, v13
    v_lshl_add_u32 v2, v6, 10, v2
    s_nop 7
    """)
    for v in range(16):
        for t_ in range(2):
            r = 64 + 16*t_ + v
            off = (8*(v//4) + v%4)*256 + 128*t_
            e(f'v_mul_f32 v{r}, s24, v{r}')
            e(f'buffer_store_dword v{r}, v2, s[16:19], {"s3" if off < 4096 else "s4"} offen offset:{off % 4096}')
    e("""
    s_barrier
    s_branch L_k1_end
    """)
    e(f"""
L_k1_special:
    s_cmp_lg_u32 s2, 0
    s_cbranch_scc1 L_k1_end
    s_cmp_gt_u32 s7, 512
    s_cbranch_scc1 L_k1_end
    s_load_dwordx2 s[8:9], s[0:1], 40
    s_load_dwordx2 s[12:13], s[0:1], 32
    s_load_dwordx2 s[16:17], s[0:1], 64
    s_mov_b32 s10, 16384
    s_mov_b32 s11, 0x20000
    s_mov_b32 s14, {129*128}
    s_mov_b32 s15, 0x20000
    s_mov_b32 s18, {16384+3072}
    s_mov_b32 s19, 0x20000
    v_lshlrev_b32 v1, 4, v0
    v_and_b32 v2, 0x3f0, v1            ; 16*lane
    s_movk_i32 s4, 8192
    s_movk_i32 s5, 16384
    s_waitcnt lgkmcnt(0)
    s_add_u32 s16, s16, {WS_WUF}
    s_addc_u32 s17, s17, 0
    s_cmp_eq_u32 s7, 512
    s_cbranch_scc1 L_k1_lt
    buffer_load_dwordx4 v[24:27], v1, s[8:11], 0 offen
    buffer_load_dwordx4 v[28:31], v1, s[8:11], s4 offen
    """)
    tr_addr(6, 3, 7, 8)
    e(f"""
    s_lshr_b32 s6, s7, 6
    s_and_b32 s3, s6, 3                ; mt
    s_lshr_b32 s6, s6, 2
    s_lshl_b32 s20, s3, 5
    s_lshl_b32 s21, s6, 13
    s_add_u32 s20, s20, s21
    v_add_u32 v6, s20, v6
    s_lshl_b32 s3, s3, 12
    s_lshl_b32 s6, s6, 11
    s_add_u32 s3, s3, s6
    s_waitcnt vmcnt(1)
    ds_write_b128 v1, v[24:27]
    s_waitcnt vmcnt(0)
    ds_write_b128 v1, v[28:31] offset:8192
    s_waitcnt lgkmcnt(0)
    s_barrier
    ds_read_b64_tr_b16 v[24:25], v6
    ds_read_b64_tr_b16 v[26:27], v6 offset:512
    ds_read_b64_tr_b16 v[28:29], v6 offset:4096
    ds_read_b64_tr_b16 v[30:31], v6 offset:4608
    s_waitcnt lgkmcnt(2)
    buffer_store_dwordx4 v[24:27], v2, s[16:19], s3 offen
    s_waitcnt lgkmcnt(0)
    buffer_store_dwordx4 v[28:31], v2, s[16:19], s3 offen offset:1024
    s_branch L_k1_end
L_k1_lt:
    v_and_b32 v14, 15, v0
    v_lshlrev_b32 v15, 3, v14
    buffer_load_dwordx2 v[12:13], v15, s[12:15], s5 offen
    v_lshrrev_b32 v32, 1, v0
    v_xor_b32 v32, v32, v0
    v_and_b32 v32, 16, v32
    v_and_b32 v33, 1, v0
    v_lshlrev_b32 v33, 4, v33
    v_mov_b32 v41, 0x3f80
    v_lshlrev_b32 v33, v33, v41
    v_bfe_u32 v41, v0, 1, 3
    v_or_b32 v41, v41, v32
    """)
    for d in range(8):
        e(f'v_cmp_eq_u32 vcc, {d}, v41')
        e('s_nop 1')
        e(f'v_cndmask_b32 v{16+d}, 0, v33, vcc')
    e(f"""
    v_cmp_eq_u32 vcc, 0, v32
    s_mov_b32 s24, {NEG_LOG2E}
    buffer_store_dwordx4 v[16:19], v2, s[16:19], s5 offen
    buffer_store_dwordx4 v[20:23], v2, s[16:19], s5 offen offset:1024
    s_waitcnt vmcnt(2)
    v_cndmask_b32 v12, 0, v12, vcc
    v_cndmask_b32 v13, 0, v13, vcc
    v_lshlrev_b32 v24, 16, v12
    v_and_b32 v25, 0xffff0000, v12
    v_lshlrev_b32 v26, 16, v13
    v_and_b32 v27, 0xffff0000, v13
    v_mul_f32 v24, s24, v24
    v_mul_f32 v25, s24, v25
    v_mul_f32 v26, s24, v26
    v_mul_f32 v27, s24, v27
    v_cvt_pk_bf16_f32 v24, v24, v25
    v_cvt_pk_bf16_f32 v25, v26, v27
    v_mov_b32 v26, 0
    v_mov_b32 v27, 0
    buffer_store_dwordx4 v[24:27], v2, s[16:19], s5 offen offset:2048
    s_branch L_k1_end
    """)

CNT, BASE, ST, FLAG = 0, 256, 512, 768
QS = 1024
NTAB = QS + 16384
AGG = NTAB + 5120
PART = AGG + 16384
RECS = PART + 32768
WUF = RECS + 39424
XSF = WUF + 16384
LT = XSF + 8192
AGGB = LT + 4096
K2_LDS = AGGB + 8704
PADREC = 0xffff
T0, T1, C, E, G0, G1, BS0, BS1, BX, AX, N, D, TMP, ACC, DS = 0, 16, 32, 48, 64, 72, 80, 84, 88, 90, 92, 96, 100, 104, 108
IDX, CH16, AV, ZERO, X, Y, Z, LQ, LA, AR, AN = 110, 111, 112, 113, 114, 115, 116, 117, 118, 119, 120
S_B, S_WV, S_X0 = 3, 4, 5
SRD_P, SRD_TAB, SRD_REC, SRD_X, SRD_Q, SRD_WF, SRD_OUT = 8, 12, 16, 20, 24, 28, 32
S_MASK = 36
S_RND, S_SAFE, S_TOT, S_NT, S_QN, S_RN, S_MORE = 54, 55, 56, 57, 58, 59, 60
S_M = 62
S_TMP = 64
S_L2E = 72

X_ = os.environ.get('X', '').split(',')
PRIO = [int(x) for x in os.environ.get('PRIO', '3,1').split(',') if x]
def mf(T, a, b, c):
    if 'nomfma' in X_: return
    e(f'v_mfma_f32_32x32x16_bf16 v[{T}:{T+15}], v[{a}:{a+3}], v[{b}:{b+3}], v[{c}:{c+15}]')
def mf8(T):
    if 'nomfma' in X_: return
    e(f'v_mfma_f32_32x32x8_bf16 v[{T}:{T+15}], v[{AX}:{AX+1}], v[{BX}:{BX+1}], v[{T}:{T+15}]')
BUILD_AX = f'v_lshlrev_b64 v[{AX}:{AX+1}], v{CH16}, v[{AV}:{AV+1}]'
def ld(g, off):
    if 'nogather' in X_: return 's_nop 0\ns_nop 0'
    return f'buffer_load_dwordx4 v[{g}:{g+3}], v[{IDX}:{IDX+1}], s[{SRD_P}:{SRD_P+3}], 0 idxen offen' + (f' offset:{off}' if off else '')
def load_c():
    e(f'v_add_u32_sdwa v{Y}, v{X}, v{LQ} {SDW} src0_sel:WORD_0 src1_sel:DWORD')
    for i in range(4):
        e(f'ds_read_b128 v[{C+4*i}:{C+4*i+3}], v{Y} offset:{QS}')
def exps(T, a, b):
    if 'noexp' in X_: return
    for i in range(a, b):
        e(f'v_exp_f32 v{E+i}, v{T+i}')
def p2(r):
    return f'v[{r}:{r+1}]'
def pk_phase(T, first, safe):
    if 'nopk' in X_: return
    if safe:
        for i in range(8):
            e(f'v_pk_add_f32 {p2(E+2*i)}, {p2(E+2*i)}, 1.0 op_sel_hi:[1,0]')
        for i in range(16):
            e(f'v_rcp_f32 v{E+i}, v{E+i}')
        for gd in range(4):
            for s in range(2):
                if first and gd == 0:
                    e(f'v_pk_mul_f32 {p2(N+2*s)}, {p2(T+2*s)}, {p2(E+2*s)}')
                else:
                    e(f'v_pk_fma_f32 {p2(N+2*s)}, {p2(T+4*gd+2*s)}, {p2(E+4*gd+2*s)}, {p2(N+2*s)}')
        return
    for gd in range(4):
        if first and gd == 0:
            for s in range(2):
                e(f'v_pk_add_f32 {p2(D+2*s)}, {p2(E+2*s)}, 1.0 op_sel_hi:[1,0]')
            continue
        for s in range(2):
            ns = (T+2*s) if (first and gd == 1) else (N+2*s)
            e(f'v_pk_fma_f32 {p2(TMP+2*s)}, {p2(ns)}, {p2(E+4*gd+2*s)}, {p2(ns)}')
        for s in range(2):
            e(f'v_pk_fma_f32 {p2(N+2*s)}, {p2(T+4*gd+2*s)}, {p2(D+2*s)}, {p2(TMP+2*s)}')
        for s in range(2):
            e(f'v_pk_fma_f32 {p2(D+2*s)}, {p2(D+2*s)}, {p2(E+4*gd+2*s)}, {p2(D+2*s)}')

def capture(fn, *a):
    n0 = len(out)
    fn(*a)
    r = [x.strip() for x in out[n0:]]
    del out[n0:]
    return r

def weave(main, fillers, start=0, step=2):
    fillers = list(fillers)
    for i, m in enumerate(main):
        e(m)
        if i >= start and (i - start) % step == 0 and fillers:
            e(fillers.pop(0))
    for f in fillers:
        e(f)

NCOVER = int(os.environ.get('NCOVER', '12'))
WSTEP = int(os.environ.get('WSTEP', '2'))
def msection(Tn, Gn, Tc, extra):
    mf(Tn, Gn, BS0, C)
    exps(Tc, 0, 3)
    mf(Tn, Gn+4, BS1, Tn)
    exps(Tc, 3, 6)
    mf8(Tn)
    exps(Tc, 6, 8)
    for x in extra: e(x)
    exps(Tc, 8, NCOVER)

def main_loop(safe):
    L = 'L_safe' if safe else 'L_fast'
    M = f's[{S_M}:{S_M+1}]'
    e('.p2align 6')
    e(f'{L}_loop:')
    msection(T1, G1, T0, [BUILD_AX, f'v_cmp_gt_i32 vcc, 0, v{X}', f'v_add_u32 v{AN}, 4, v{AN}'])
    e(ld(G1, 0))
    flush = f"""s_mov_b64 exec, {M}
    s_cbranch_execz {L}_nf
    ds_write_b128 v{Z}, v[{ACC}:{ACC+3}] offset:{PART}
    v_add_u32_e64 v{Z}, v{Y}, v{LA}
    ds_read_b128 v[{ACC}:{ACC+3}], v{Z} offset:{PART}
{L}_nf:
    s_mov_b64 exec, vcc
    s_cbranch_execz {L}_nc
    """ + '\n'.join(capture(load_c)) + f"""
{L}_nc:
    s_mov_b64 exec, -1
    s_mov_b64 {M}, vcc"""
    weave(capture(exps, T0, NCOVER, 16), [ld(G1+4, 64), flush], 1, 2)
    fl = [f'ds_read_u16 v{IDX}, v{AR} offset:64', f'ds_read_u16 v{AV}, v{AR} offset:50', f'ds_read_b32 v{X}, v{AN} offset:{NTAB+4}']
    weave(capture(pk_phase, T0, True, safe), fl, 1, WSTEP)
    e(f's_sub_u32 s{S_NT}, s{S_NT}, 1')
    e('s_waitcnt vmcnt(2) lgkmcnt(1)')
    msection(T0, G0, T1, [BUILD_AX])
    e(ld(G0, 0))
    weave(capture(exps, T1, NCOVER, 16), [ld(G0+4, 64)], 1, 2)
    fl = [f'ds_read_u16 v{IDX}, v{AR} offset:80', f'ds_read_u16 v{AV}, v{AR} offset:66']
    if 'iter' in X_ and not safe:
        fl += [('s_memrealtime' if 'iterrt' in X_ else 's_memtime') + ' s[98:99]', f's_mov_b32 m0, s{S_NT}\ns_nop 0']
    if PRIO and not safe:
        fl += [f's_cmp_eq_u32 s{S_NT}, {PRIO[0]}\ns_cbranch_scc0 {L}_p1\ns_setprio 2\n{L}_p1:\ns_cmp_eq_u32 s{S_NT}, {PRIO[1]}\ns_cbranch_scc0 {L}_p2\ns_setprio 1\n{L}_p2:']
    weave(capture(pk_phase, T1, False, safe), fl, 1, WSTEP)
    if not safe:
        for i in range(4):
            e(f'v_rcp_f32 v{TMP+i}, v{D+i}')
        e(f'v_pk_fma_f32 {p2(DS)}, {p2(D)}, {p2(D+2)}, {p2(DS)}')
    e(f'v_add_u32_e64 v{AR}, 32, v{AR}')
    e(f's_cmp_lg_u32 s{S_NT}, 0')
    e('s_waitcnt vmcnt(2) lgkmcnt(0)')
    if 'iter' in X_ and not safe:
        e('s_movreld_b32 s84, s98\ns_nop 0')
    for s in range(2):
        if safe:
            e(f'v_pk_add_f32 {p2(ACC+2*s)}, {p2(N+2*s)}, {p2(ACC+2*s)}')
        else:
            e(f'v_pk_fma_f32 {p2(ACC+2*s)}, {p2(N+2*s)}, {p2(TMP+2*s)}, {p2(ACC+2*s)}')
    e(f's_cbranch_scc1 {L}_loop')
    e(f'ds_write_b128 v{Z}, v[{ACC}:{ACC+3}] offset:{PART}')

def k2():
    e(""".globl gather_scatter__mpnn_edge_mlp__graph_kernel
.p2align 8
.type gather_scatter__mpnn_edge_mlp__graph_kernel,@function
gather_scatter__mpnn_edge_mlp__graph_kernel:""")
    def mk(i): return f's[{S_MASK+2*i}:{S_MASK+2*i+1}]'
    e(f"""
    @INIT
    s_cmp_ge_u32 s2, 256
    s_cbranch_scc1 L_k2_end
    s_load_dwordx2 s[{SRD_P}:{SRD_P+1}], s[0:1], 64
    s_load_dwordx2 s[{SRD_X}:{SRD_X+1}], s[0:1], 0
    s_load_dwordx2 s[{SRD_OUT}:{SRD_OUT+1}], s[0:1], 48
    v_readfirstlane_b32 s{S_WV}, v0
    s_and_b32 s{S_B}, s2, 7
    s_lshl_b32 s{S_B}, s{S_B}, 5
    s_lshr_b32 s{S_TMP}, s2, 3
    s_add_u32 s{S_B}, s{S_B}, s{S_TMP}
    s_mul_i32 s{S_X0}, s{S_B}, {NB*128}
    s_lshl_b32 s{S_B}, s{S_B}, 2
    s_lshr_b32 s{S_WV}, s{S_WV}, 6
    s_mov_b32 s{SRD_TAB+2}, {G*1024}
    s_mov_b32 s{SRD_TAB+3}, 0x20000
    s_add_u32 s6, s{S_X0}, {(NB+1)*128}
    s_min_u32 s{SRD_X+2}, s6, {NODES*128}
    s_mov_b32 s{SRD_X+3}, 0x20000
    s_lshl_b32 s{SRD_Q+2}, s{SRD_X+2}, 1
    s_mov_b32 s{SRD_Q+3}, 0x20000
    s_mov_b32 s{SRD_P+2}, {NODES}
    s_mov_b32 s{SRD_P+3}, 0x20000
    s_mov_b32 s{SRD_REC+2}, {G*REC_STRIDE}
    s_mov_b32 s{SRD_REC+3}, 0x20000
    s_mov_b32 s{SRD_WF+2}, {16384+3072}
    s_mov_b32 s{SRD_WF+3}, 0x20000
    s_mov_b32 s{SRD_OUT+2}, {NODES*128}
    s_mov_b32 s{SRD_OUT+3}, 0x20000
    s_mov_b32 s{S_RND}, 0
    s_mov_b32 s{S_SAFE}, 0
    s_mov_b32 s{S_L2E}, {NEG_LOG2E}
    v_lshlrev_b32 v1, 4, v0            ; 16 t
    v_and_b32 v{LQ}, 0xf0, v1
    v_and_b32 v{LA}, 0x3f00, v1
    v_and_b32 v{CH16}, 0x30, v1
    v_mov_b32 v{DS}, 0
    v_mov_b32 v{DS+1}, 0
    v_mov_b32 v{ZERO}, 0
    ds_write_b32 v{ZERO}, v{ZERO} offset:{FLAG}
    s_waitcnt lgkmcnt(0)
    @STAMP kernarg
    s_add_u32 s{SRD_TAB}, s{SRD_P}, {WS_TAB}
    s_addc_u32 s{SRD_TAB+1}, s{SRD_P+1}, 0
    s_add_u32 s{SRD_Q}, s{SRD_P}, {WS_Q}
    s_addc_u32 s{SRD_Q+1}, s{SRD_P+1}, 0
    s_add_u32 s{SRD_REC}, s{SRD_P}, {WS_REC}
    s_addc_u32 s{SRD_REC+1}, s{SRD_P+1}, 0
    s_add_u32 s{SRD_WF}, s{SRD_P}, {WS_WUF}
    s_addc_u32 s{SRD_WF+1}, s{SRD_P+1}, 0
    s_or_b32 s{SRD_P+1}, s{SRD_P+1}, {128<<16}
L_round:
    s_cmp_lt_u32 s{S_WV}, 13
    s_cbranch_scc1 L_no_lt
    s_sub_u32 s6, s{S_WV}, 13
    s_lshl_b32 s6, s6, 10
    s_add_u32 m0, s6, {LT}
    s_movk_i32 s6, {16384 - 13*1024}
    buffer_load_dwordx4 v1, s[{SRD_WF}:{SRD_WF+3}], s6 offen lds
L_no_lt:
    v_lshrrev_b32 v2, 2, v0            ; g
    v_lshlrev_b32 v3, 10, v2
    s_lshl_b32 s6, s{S_X0}, 1
    buffer_load_dword v46, v3, s[{SRD_TAB}:{SRD_TAB+3}], s{S_B} offen
    buffer_load_dwordx4 v[4:7], v1, s[{SRD_Q}:{SRD_Q+3}], s6 offen
    v_mov_b32 v28, 0
    v_mov_b32 v29, 0
    v_mov_b32 v30, 0
    v_mov_b32 v31, 0
    v_and_b32 v33, 0xfc, v0
    ds_write_b32 v33, v28
    ds_write_b128 v1, v[28:31] offset:{PART}
    ds_write_b128 v1, v[28:31] offset:{PART+16384}
    v_and_b32 v3, 3, v0
    v_add_u32 v3, s{S_RND}, v3
    v_mul_u32_u24 v2, {REC_STRIDE//16}, v2
    v_add_u32 v2, v2, v3
    v_mul_u32_u24 v3, 3, v3
    v_mov_b32 v34, 0x7ffffff0
    s_waitcnt vmcnt(1)
    @STAMP tab
    v_sub_u32_sdwa v37, v46, v3 {SDW} src0_sel:WORD_1 src1_sel:DWORD
    v_add_u32_sdwa v2, v46, v2 {SDW} src0_sel:WORD_0 src1_sel:DWORD
    v_cmp_lt_i32 {mk(0)}, 0, v37
    v_cmp_lt_i32 {mk(3)}, 12, v37
    v_cmp_lt_i32 {mk(6)}, 24, v37
    v_lshlrev_b32 v2, 4, v2
    v_cndmask_b32 v38, v34, v2, {mk(0)}
    buffer_load_dwordx4 v[16:19], v38, s[{SRD_REC}:{SRD_REC+3}], 0 offen
    v_cndmask_b32 v39, v34, v2, {mk(3)}
    buffer_load_dwordx4 v[20:23], v39, s[{SRD_REC}:{SRD_REC+3}], 0 offen offset:64
    v_cndmask_b32 v40, v34, v2, {mk(6)}
    buffer_load_dwordx4 v[24:27], v40, s[{SRD_REC}:{SRD_REC+3}], 0 offen offset:128
    v_and_b32 v46, 63, v0
    v_lshlrev_b32 v8, 3, v{LQ}
    v_and_or_b32 v8, v0, 16, v8
    s_lshr_b32 s6, s2, 3
    s_mul_i32 s6, s6, 391
    v_add_u32 v12, s6, v0
    s_lshl_b32 s{S_TMP}, s{S_WV}, 10
    s_add_u32 m0, s{S_TMP}, {WUF}
    s_lshr_b32 s6, s{S_WV}, 2
    s_lshl_b32 s6, s6, 11
    s_and_b32 s7, s{S_WV}, 3
    s_lshl_b32 s7, s7, 5
    s_add_u32 s6, s6, s7
    s_add_u32 s6, s6, s{S_X0}
    s_lshl_b32 s7, s{S_WV}, 9
    s_waitcnt lgkmcnt(0)
    s_barrier
    @STAMP bar1
    buffer_load_dwordx4 v1, s[{SRD_WF}:{SRD_WF+3}], 0 offen lds
    s_add_u32 m0, s7, {XSF}
    s_mov_b32 exec_hi, 0
    buffer_load_dwordx4 v8, s[{SRD_X}:{SRD_X+3}], s6 offen lds
    s_mov_b32 exec_hi, -1
    v_cmp_lt_i32 vcc, 36, v37
    v_cmp_lt_i32 {mk(1)}, 1, v37
    v_cmp_lt_i32 {mk(2)}, 2, v37
    v_cmp_lt_i32 {mk(4)}, 13, v37
    v_cmp_lt_i32 {mk(5)}, 14, v37
    v_cmp_lt_i32 {mk(7)}, 25, v37
    v_cmp_lt_i32 {mk(8)}, 26, v37
    v_mov_b32 v3, 1
    s_mov_b64 exec, vcc
    ds_write_b32 v{ZERO}, v3 offset:240
    s_mov_b64 exec, -1
    v_lshlrev_b32 v47, 2, v46
    v_lshrrev_b32 v57, 6, v{LA}        ; 4n
    v_and_b32 v58, 15, v0              ; j
    v_bfe_u32 v60, v0, 2, 1
    v_and_b32 v61, 32, v0
    v_lshl_add_u32 v60, v60, 6, v61    ; 32*qg
    v_lshrrev_b32 v62, 1, v0
    v_and_b32 v62, 12, v62             ; 4*gD
    v_and_b32 v61, 12, v57             ; 4*qd
    s_waitcnt vmcnt(5)
    ds_write_b128 v1, v[4:7] offset:{QS}
    """)
    for i in range(4):
        e(f'v_exp_f32 v{8+i}, v{4+i}')
    for i in range(4):
        e(f'v_add_f32 v{8+i}, 1.0, v{8+i}')
    for i in range(4):
        e(f'v_rcp_f32 v{8+i}, v{8+i}')
    for i in range(4):
        e(f'v_mul_f32 v{8+i}, v{4+i}, v{8+i}')
    for k in range(3):
        if k == 2:
            e(f's_cmp_eq_u64 {mk(6)}, 0')
            e('s_cbranch_scc1 L_skipA')
        e(f's_waitcnt vmcnt({4-k})')
        if k == 0: e('@STAMP rec0')
        m = 19 + 4*k
        for i in range(3):
            e(f's_mov_b64 exec, {mk(3*k+i)}')
            e(f'v_bfe_u32 v{28+3*k+i}, v{m}, {8*i}, 8')
            e(f'ds_add_rtn_u32 v{37+3*k+i}, v{28+3*k+i}, v3')
    e(f"""
L_skipA:
    s_mov_b64 exec, -1
    s_cmp_gt_u32 s{S_WV}, 6
    s_cbranch_scc1 L_no_pf
    buffer_load_dword v{E+15}, v12, s[{SRD_P}:{SRD_P+3}], 0 idxen
L_no_pf:
    s_mov_b32 s{S_TMP}, {RECS}
    s_waitcnt lgkmcnt(0)
    @STAMP atomics
    s_barrier
    @STAMP bar2
    ; ---- phase B
    ds_read_b32 v48, v47
    ds_read_b32 v52, v57 offset:4
    s_waitcnt lgkmcnt(1)
    v_add_u32 v49, 7, v48
    v_lshrrev_b32 v49, 3, v49
    v_readlane_b32 s{S_MORE}, v48, 60
    s_nop 0
    v_add_u32_dpp v50, v49, v49 row_shr:1 row_mask:0xf bank_mask:0xf bound_ctrl:0
    """)
    for d in ('row_shr:2', 'row_shr:4', 'row_shr:8'):
        e('s_nop 1')
        e(f'v_add_u32_dpp v50, v50, v50 {d} row_mask:0xf bank_mask:0xf bound_ctrl:0')
    e(f"""
    s_nop 1
    v_add_u32_dpp v50, v50, v50 row_bcast:15 row_mask:0xa bank_mask:0xf
    s_nop 1
    v_add_u32_dpp v50, v50, v50 row_bcast:31 row_mask:0xc bank_mask:0xf
    v_sub_u32 v49, v50, v49            ; uoff
    v_readlane_b32 s{S_TOT}, v50, 50
    v_lshl_add_u32 v51, v49, 5, s{S_TMP}
    s_waitcnt lgkmcnt(0)
    @STAMP scanned
    ds_write_b32 v47, v51 offset:{BASE}
    ds_read_b32 v54, v57 offset:{BASE+4}
    """)
    for sl in range(6):
        e(f's_mov_b64 exec, {mk(sl)}')
        e(f'ds_read_b32 v{64+sl}, v{28+sl} offset:{BASE}')
    e(f"""
    s_mov_b64 exec, -1
    v_sub_u32 v15, 0, v52
    v_and_b32 v15, 7, v15              ; npad
    v_cvt_f32_u32 v53, v15
    s_add_u32 s6, s{S_TOT}, 3
    s_lshr_b32 s6, s6, 2               ; nT
    s_lshr_b32 s{S_QN}, s6, 4
    s_and_b32 s{S_RN}, s6, 15
    v_mul_f32 v8, v53, -v8
    v_mul_f32 v9, v53, -v9
    v_mul_f32 v10, v53, -v10
    v_mul_f32 v11, v53, -v11
    s_cmp_lt_u32 s{S_WV}, s{S_RN}
    s_addc_u32 s{S_NT}, s{S_QN}, 0
    s_min_u32 s6, s{S_WV}, s{S_RN}
    s_mul_i32 s7, s{S_WV}, s{S_QN}
    s_add_u32 s6, s6, s7
    s_lshl_b32 s7, s6, 4               ; ustart*4
    s_lshl_b32 s6, s6, 7               ; ustart*32
    s_add_u32 s6, s6, {RECS}
    s_cmp_eq_u32 s{S_RND}, 0
    s_cbranch_scc1 L_agg0
    ds_read_b128 v[4:7], v1 offset:{AGG}
    s_waitcnt lgkmcnt(0)
    v_pk_add_f32 v[8:9], v[8:9], v[4:5]
    v_pk_add_f32 v[10:11], v[10:11], v[6:7]
L_agg0:
    s_waitcnt lgkmcnt(0)
    @STAMP based
    """)
    recreg = [16, 17, 18, 20, 21, 22, 24, 25, 26]
    for sl in range(6):
        e(f's_mov_b64 exec, {mk(sl)}')
        e(f'v_lshl_add_u32 v{64+sl}, v{37+sl}, 2, v{64+sl}')
        e(f'ds_write_b32 v{64+sl}, v{recreg[sl]}')
    e(f"""
    s_cmp_eq_u64 {mk(6)}, 0
    s_cbranch_scc1 L_skipB
    """)
    for sl in range(6, 9):
        e(f's_mov_b64 exec, {mk(sl)}')
        e(f'ds_read_b32 v{64+sl}, v{28+sl} offset:{BASE}')
    e('s_waitcnt lgkmcnt(0)')
    for sl in range(6, 9):
        e(f's_mov_b64 exec, {mk(sl)}')
        e(f'v_lshl_add_u32 v{64+sl}, v{37+sl}, 2, v{64+sl}')
        e(f'ds_write_b32 v{64+sl}, v{recreg[sl]}')
    e(f"""
L_skipB:
    s_mov_b64 exec, -1
    v_mad_u32_u24 v{AR}, v60, s{S_NT}, v62
    v_mul_u32_u24 v{AN}, s{S_NT}, v61
    v_add_u32 v{AR}, s6, v{AR}
    v_add_u32 v{AN}, s7, v{AN}
    v_mov_b32 v55, {PADREC}
    s_cmp_ge_u32 s{S_WV}, 13
    s_cbranch_scc1 L_special
    ds_write_b128 v1, v[8:11] offset:{AGG}
    v_cmp_gt_u32 vcc, v15, v58
    v_add_u32 v57, v52, v58
    v_lshl_add_u32 v57, v57, 2, v54
    v_lshrrev_b32 v54, 3, v54
    v_lshl_add_u32 v54, v58, 2, v54
    v_lshlrev_b32 v58, 3, v58          ; 8j
    v_mov_b32 v59, v{LA}
    s_mov_b64 exec, vcc
    ds_write_b32 v57, v55
    s_mov_b32 exec_lo, 0x10001
    s_mov_b32 exec_hi, 0x10001
    v_or_b32 v59, 0x80000000, v59
    s_mov_b64 exec, -1
    v_cmp_gt_u32 vcc, v52, v58
    s_mov_b64 exec, vcc
    ds_write_b32 v54, v59 offset:{NTAB-RECS//8}
L_ntab:
    v_add_u32 v58, 128, v58
    v_cmp_gt_u32 vcc, v52, v58
    s_and_b64 exec, exec, vcc
    s_cbranch_execz L_tables_done
    v_add_u32 v54, 64, v54
    ds_write_b32 v54, v{LA} offset:{NTAB-RECS//8}
    s_branch L_ntab
L_special:
    s_cmp_eq_u32 s{S_WV}, 14
    s_cbranch_scc0 L_special2
    s_add_u32 s6, s{S_QN}, 1
    s_lshl_b32 s{S_TMP}, s{S_RN}, 2    ; 4 rn
    s_mul_i32 s7, s{S_TMP}, s6         ; thr
    v_cvt_f32_u32 v52, s6
    v_cvt_f32_u32 v53, s{S_QN}
    v_rcp_f32 v52, v52
    v_rcp_f32 v53, v53
    v_subrev_u32 v54, s7, v49
    v_cvt_f32_u32 v55, v49
    v_cvt_f32_u32 v54, v54
    v_add_f32 v55, 0.5, v55
    v_add_f32 v54, 0.5, v54
    v_mul_f32 v55, v55, v52
    v_mul_f32 v54, v54, v53
    v_cvt_u32_f32 v55, v55
    v_cvt_u32_f32 v54, v54
    v_cmp_gt_u32 vcc, s7, v49
    v_min_u32 v54, 64, v54
    v_add_u32 v54, s{S_TMP}, v54
    v_cndmask_b32 v54, v54, v55, vcc
    v_min_u32 v54, 64, v54
    v_add_lshl_u32 v54, v54, v46, 8    ; 256*(slot+1)
    ds_write_b32 v47, v54 offset:{ST}
    s_branch L_tables_done
L_special2:
    s_cmp_eq_u32 s{S_WV}, 15
    s_cbranch_scc0 L_tables_done
    s_lshl_b32 s6, s{S_TOT}, 5
    s_add_u32 s6, s6, {RECS}
    s_lshl_b32 s7, s{S_TOT}, 2
    v_add_u32 v57, s6, v47
    v_add_u32 v54, s7, v47
    v_mov_b32 v59, {0x80000000 + NB*256}
    s_mov_b64 exec, 0xffffff
    ds_write_b32 v57, v55
    s_mov_b64 exec, 7
    ds_write_b32 v54, v59 offset:{NTAB}
L_tables_done:
    s_mov_b64 exec, -1
    v_lshlrev_b32 v47, 2, v47
    v_add_u32 v47, {LT}, v47
    s_waitcnt lgkmcnt(0)
    @STAMP phaseB
    s_barrier
    @STAMP bar3
    s_cmp_eq_u32 s{S_NT}, 0
    s_cbranch_scc1 L_skip_loop
    s_setprio {3 if PRIO else 0}
    ds_read_u16 v{IDX}, v{AR}
    ds_read_u16 v{N}, v{AR} offset:16
    ds_read_b32 v{X}, v{AN} offset:{NTAB}
    ds_read_u16 v{AV}, v{AR} offset:2
    ds_read_u16 v{N+1}, v{AR} offset:32
    ds_read_u16 v{N+2}, v{AR} offset:18
    ds_read_b128 v[{BS0}:{BS0+3}], v47
    ds_read_b128 v[{BS1}:{BS1+3}], v47 offset:1024
    ds_read_b64 v[{BX}:{BX+1}], v47 offset:2048
    s_mov_b64 s[{S_M}:{S_M+1}], 0
    s_waitcnt lgkmcnt(8)
    {ld(G0, 0)}
    {ld(G0+4, 64)}
    s_waitcnt lgkmcnt(6)
    v_mov_b32 v{IDX}, v{N}
    {ld(G1, 0)}
    {ld(G1+4, 64)}
    """)
    load_c()
    e(f"""
    ds_read_b32 v{X}, v{AN} offset:{NTAB+4}
    v_add_u32 v{Z}, v{Y}, v{LA}
    v_mov_b32 v{ACC}, 0
    v_mov_b32 v{ACC+1}, 0
    v_mov_b32 v{ACC+2}, 0
    v_mov_b32 v{ACC+3}, 0
    s_waitcnt lgkmcnt(8)
    {BUILD_AX}
    v_mov_b32 v{IDX}, v{N+1}
    v_mov_b32 v{AV}, v{N+2}
    s_waitcnt vmcnt(2) lgkmcnt(1)
    """)
    mf(T0, G0, BS0, C)
    mf(T0, G0+4, BS1, T0)
    mf8(T0)
    e(f"""
    {ld(G0, 0)}
    {ld(G0+4, 64)}
    {BUILD_AX}
    ds_read_u16 v{IDX}, v{AR} offset:48
    ds_read_u16 v{AV}, v{AR} offset:34
    s_nop 3
    s_waitcnt vmcnt(2) lgkmcnt(0)
    @STAMP pipeprologue
    s_cmp_lg_u32 s{S_SAFE}, 0
    s_cbranch_scc1 L_safe_loop
    """)
    main_loop(False)
    e(f"""
L_loop_done:
    @STAMP loopdone
    s_setprio 0
    s_movk_i32 s6, 0x300
    v_and_or_b32 v28, v{LA}, s6, v{LQ}  ; 16*lane
    s_and_b32 s{S_TMP}, s{S_WV}, 3     ; mt
    s_lshr_b32 s{S_TMP+1}, s{S_WV}, 2  ; nt
    s_lshl_b32 s6, s{S_TMP}, 12
    s_add_u32 s6, s6, {WUF}
    s_lshl_b32 s7, s{S_TMP+1}, 11
    s_add_u32 s7, s7, {XSF}
    v_add_u32 v29, s6, v28
    v_add_u32 v30, s7, v28
    v_lshrrev_b32 v13, 6, v{LA}        ; 4n
    v_add_u32 v1, v{LA}, v{LQ}         ; 16 t
    ds_read_b128 v[32:35], v29
    ds_read_b128 v[48:51], v30
    ds_read_b128 v[36:39], v29 offset:1024
    ds_read_b128 v[52:55], v30 offset:1024
    ds_read2_b32 v[10:11], v13 offset0:{(ST+4)//4} offset1:{(ST+8)//4}
    ds_read_b128 v[4:7], v1 offset:{AGG}
    ds_read_b128 v[40:43], v29 offset:2048
    ds_read_b128 v[44:47], v29 offset:3072
    v_add_f32 v{TMP}, v{DS}, v{DS+1}
    s_movk_i32 s6, 0x207
    v_and_b32 v31, 12, v13             ; 4*kq
    v_cmp_class_f32 vcc, v{TMP}, s6
    s_mul_i32 s7, s{S_TMP+1}, 2176
    s_add_u32 s7, s7, {AGGB}
    v_lshl_add_u32 v29, v31, 2, v28
    v_add_u32 v29, s7, v29
    v_lshrrev_b32 v14, 5, v{LQ}
    v_mul_u32_u24 v15, 272, v14
    v_bfe_u32 v14, v{LQ}, 4, 1
    v_lshl_add_u32 v15, v14, 3, v15
    v_lshl_add_u32 v15, v31, 2, v15
    s_lshl_b32 s6, s{S_TMP}, 6
    s_add_u32 s7, s7, s6
    v_add_u32 v15, s7, v15
    v_lshlrev_b32 v60, 3, v{LQ}
    v_lshl_add_u32 v60, v31, 1, v60
    v_mov_b32 v{TMP+2}, 1
    s_mov_b64 exec, vcc
    ds_write_b32 v{ZERO}, v{TMP+2} offset:{FLAG}
    s_mov_b64 exec, -1
    s_waitcnt lgkmcnt(0)
    v_mfma_f32_16x16x32_bf16 v[56:59], v[32:35], v[48:51], 0
    v_mfma_f32_16x16x32_bf16 v[56:59], v[36:39], v[52:55], v[56:59]
    v_sub_u32 v11, v11, v10            ; 256*count
    v_add_u32 v10, v{LQ}, v10
    s_movk_i32 s6, 256
    s_movk_i32 s7, 512
    v_cmp_lt_u32 s[{S_TMP+2}:{S_TMP+3}], s6, v11
    v_cmp_lt_u32 s[{S_TMP+4}:{S_TMP+5}], s7, v11
    s_cmp_eq_u32 s{S_WV}, 12
    s_cselect_b64 s[{S_TMP+6}:{S_TMP+7}], 0xffff, -1
    s_cmp_gt_u32 s{S_WV}, 12
    s_barrier
    @STAMP bar4
    ; ---- fold
    s_cbranch_scc1 L_fold_done
    s_mov_b64 exec, s[{S_TMP+6}:{S_TMP+7}]
    ds_read_b128 v[16:19], v10 offset:{PART-256}
    ds_read_b128 v[20:23], v10 offset:{PART}
    ds_read_b128 v[24:27], v10 offset:{PART+256}
    s_waitcnt lgkmcnt(2)
    v_pk_add_f32 v[4:5], v[4:5], v[16:17]
    v_pk_add_f32 v[6:7], v[6:7], v[18:19]
    s_and_b64 exec, exec, s[{S_TMP+2}:{S_TMP+3}]
    s_waitcnt lgkmcnt(1)
    v_pk_add_f32 v[4:5], v[4:5], v[20:21]
    v_pk_add_f32 v[6:7], v[6:7], v[22:23]
    s_and_b64 exec, exec, s[{S_TMP+4}:{S_TMP+5}]
    s_waitcnt lgkmcnt(0)
    v_pk_add_f32 v[4:5], v[4:5], v[24:25]
    v_pk_add_f32 v[6:7], v[6:7], v[26:27]
L_fold:
    s_add_u32 s7, s7, 256
    v_cmp_lt_u32 vcc, s7, v11
    s_and_b64 exec, exec, vcc
    s_cbranch_execz L_fold2
    ds_read_b128 v[16:19], v10 offset:{PART+512}
    v_add_u32 v10, 256, v10
    s_waitcnt lgkmcnt(0)
    v_pk_add_f32 v[4:5], v[4:5], v[16:17]
    v_pk_add_f32 v[6:7], v[6:7], v[18:19]
    s_branch L_fold
L_fold2:
    s_mov_b64 exec, s[{S_TMP+6}:{S_TMP+7}]
    s_cmp_eq_u32 s{S_MORE}, 0
    s_cbranch_scc1 L_fold4
    ds_write_b128 v1, v[4:7] offset:{AGG}
    s_branch L_fold_done
L_fold4:
    s_mov_b32 s6, {NEG_LN2}
    s_mov_b32 s7, {NEG_LN2}
    v_pk_mul_f32 v[4:5], v[4:5], s[6:7]
    v_pk_mul_f32 v[6:7], v[6:7], s[6:7]
    v_cvt_pk_bf16_f32 v4, v4, v5
    v_cvt_pk_bf16_f32 v5, v6, v7
    ds_write_b64 v15, v[4:5]
L_fold_done:
    s_mov_b64 exec, -1
    s_lshl_b32 s6, s{S_TMP}, 5
    s_add_u32 s6, s6, s{S_X0}
    s_lshl_b32 s7, s{S_TMP+1}, 11
    s_add_u32 s6, s6, s7
    s_cmp_eq_u32 s{S_TMP+1}, 3
    s_cselect_b32 s{S_TMP+2}, 0x10001, -1
    s_cmp_eq_u32 s{S_MORE}, 0
    s_waitcnt lgkmcnt(0)
    s_barrier
    s_cbranch_scc1 L_final
    s_add_u32 s{S_RND}, s{S_RND}, 12
L_again:
    v_lshrrev_b32 v0, 4, v1
    s_waitcnt vmcnt(0)
    s_branch L_round
L_final:
    @STAMP bar5
    ds_read_b128 v[48:51], v29
    ds_read_b128 v[52:55], v29 offset:1088
    s_movk_i32 s7, 0x207
    s_waitcnt lgkmcnt(1)
    v_mfma_f32_16x16x32_bf16 v[56:59], v[40:43], v[48:51], v[56:59]
    s_waitcnt lgkmcnt(0)
    v_mfma_f32_16x16x32_bf16 v[56:59], v[44:47], v[52:55], v[56:59]
    s_nop 5
    s_mov_b32 exec_lo, s{S_TMP+2}
    s_mov_b32 exec_hi, s{S_TMP+2}
    """)
    for i in range(4):
        e(f'v_mul_f32 v{4+i}, s{S_L2E}, v{56+i}')
    for i in range(4):
        e(f'v_exp_f32 v{4+i}, v{4+i}')
    e('v_cmp_class_f32 vcc, v56, s7')
    for i in range(4):
        e(f'v_add_f32 v{4+i}, 1.0, v{4+i}')
    for i in range(4):
        e(f'v_rcp_f32 v{4+i}, v{4+i}')
    for i in range(4):
        e(f'v_mul_f32 v{4+i}, v{56+i}, v{4+i}')
    e(f"""
    v_cvt_pk_bf16_f32 v4, v4, v5
    v_cvt_pk_bf16_f32 v5, v6, v7
    buffer_store_dwordx2 v[4:5], v60, s[{SRD_OUT}:{SRD_OUT+3}], s6 offen
    s_cmp_lg_u32 s{S_SAFE}, 0
    s_cbranch_scc1 L_k2_end
    s_mov_b64 exec, vcc
    ds_write_b32 v{ZERO}, v{TMP+2} offset:{FLAG}
    s_mov_b64 exec, -1
    s_waitcnt lgkmcnt(0)
    s_barrier
    ds_read_b32 v2, v{ZERO} offset:{FLAG}
    s_waitcnt lgkmcnt(0)
    v_readfirstlane_b32 s6, v2
    s_cmp_eq_u32 s6, {'s6' if 'nosafe' in X_ else 0}
    s_cbranch_scc1 L_k2_end
    s_mov_b32 s{S_SAFE}, 1
    s_mov_b32 s{S_RND}, 0
    v_mov_b32 v{DS}, 0
    v_mov_b32 v{DS+1}, 0
    s_branch L_again
L_k2_end:
    @FLUSH 1
    s_endpgm
    """)
    main_loop(True)
    e('L_skip_loop:')
    e('s_waitcnt vmcnt(0)')
    e('s_branch L_loop_done')

HEADER = f'''; MPNN edge-MLP layer: two launches.
;  part_kernel: buckets edges by destination range (LDS counting sort) and precomputes P = -log2e * x @ W1 (bf16)
;  main kernel: per bucket of {NB} nodes: sort by node, gather P rows, MFMA unpack(+a*w3+Q), silu sum, update GEMM
; @launch kernel=part_kernel grid=({G+1},1,1) block=({K1_BLOCK},1,1) lds={K1_LDS}
; @launch kernel=gather_scatter__mpnn_edge_mlp__graph_kernel grid=(256,1,1) block=(1024,1,1) lds={K2_LDS}
.amdgcn_target "amdgcn-amd-amdhsa--gfx950"
.text'''

def main():
    k1()
    k2()
    e('.section .rodata,"a"')
    e('.p2align 6')
    kd('part_kernel', 96, 40)
    e('.p2align 6')
    kd('gather_scatter__mpnn_edge_mlp__graph_kernel', 128, 80)
    path = sys.argv[1] if len(sys.argv) > 1 else 'gather_scatter__mpnn_edge_mlp__graph.s'
    open(path, 'w').write(HEADER + '\n' + '\n'.join(out) + '\n')

main()
```

```python
import sys, struct

NODES = 12500
EDGES = 800000
NB = 49
G = 250
CH = 3200
K1_BLOCK = 896
WS_P = 0
WS_Q = 0x200000
WS_TAB = 0x520000
WS_WUF = 0x560000
WS_REC = 0x600000
REC_STRIDE = 20480
INC = 10923

def f32(x):
    return '0x%08x' % struct.unpack('<I', struct.pack('<f', x))[0]
NEG_LOG2E = f32(-1.4426950408889634)
NEG_LN2 = f32(-0.6931471805599453)

out = []
def e(s=''):
    for line in s.split('\n'):
        line = line.strip()
        if not line:
            continue
        if line.startswith('@STAMP'):
            stamp(line[6:].strip()); continue
        if line.startswith('@INIT'):
            stamp_init(); continue
        if line.startswith('@FLUSH'):
            stamp('end'); stamp_rt(1); stamp_flush(int(line[6:])); continue
        if line.endswith(':') or line.startswith('.') or line.startswith(';'):
            out.append(line)
        else:
            out.append('    ' + line)

import os
STAMP = int(os.environ.get('STAMP', '0'))
nstamp = [0]
RTS = os.environ.get('RTS', '').split(',')
kidx_ = [0]
def stamp(name=''):
    if not STAMP: return
    if STAMP == 2:
        k = kidx_[0]
        for j in range(2):
            if len(RTS) > 2*k+j and RTS[2*k+j] == name:
                e(f"""s_waitcnt lgkmcnt(0)
                s_memrealtime s[98:99]
                s_waitcnt lgkmcnt(0)
                s_mov_b32 s{76+j}, s98""")
        return
    if STAMP == 4:
        if name not in ('entry', 'end', 'bar3', 'bar4', 'bar3rt', 'bar4rt', 'loopdone', 'pipeprologue'): return
        if name in ('bar3', 'bar4'): stamp(name + 'rt')
    i = nstamp[0]; nstamp[0] += 1
    e(f"""s_waitcnt lgkmcnt(0)
    {'s_memrealtime' if (STAMP == 3 or name.endswith('rt')) else 's_memtime'} s[98:99]
    s_waitcnt lgkmcnt(0)
    s_mov_b32 s{76+i}, s98""")
def stamp_rt(idx):
    if not STAMP: return
    e(f"""s_waitcnt lgkmcnt(0)
    s_memrealtime s[98:99]
    s_waitcnt lgkmcnt(0)
    s_mov_b32 s{74+idx}, s98""")
def stamp_flush(kidx):
    if not STAMP: return
    e(f"""s_mov_b64 exec, 1
    s_add_u32 s96, s96, {(16+4*kidx)<<20}
    s_addc_u32 s97, s97, 0
    s_mov_b32 s98, 0x400000
    s_mov_b32 s99, 0x20000
    s_lshl_b32 s100, s2, 4
    s_add_u32 s100, s100, s95
    s_lshl_b32 s100, s100, 7
    v_mov_b32 v2, 0""")
    for q in range(1 if STAMP == 2 else 5):
        for i in range(4):
            e(f'v_mov_b32 v{4+4*q+i}, s{74+4*q+i}')
        e(f'buffer_store_dwordx4 v[{4+4*q}:{7+4*q}], v2, s[96:99], s100 offen offset:{16*q}')
    kidx_[0] += 1
def stamp_init():
    if not STAMP: return
    nstamp[0] = 0
    e('s_memrealtime s[98:99]')
    e('s_load_dwordx2 s[96:97], s[0:1], 64')
    for i in range(75, 78 if STAMP == 2 else 94): e(f's_mov_b32 s{i}, 0')
    e('v_readfirstlane_b32 s95, v0')
    e('s_lshr_b32 s95, s95, 6')
    e('s_waitcnt lgkmcnt(0)')
    e('s_mov_b32 s74, s98')
    stamp('entry')

def vr(a, n=1):
    return f'v{a}' if n == 1 else f'v[{a}:{a+n-1}]'
def sr(a, n=1):
    return f's{a}' if n == 1 else f's[{a}:{a+n-1}]'

def scan(v):
    for d in ('row_shr:1', 'row_shr:2', 'row_shr:4', 'row_shr:8'):
        e('s_nop 1')
        e(f'v_add_u32_dpp v{v}, v{v}, v{v} {d} row_mask:0xf bank_mask:0xf bound_ctrl:0')
    e('s_nop 1')
    e(f'v_add_u32_dpp v{v}, v{v}, v{v} row_bcast:15 row_mask:0xa bank_mask:0xf')
    e('s_nop 1')
    e(f'v_add_u32_dpp v{v}, v{v}, v{v} row_bcast:31 row_mask:0xc bank_mask:0xf')

def kd(name, vgpr, sgpr):
    if STAMP: sgpr = 102
    e(f'''.amdhsa_kernel {name}
.amdhsa_next_free_vgpr {vgpr}
.amdhsa_next_free_sgpr {sgpr}
.amdhsa_accum_offset {(vgpr+3)//4*4}
.amdhsa_group_segment_fixed_size 0
.amdhsa_kernarg_size 72
.amdhsa_user_sgpr_count 2
.amdhsa_user_sgpr_kernarg_segment_ptr 1
.amdhsa_system_sgpr_workgroup_id_x 1
.amdhsa_float_denorm_mode_32 {0 if 'nodenorm' in os.environ.get('X','') else 3}
.end_amdhsa_kernel''')

K1_GT = 1024
K1_CELL = 2560
K1_W = K1_CELL + 256*144
K1_X = K1_W + 128*192
K1_LDS = K1_X + 64*144
SDW = 'dst_sel:DWORD dst_unused:UNUSED_PAD'

def tr_addr(dst, cshift, t1, t2):
    e(f"""
    v_bfe_u32 v{t1}, v0, 4, 2
    v_bfe_u32 v{dst}, v0, 2, 2
    v_lshl_add_u32 v{dst}, v{t1}, 3, v{dst}
    v_lshlrev_b32 v{dst}, 7, v{dst}
    v_and_b32 v{t2}, 3, v0
    v_lshl_add_u32 v{dst}, v{t2}, {cshift}, v{dst}
    """)

STF = os.environ.get('STF', '')
LDF = os.environ.get('LDF', '')
def k1():
    e(""".globl part_kernel
.p2align 8
.type part_kernel,@function
part_kernel:""")
    NE = 5
    e(f"""
    @INIT
    v_readfirstlane_b32 s7, v0
    s_sub_u32 s33, s2, 1
    s_cmp_ge_u32 s33, {G}
    s_cbranch_scc1 L_k1_special
    s_cmp_lt_u32 s7, 256
    s_cbranch_scc1 L_k1_p
    s_load_dwordx2 s[8:9], s[0:1], 24
    s_load_dwordx2 s[12:13], s[0:1], 16
    s_load_dwordx2 s[16:17], s[0:1], 8
    s_load_dwordx2 s[20:21], s[0:1], 64
    s_mov_b32 s10, {EDGES*4}
    s_mov_b32 s11, 0x20000
    s_mov_b32 s14, {EDGES*4}
    s_mov_b32 s15, 0x20000
    s_mov_b32 s18, {EDGES*2}
    s_mov_b32 s19, 0x20000
    s_mul_i32 s3, s33, {CH*4}
    s_add_u32 s4, s3, {2560*4}
    s_mul_i32 s5, s33, {CH*2}
    s_add_u32 s6, s5, {2560*2}
    v_subrev_u32 v0, 256, v0
    v_lshlrev_b32 v1, 4, v0
    v_lshlrev_b32 v25, 2, v0
    v_lshlrev_b32 v2, 3, v0
    v_lshlrev_b32 v3, 1, v0
    s_waitcnt lgkmcnt(0)
    @STAMP kernarg
    buffer_load_dwordx4 v[4:7], v1, s[8:11], s3 offen {LDF}
    buffer_load_dword v8, v25, s[8:11], s4 offen {LDF}
    buffer_load_dwordx4 v[12:15], v1, s[12:15], s3 offen {LDF}
    buffer_load_dwordx2 v[20:21], v2, s[16:19], s5 offen {LDF}
    buffer_load_dword v16, v25, s[12:15], s4 offen {LDF}
    buffer_load_ushort v22, v3, s[16:19], s6 offen {LDF}
    v_mov_b32 v24, 0
    ds_write_b32 v25, v24
    s_lshl_b32 s6, s33, 10
    s_add_u32 s6, s6, {WS_TAB}
    s_add_u32 s24, s20, s6
    s_addc_u32 s25, s21, 0
    s_mov_b32 s26, 1024
    s_mov_b32 s27, 0x20000
    s_mul_i32 s6, s33, {REC_STRIDE}
    s_add_u32 s6, s6, {WS_REC}
    s_add_u32 s20, s20, s6
    s_addc_u32 s21, s21, 0
    s_mov_b32 s22, {REC_STRIDE}
    s_mov_b32 s23, 0x20000
    s_mov_b32 s28, {-NB*4 & 0xffffffff}
    s_mov_b32 s29, 0xffff0000
    s_mov_b32 s32, {32<<13}
    v_mov_b32 v3, {INC}
    v_lshrrev_b32 v26, 3, v0           ; cell
    v_and_b32 v27, 0x70, v1            ; 16*k
    v_mul_u32_u24 v62, 144, v26
    v_add_u32 v62, v62, v27
    v_lshlrev_b32 v26, 2, v26
    v_and_b32 v60, 0x3f0, v1           ; 16*lane
    s_waitcnt lgkmcnt(0)
    s_barrier
    @STAMP bar1
    s_waitcnt vmcnt(4)
    @STAMP dst
    """)
    R = range(NE)
    for i in R: e(f'v_mul_u32_u24 v{28+i}, 42800, v{4+i}')
    for i in R: e(f'v_lshrrev_b32 v{44+i}, 21, v{28+i}')
    for i in R:
        e(f'v_lshlrev_b32 v{28+i}, 2, v{44+i}')
        e(f'ds_add_rtn_u32 v{36+i}, v{28+i}, v3')
    for i in R: e(f'v_lshl_add_u32 v{4+i}, v{4+i}, 2, 4')
    for i in R: e(f'v_mad_i32_i24 v{4+i}, v{44+i}, s28, v{4+i}')
    e('s_waitcnt vmcnt(0)')
    e('@STAMP allloaded')
    for i in R:
        a = 20 + i//2
        if i % 2 == 0:
            e(f'v_lshl_or_b32 v{12+i}, v{a}, 16, v{12+i}')
        else:
            e(f'v_and_or_b32 v{12+i}, v{a}, s29, v{12+i}')
    for i in R:
        e(f's_waitcnt lgkmcnt({NE-1-i+2*i})')
        e(f'v_min_u32 v{44+i}, s32, v{36+i}')
        e(f'v_bfe_u32 v{52+i}, v{44+i}, 13, 2')
        e(f'v_lshrrev_b32 v{44+i}, 13, v{44+i}')
        e(f'v_mad_u32_u24 v{44+i}, v{28+i}, 9, v{44+i}')
        e(f'v_lshlrev_b32 v{44+i}, 2, v{44+i}')
        e(f'ds_write_b32 v{44+i}, v{12+i} offset:{K1_CELL}')
        e(f'v_mad_i32_i24 v{52+i}, v{52+i}, -3, v{44+i}')
        e(f'ds_write_b8 v{52+i}, v{4+i} offset:{K1_CELL+12}')
    e(f"""
    v_max3_u32 v2, v36, v37, v38
    v_max3_u32 v2, v2, v39, v40
    v_cmp_le_u32 s[34:35], s32, v2
    s_waitcnt lgkmcnt(0)
    @STAMP placed
    s_barrier
    @STAMP bar2
    ds_read_b128 v[52:55], v60
    """)
    NP = 4
    for p in range(NP):
        e(f'ds_read_b128 v[{64+4*p}:{67+4*p}], v62 offset:{K1_CELL + p*80*144}')
    e(f's_waitcnt lgkmcnt({NP})')
    for i in range(4): e(f'v_add_u32 v{44+i}, {2*INC}, v{52+i}')
    for i in range(4): e(f'v_lshrrev_b32 v{44+i}, 15, v{44+i}')
    e("""
    v_add_u32 v48, v44, v45
    v_add_u32 v49, v48, v46
    v_add_u32 v50, v49, v47
    s_nop 1
    v_add_u32_dpp v61, v50, v50 row_shr:1 row_mask:0xf bank_mask:0xf bound_ctrl:0
    """)
    for d in ('row_shr:2', 'row_shr:4', 'row_shr:8'):
        e('s_nop 1')
        e(f'v_add_u32_dpp v61, v61, v61 {d} row_mask:0xf bank_mask:0xf bound_ctrl:0')
    e(f"""
    s_nop 1
    v_add_u32_dpp v61, v61, v61 row_bcast:15 row_mask:0xa bank_mask:0xf
    s_nop 1
    v_add_u32_dpp v61, v61, v61 row_bcast:31 row_mask:0xc bank_mask:0xf
    v_sub_u32 v56, v61, v50
    v_add_u32 v57, v56, v44
    v_add_u32 v58, v56, v48
    v_add_u32 v59, v56, v49
    """)
    for i in range(4): e(f'v_lshl_or_b32 v{44+i}, v{44+i}, 16, v{56+i}')
    for i in range(4): e(f'v_lshlrev_b32 v{44+i}, 4, v{44+i}')
    e(f'ds_write_b128 v60, v[44:47] offset:{K1_GT}')
    for p in range(NP):
        e(f'ds_read_b32 v{84+p}, v26 offset:{K1_GT + p*320}')
    e(f"""
    s_cmp_lg_u32 s7, 832
    s_cbranch_scc1 L_k1_notab
    """)
    for i in range(4): e(f'v_lshl_add_u32 v{52+i}, v{52+i}, 1, v{52+i}')
    for i in range(4): e(f'v_lshrrev_b32 v{52+i}, 15, v{52+i}')
    for i in range(4): e(f'v_lshl_or_b32 v{52+i}, v{52+i}, 16, v{56+i}')
    e(f"""
    buffer_store_dwordx4 v[52:55], v60, s[24:27], 0 offen {STF}
L_k1_notab:
    @STAMP scan
    """)
    for p in range(NP):
        if p == NP-1:
            e('s_cmp_ge_u32 s7, 384')
            e('s_cbranch_scc1 L_k1_copied')
        e(f's_waitcnt lgkmcnt({NP-1-p})')
        e(f'v_cmp_lt_u32_sdwa vcc, v27, v{84+p} src0_sel:DWORD src1_sel:WORD_1')
        e(f'v_add_u32_sdwa v{84+p}, v27, v{84+p} {SDW} src0_sel:DWORD src1_sel:WORD_0')
        e('s_and_b64 exec, exec, vcc')
        e(f's_cbranch_execz L_k1_c{p}')
        e(f'buffer_store_dwordx4 v[{64+4*p}:{67+4*p}], v{84+p}, s[20:23], 0 offen {STF}')
        e(f'L_k1_c{p}:')
        e('s_mov_b64 exec, -1')
    e(f"""
L_k1_copied:
    s_cmp_eq_u64 s[34:35], 0
    s_cbranch_scc1 L_k1_end
    """)
    for i in R:
        e(f"""
        s_mov_b64 exec, -1
        v_cmp_le_u32 vcc, s32, v{36+i}
        s_and_b64 exec, exec, vcc
        s_cbranch_execz L_k1_o{i}
        ds_read_u16 v44, v{28+i} offset:{K1_GT}
        v_lshrrev_b32 v45, 13, v{36+i}
        v_and_b32 v46, 3, v45
        s_waitcnt lgkmcnt(0)
        v_lshl_add_u32 v45, v45, 2, v44
        v_mad_i32_i24 v46, v46, -3, v45
        buffer_store_dword v{12+i}, v45, s[20:23], 0 offen
        buffer_store_byte v{4+i}, v46, s[20:23], 0 offen offset:12
L_k1_o{i}:""")
    e(f"""
L_k1_end:
    @STAMP issued
    @FLUSH 0
    s_endpgm
    """)
    e(f"""
L_k1_p:
    s_load_dwordx2 s[8:9], s[0:1], 0
    s_load_dwordx2 s[12:13], s[0:1], 32
    s_load_dwordx2 s[16:17], s[0:1], 64
    s_mul_i32 s3, s33, {50*128}
    s_add_u32 s10, s3, {50*128}
    s_mov_b32 s11, 0x20000
    s_mov_b32 s14, 16384
    s_mov_b32 s15, 0x20000
    s_mov_b32 s19, 0x20000
    s_movk_i32 s4, 4096
    s_movk_i32 s5, 8192
    s_movk_i32 s6, 12288
    s_add_u32 s20, s3, 4096
    v_lshlrev_b32 v1, 4, v0
    s_waitcnt lgkmcnt(0)
    buffer_load_dwordx4 v[40:43], v1, s[8:11], s3 offen
    buffer_load_dwordx4 v[44:47], v1, s[8:11], s20 offen
    buffer_load_dwordx4 v[24:27], v1, s[12:15], 0 offen
    buffer_load_dwordx4 v[28:31], v1, s[12:15], s4 offen
    buffer_load_dwordx4 v[32:35], v1, s[12:15], s5 offen
    buffer_load_dwordx4 v[36:39], v1, s[12:15], s6 offen
    v_lshrrev_b32 v2, 3, v0
    v_and_b32 v3, 0x70, v1
    v_mul_u32_u24 v4, 192, v2
    v_add_u32 v4, v4, v3
    v_mul_u32_u24 v5, 144, v2
    v_add_u32 v5, v5, v3
    v_add_u32 v5, {K1_X}, v5
    v_bfe_u32 v6, v0, 5, 1             ; h
    v_bfe_u32 v7, v0, 2, 2             ; r
    v_lshl_add_u32 v8, v6, 3, v7
    v_mul_u32_u24 v8, 192, v8          ; (8h + r)*192
    v_bfe_u32 v9, v0, 4, 1
    v_and_b32 v10, 3, v0               ; c
    v_lshl_add_u32 v11, v9, 2, v10     ; gamma
    s_lshr_b32 s21, s7, 7              ; which
    s_bfe_u32 s22, s7, 0x10006
    s_sub_u32 s23, 4, s21
    v_lshlrev_b32 v11, s23, v11
    s_mul_i32 s23, s21, {64*192}
    v_add3_u32 v8, v8, v11, s23
    s_mul_i32 s23, s21, 56
    s_add_u32 s23, s23, 8
    v_add_u32 v12, s23, v8
    v_and_b32 v13, 31, v0
    v_mul_u32_u24 v14, 144, v13
    v_lshl_add_u32 v14, v6, 4, v14
    s_mul_i32 s23, s22, {32*144}
    s_add_u32 s23, s23, {K1_X}
    v_add_u32 v14, s23, v14
    s_lshl_b32 s22, s22, 12
    s_add_u32 s3, s3, s22
    s_mov_b32 s24, {NEG_LOG2E}
    s_waitcnt vmcnt(5)
    ds_write_b128 v5, v[40:43]
    s_waitcnt vmcnt(4)
    ds_write_b128 v5, v[44:47] offset:{32*144}
    """)
    for i in range(4):
        e(f's_waitcnt vmcnt({3-i})')
        e(f'ds_write_b128 v4, v[{24+4*i}:{27+4*i}] offset:{K1_W + 32*192*i}')
    e("""
    s_waitcnt lgkmcnt(0)
    s_barrier
    """)
    def step_reads(s_):
        e(f'ds_read_b128 v[{16+12*s_}:{19+12*s_}], v14 offset:{32*s_}')
        for t_ in range(2):
            for h in range(2):
                r = 20 + 12*s_ + 4*t_ + 2*h
                e(f'ds_read_b64_tr_b16 v[{r}:{r+1}], v{8 if t_ == 0 else 12} offset:{K1_W + (16*s_ + 4*h)*192}')
    for s_ in range(3): step_reads(s_)
    for s_ in range(4):
        e(f's_waitcnt lgkmcnt({[10, 10, 5, 0][s_]})')
        for t_ in range(2):
            d = 64 + 16*t_
            e(f'v_mfma_f32_32x32x16_bf16 v[{d}:{d+15}], v[{16+12*s_}:{19+12*s_}], v[{20+12*s_+4*t_}:{23+12*s_+4*t_}], ' + ('0' if s_ == 0 else f'v[{d}:{d+15}]'))
        if s_ == 0: step_reads(3)
    e(f"""
    s_cmp_eq_u32 s21, 0
    s_cbranch_scc0 L_k1_q
    s_mov_b32 s18, s10
    v_lshlrev_b32 v2, 6, v9
    v_lshl_add_u32 v2, v10, 4, v2
    v_lshl_add_u32 v2, v7, 2, v2
    v_lshl_add_u32 v2, v6, 9, v2       ; + 4h rows
    s_nop 7
    """)
    for v in range(16):
        e(f'v_mul_f32 v{64+v}, s24, v{64+v}')
        e(f'v_mul_f32 v{80+v}, s24, v{80+v}')
        e(f'v_cvt_pk_bf16_f32 v{64+v}, v{64+v}, v{80+v}')
        e(f'buffer_store_dword v{64+v}, v2, s[16:19], s3 offen offset:{(8*(v//4) + v%4)*128}')
    e(f"""
    s_barrier
    s_branch L_k1_end
L_k1_q:
    s_add_u32 s16, s16, {WS_Q}
    s_addc_u32 s17, s17, 0
    s_lshl_b32 s18, s10, 1
    s_lshl_b32 s3, s3, 1
    s_add_u32 s4, s3, 4096
    v_lshlrev_b32 v2, 2, v13
    v_lshl_add_u32 v2, v6, 10, v2
    s_nop 7
    """)
    for v in range(16):
        for t_ in range(2):
            r = 64 + 16*t_ + v
            off = (8*(v//4) + v%4)*256 + 128*t_
            e(f'v_mul_f32 v{r}, s24, v{r}')
            e(f'buffer_store_dword v{r}, v2, s[16:19], {"s3" if off < 4096 else "s4"} offen offset:{off % 4096}')
    e("""
    s_barrier
    s_branch L_k1_end
    """)
    e(f"""
L_k1_special:
    s_cmp_lg_u32 s2, 0
    s_cbranch_scc1 L_k1_end
    s_cmp_gt_u32 s7, 512
    s_cbranch_scc1 L_k1_end
    s_load_dwordx2 s[8:9], s[0:1], 40
    s_load_dwordx2 s[12:13], s[0:1], 32
    s_load_dwordx2 s[16:17], s[0:1], 64
    s_mov_b32 s10, 16384
    s_mov_b32 s11, 0x20000
    s_mov_b32 s14, {129*128}
    s_mov_b32 s15, 0x20000
    s_mov_b32 s18, {16384+3072}
    s_mov_b32 s19, 0x20000
    v_lshlrev_b32 v1, 4, v0
    v_and_b32 v2, 0x3f0, v1            ; 16*lane
    s_movk_i32 s4, 8192
    s_movk_i32 s5, 16384
    s_waitcnt lgkmcnt(0)
    s_add_u32 s16, s16, {WS_WUF}
    s_addc_u32 s17, s17, 0
    s_cmp_eq_u32 s7, 512
    s_cbranch_scc1 L_k1_lt
    buffer_load_dwordx4 v[24:27], v1, s[8:11], 0 offen
    buffer_load_dwordx4 v[28:31], v1, s[8:11], s4 offen
    """)
    tr_addr(6, 3, 7, 8)
    e(f"""
    s_lshr_b32 s6, s7, 6
    s_and_b32 s3, s6, 3                ; mt
    s_lshr_b32 s6, s6, 2
    s_lshl_b32 s20, s3, 5
    s_lshl_b32 s21, s6, 13
    s_add_u32 s20, s20, s21
    v_add_u32 v6, s20, v6
    s_lshl_b32 s3, s3, 12
    s_lshl_b32 s6, s6, 11
    s_add_u32 s3, s3, s6
    s_waitcnt vmcnt(1)
    ds_write_b128 v1, v[24:27]
    s_waitcnt vmcnt(0)
    ds_write_b128 v1, v[28:31] offset:8192
    s_waitcnt lgkmcnt(0)
    s_barrier
    ds_read_b64_tr_b16 v[24:25], v6
    ds_read_b64_tr_b16 v[26:27], v6 offset:512
    ds_read_b64_tr_b16 v[28:29], v6 offset:4096
    ds_read_b64_tr_b16 v[30:31], v6 offset:4608
    s_waitcnt lgkmcnt(2)
    buffer_store_dwordx4 v[24:27], v2, s[16:19], s3 offen
    s_waitcnt lgkmcnt(0)
    buffer_store_dwordx4 v[28:31], v2, s[16:19], s3 offen offset:1024
    s_branch L_k1_end
L_k1_lt:
    v_and_b32 v14, 15, v0
    v_lshlrev_b32 v15, 3, v14
    buffer_load_dwordx2 v[12:13], v15, s[12:15], s5 offen
    v_lshrrev_b32 v32, 1, v0
    v_xor_b32 v32, v32, v0
    v_and_b32 v32, 16, v32
    v_and_b32 v33, 1, v0
    v_lshlrev_b32 v33, 4, v33
    v_mov_b32 v41, 0x3f80
    v_lshlrev_b32 v33, v33, v41
    v_bfe_u32 v41, v0, 1, 3
    v_or_b32 v41, v41, v32
    """)
    for d in range(8):
        e(f'v_cmp_eq_u32 vcc, {d}, v41')
        e('s_nop 1')
        e(f'v_cndmask_b32 v{16+d}, 0, v33, vcc')
    e(f"""
    v_cmp_eq_u32 vcc, 0, v32
    s_mov_b32 s24, {NEG_LOG2E}
    buffer_store_dwordx4 v[16:19], v2, s[16:19], s5 offen
    buffer_store_dwordx4 v[20:23], v2, s[16:19], s5 offen offset:1024
    s_waitcnt vmcnt(2)
    v_cndmask_b32 v12, 0, v12, vcc
    v_cndmask_b32 v13, 0, v13, vcc
    v_lshlrev_b32 v24, 16, v12
    v_and_b32 v25, 0xffff0000, v12
    v_lshlrev_b32 v26, 16, v13
    v_and_b32 v27, 0xffff0000, v13
    v_mul_f32 v24, s24, v24
    v_mul_f32 v25, s24, v25
    v_mul_f32 v26, s24, v26
    v_mul_f32 v27, s24, v27
    v_cvt_pk_bf16_f32 v24, v24, v25
    v_cvt_pk_bf16_f32 v25, v26, v27
    v_mov_b32 v26, 0
    v_mov_b32 v27, 0
    buffer_store_dwordx4 v[24:27], v2, s[16:19], s5 offen offset:2048
    s_branch L_k1_end
    """)

CNT, BASE, ST, FLAG = 0, 256, 512, 768
QS = 1024
NTAB = QS + 16384
AGG = NTAB + 5120
PART = AGG + 16384
RECS = PART + 32768
WUF = RECS + 39424
XSF = WUF + 16384
LT = XSF + 8192
AGGB = LT + 4096
K2_LDS = AGGB + 8704
PADREC = 0xffff
T0, T1, C, E, G0, G1, BS0, BS1, BX, AX, N, D, TMP, ACC, DS = 0, 16, 32, 48, 64, 72, 80, 84, 88, 90, 92, 96, 100, 104, 108
IDX, CH16, AV, ZERO, X, Y, Z, LQ, LA, AR, AN = 110, 111, 112, 113, 114, 115, 116, 117, 118, 119, 120
S_B, S_WV, S_X0 = 3, 4, 5
SRD_P, SRD_TAB, SRD_REC, SRD_X, SRD_Q, SRD_WF, SRD_OUT = 8, 12, 16, 20, 24, 28, 32
S_MASK = 36
S_RND, S_SAFE, S_TOT, S_NT, S_QN, S_RN, S_MORE = 54, 55, 56, 57, 58, 59, 60
S_M = 62
S_TMP = 64
S_L2E = 72

X_ = os.environ.get('X', '').split(',')
PRIO = [int(x) for x in os.environ.get('PRIO', '3,1').split(',') if x]
def mf(T, a, b, c):
    if 'nomfma' in X_: return
    e(f'v_mfma_f32_32x32x16_bf16 v[{T}:{T+15}], v[{a}:{a+3}], v[{b}:{b+3}], v[{c}:{c+15}]')
def mf8(T):
    if 'nomfma' in X_: return
    e(f'v_mfma_f32_32x32x8_bf16 v[{T}:{T+15}], v[{AX}:{AX+1}], v[{BX}:{BX+1}], v[{T}:{T+15}]')
BUILD_AX = f'v_lshlrev_b64 v[{AX}:{AX+1}], v{CH16}, v[{AV}:{AV+1}]'
def ld(g, off):
    if 'nogather' in X_: return 's_nop 0\ns_nop 0'
    return f'buffer_load_dwordx4 v[{g}:{g+3}], v[{IDX}:{IDX+1}], s[{SRD_P}:{SRD_P+3}], 0 idxen offen' + (f' offset:{off}' if off else '')
def load_c():
    e(f'v_add_u32_sdwa v{Y}, v{X}, v{LQ} {SDW} src0_sel:WORD_0 src1_sel:DWORD')
    for i in range(4):
        e(f'ds_read_b128 v[{C+4*i}:{C+4*i+3}], v{Y} offset:{QS}')
def exps(T, a, b):
    if 'noexp' in X_: return
    for i in range(a, b):
        e(f'v_exp_f32 v{E+i}, v{T+i}')
def p2(r):
    return f'v[{r}:{r+1}]'
def pk_phase(T, first, safe):
    if 'nopk' in X_: return
    if safe:
        for i in range(8):
            e(f'v_pk_add_f32 {p2(E+2*i)}, {p2(E+2*i)}, 1.0 op_sel_hi:[1,0]')
        for i in range(16):
            e(f'v_rcp_f32 v{E+i}, v{E+i}')
        for gd in range(4):
            for s in range(2):
                if first and gd == 0:
                    e(f'v_pk_mul_f32 {p2(N+2*s)}, {p2(T+2*s)}, {p2(E+2*s)}')
                else:
                    e(f'v_pk_fma_f32 {p2(N+2*s)}, {p2(T+4*gd+2*s)}, {p2(E+4*gd+2*s)}, {p2(N+2*s)}')
        return
    for gd in range(4):
        if first and gd == 0:
            for s in range(2):
                e(f'v_pk_add_f32 {p2(D+2*s)}, {p2(E+2*s)}, 1.0 op_sel_hi:[1,0]')
            continue
        for s in range(2):
            ns = (T+2*s) if (first and gd == 1) else (N+2*s)
            e(f'v_pk_fma_f32 {p2(TMP+2*s)}, {p2(ns)}, {p2(E+4*gd+2*s)}, {p2(ns)}')
        for s in range(2):
            e(f'v_pk_fma_f32 {p2(N+2*s)}, {p2(T+4*gd+2*s)}, {p2(D+2*s)}, {p2(TMP+2*s)}')
        for s in range(2):
            e(f'v_pk_fma_f32 {p2(D+2*s)}, {p2(D+2*s)}, {p2(E+4*gd+2*s)}, {p2(D+2*s)}')

def capture(fn, *a):
    n0 = len(out)
    fn(*a)
    r = [x.strip() for x in out[n0:]]
    del out[n0:]
    return r

def weave(main, fillers, start=0, step=2):
    fillers = list(fillers)
    for i, m in enumerate(main):
        e(m)
        if i >= start and (i - start) % step == 0 and fillers:
            e(fillers.pop(0))
    for f in fillers:
        e(f)

NCOVER = int(os.environ.get('NCOVER', '12'))
WSTEP = int(os.environ.get('WSTEP', '2'))
def msection(Tn, Gn, Tc, extra):
    mf(Tn, Gn, BS0, C)
    exps(Tc, 0, 3)
    mf(Tn, Gn+4, BS1, Tn)
    exps(Tc, 3, 6)
    mf8(Tn)
    exps(Tc, 6, 8)
    for x in extra: e(x)
    exps(Tc, 8, NCOVER)

def main_loop(safe):
    L = 'L_safe' if safe else 'L_fast'
    M = f's[{S_M}:{S_M+1}]'
    e('.p2align 6')
    e(f'{L}_loop:')
    msection(T1, G1, T0, [BUILD_AX, f'v_cmp_gt_i32 vcc, 0, v{X}', f'v_add_u32 v{AN}, 4, v{AN}'])
    e(ld(G1, 0))
    flush = f"""s_mov_b64 exec, {M}
    s_cbranch_execz {L}_nf
    ds_write_b128 v{Z}, v[{ACC}:{ACC+3}] offset:{PART}
    v_add_u32_e64 v{Z}, v{Y}, v{LA}
    ds_read_b128 v[{ACC}:{ACC+3}], v{Z} offset:{PART}
{L}_nf:
    s_mov_b64 exec, vcc
    s_cbranch_execz {L}_nc
    """ + '\n'.join(capture(load_c)) + f"""
{L}_nc:
    s_mov_b64 exec, -1
    s_mov_b64 {M}, vcc"""
    weave(capture(exps, T0, NCOVER, 16), [ld(G1+4, 64), flush], 1, 2)
    fl = [f'ds_read_u16 v{IDX}, v{AR} offset:64', f'ds_read_u16 v{AV}, v{AR} offset:50', f'ds_read_b32 v{X}, v{AN} offset:{NTAB+4}']
    weave(capture(pk_phase, T0, True, safe), fl, 1, WSTEP)
    e(f's_sub_u32 s{S_NT}, s{S_NT}, 1')
    e('s_waitcnt vmcnt(2) lgkmcnt(1)')
    msection(T0, G0, T1, [BUILD_AX])
    e(ld(G0, 0))
    weave(capture(exps, T1, NCOVER, 16), [ld(G0+4, 64)], 1, 2)
    fl = [f'ds_read_u16 v{IDX}, v{AR} offset:80', f'ds_read_u16 v{AV}, v{AR} offset:66']
    if 'iter' in X_ and not safe:
        fl += [('s_memrealtime' if 'iterrt' in X_ else 's_memtime') + ' s[98:99]', f's_mov_b32 m0, s{S_NT}\ns_nop 0']
    if PRIO and not safe:
        fl += [f's_cmp_eq_u32 s{S_NT}, {PRIO[0]}\ns_cbranch_scc0 {L}_p1\ns_setprio 2\n{L}_p1:\ns_cmp_eq_u32 s{S_NT}, {PRIO[1]}\ns_cbranch_scc0 {L}_p2\ns_setprio 1\n{L}_p2:']
    weave(capture(pk_phase, T1, False, safe), fl, 1, WSTEP)
    if not safe:
        for i in range(4):
            e(f'v_rcp_f32 v{TMP+i}, v{D+i}')
        e(f'v_pk_fma_f32 {p2(DS)}, {p2(D)}, {p2(D+2)}, {p2(DS)}')
    e(f'v_add_u32_e64 v{AR}, 32, v{AR}')
    e(f's_cmp_lg_u32 s{S_NT}, 0')
    e('s_waitcnt vmcnt(2) lgkmcnt(0)')
    if 'iter' in X_ and not safe:
        e('s_movreld_b32 s84, s98\ns_nop 0')
    for s in range(2):
        if safe:
            e(f'v_pk_add_f32 {p2(ACC+2*s)}, {p2(N+2*s)}, {p2(ACC+2*s)}')
        else:
            e(f'v_pk_fma_f32 {p2(ACC+2*s)}, {p2(N+2*s)}, {p2(TMP+2*s)}, {p2(ACC+2*s)}')
    e(f's_cbranch_scc1 {L}_loop')
    e(f'ds_write_b128 v{Z}, v[{ACC}:{ACC+3}] offset:{PART}')

def k2():
    e(""".globl gather_scatter__mpnn_edge_mlp__graph_kernel
.p2align 8
.type gather_scatter__mpnn_edge_mlp__graph_kernel,@function
gather_scatter__mpnn_edge_mlp__graph_kernel:""")
    def mk(i): return f's[{S_MASK+2*i}:{S_MASK+2*i+1}]'
    e(f"""
    @INIT
    s_cmp_ge_u32 s2, 256
    s_cbranch_scc1 L_k2_end
    s_load_dwordx2 s[{SRD_P}:{SRD_P+1}], s[0:1], 64
    s_load_dwordx2 s[{SRD_X}:{SRD_X+1}], s[0:1], 0
    s_load_dwordx2 s[{SRD_OUT}:{SRD_OUT+1}], s[0:1], 48
    v_readfirstlane_b32 s{S_WV}, v0
    s_and_b32 s{S_B}, s2, 7
    s_lshl_b32 s{S_B}, s{S_B}, 5
    s_lshr_b32 s{S_TMP}, s2, 3
    s_add_u32 s{S_B}, s{S_B}, s{S_TMP}
    s_mul_i32 s{S_X0}, s{S_B}, {NB*128}
    s_lshl_b32 s{S_B}, s{S_B}, 2
    s_lshr_b32 s{S_WV}, s{S_WV}, 6
    s_mov_b32 s{SRD_TAB+2}, {G*1024}
    s_mov_b32 s{SRD_TAB+3}, 0x20000
    s_add_u32 s6, s{S_X0}, {(NB+1)*128}
    s_min_u32 s{SRD_X+2}, s6, {NODES*128}
    s_mov_b32 s{SRD_X+3}, 0x20000
    s_lshl_b32 s{SRD_Q+2}, s{SRD_X+2}, 1
    s_mov_b32 s{SRD_Q+3}, 0x20000
    s_mov_b32 s{SRD_P+2}, {NODES}
    s_mov_b32 s{SRD_P+3}, 0x20000
    s_mov_b32 s{SRD_REC+2}, {G*REC_STRIDE}
    s_mov_b32 s{SRD_REC+3}, 0x20000
    s_mov_b32 s{SRD_WF+2}, {16384+3072}
    s_mov_b32 s{SRD_WF+3}, 0x20000
    s_mov_b32 s{SRD_OUT+2}, {NODES*128}
    s_mov_b32 s{SRD_OUT+3}, 0x20000
    s_mov_b32 s{S_RND}, 0
    s_mov_b32 s{S_SAFE}, 0
    s_mov_b32 s{S_L2E}, {NEG_LOG2E}
    v_lshlrev_b32 v1, 4, v0            ; 16 t
    v_and_b32 v{LQ}, 0xf0, v1
    v_and_b32 v{LA}, 0x3f00, v1
    v_and_b32 v{CH16}, 0x30, v1
    v_mov_b32 v{DS}, 0
    v_mov_b32 v{DS+1}, 0
    v_mov_b32 v{ZERO}, 0
    ds_write_b32 v{ZERO}, v{ZERO} offset:{FLAG}
    s_waitcnt lgkmcnt(0)
    @STAMP kernarg
    s_add_u32 s{SRD_TAB}, s{SRD_P}, {WS_TAB}
    s_addc_u32 s{SRD_TAB+1}, s{SRD_P+1}, 0
    s_add_u32 s{SRD_Q}, s{SRD_P}, {WS_Q}
    s_addc_u32 s{SRD_Q+1}, s{SRD_P+1}, 0
    s_add_u32 s{SRD_REC}, s{SRD_P}, {WS_REC}
    s_addc_u32 s{SRD_REC+1}, s{SRD_P+1}, 0
    s_add_u32 s{SRD_WF}, s{SRD_P}, {WS_WUF}
    s_addc_u32 s{SRD_WF+1}, s{SRD_P+1}, 0
    s_or_b32 s{SRD_P+1}, s{SRD_P+1}, {128<<16}
L_round:
    s_cmp_lt_u32 s{S_WV}, 13
    s_cbranch_scc1 L_no_lt
    s_sub_u32 s6, s{S_WV}, 13
    s_lshl_b32 s6, s6, 10
    s_add_u32 m0, s6, {LT}
    s_movk_i32 s6, {16384 - 13*1024}
    buffer_load_dwordx4 v1, s[{SRD_WF}:{SRD_WF+3}], s6 offen lds
L_no_lt:
    v_lshrrev_b32 v2, 2, v0            ; g
    v_lshlrev_b32 v3, 10, v2
    s_lshl_b32 s6, s{S_X0}, 1
    buffer_load_dword v46, v3, s[{SRD_TAB}:{SRD_TAB+3}], s{S_B} offen
    buffer_load_dwordx4 v[4:7], v1, s[{SRD_Q}:{SRD_Q+3}], s6 offen
    v_mov_b32 v28, 0
    v_mov_b32 v29, 0
    v_mov_b32 v30, 0
    v_mov_b32 v31, 0
    v_and_b32 v33, 0xfc, v0
    ds_write_b32 v33, v28
    ds_write_b128 v1, v[28:31] offset:{PART}
    ds_write_b128 v1, v[28:31] offset:{PART+16384}
    v_and_b32 v3, 3, v0
    v_add_u32 v3, s{S_RND}, v3
    v_mul_u32_u24 v2, {REC_STRIDE//16}, v2
    v_add_u32 v2, v2, v3
    v_mul_u32_u24 v3, 3, v3
    v_mov_b32 v34, 0x7ffffff0
    s_waitcnt vmcnt(1)
    @STAMP tab
    v_sub_u32_sdwa v37, v46, v3 {SDW} src0_sel:WORD_1 src1_sel:DWORD
    v_add_u32_sdwa v2, v46, v2 {SDW} src0_sel:WORD_0 src1_sel:DWORD
    v_cmp_lt_i32 {mk(0)}, 0, v37
    v_cmp_lt_i32 {mk(3)}, 12, v37
    v_cmp_lt_i32 {mk(6)}, 24, v37
    v_lshlrev_b32 v2, 4, v2
    v_cndmask_b32 v38, v34, v2, {mk(0)}
    buffer_load_dwordx4 v[16:19], v38, s[{SRD_REC}:{SRD_REC+3}], 0 offen
    v_cndmask_b32 v39, v34, v2, {mk(3)}
    buffer_load_dwordx4 v[20:23], v39, s[{SRD_REC}:{SRD_REC+3}], 0 offen offset:64
    v_cndmask_b32 v40, v34, v2, {mk(6)}
    buffer_load_dwordx4 v[24:27], v40, s[{SRD_REC}:{SRD_REC+3}], 0 offen offset:128
    v_and_b32 v46, 63, v0
    v_lshlrev_b32 v8, 3, v{LQ}
    v_and_or_b32 v8, v0, 16, v8
    s_lshr_b32 s6, s2, 3
    s_mul_i32 s6, s6, 391
    v_add_u32 v12, s6, v0
    s_lshl_b32 s{S_TMP}, s{S_WV}, 10
    s_add_u32 m0, s{S_TMP}, {WUF}
    s_lshr_b32 s6, s{S_WV}, 2
    s_lshl_b32 s6, s6, 11
    s_and_b32 s7, s{S_WV}, 3
    s_lshl_b32 s7, s7, 5
    s_add_u32 s6, s6, s7
    s_add_u32 s6, s6, s{S_X0}
    s_lshl_b32 s7, s{S_WV}, 9
    s_waitcnt lgkmcnt(0)
    s_barrier
    @STAMP bar1
    buffer_load_dwordx4 v1, s[{SRD_WF}:{SRD_WF+3}], 0 offen lds
    s_add_u32 m0, s7, {XSF}
    s_mov_b32 exec_hi, 0
    buffer_load_dwordx4 v8, s[{SRD_X}:{SRD_X+3}], s6 offen lds
    s_mov_b32 exec_hi, -1
    v_cmp_lt_i32 vcc, 36, v37
    v_cmp_lt_i32 {mk(1)}, 1, v37
    v_cmp_lt_i32 {mk(2)}, 2, v37
    v_cmp_lt_i32 {mk(4)}, 13, v37
    v_cmp_lt_i32 {mk(5)}, 14, v37
    v_cmp_lt_i32 {mk(7)}, 25, v37
    v_cmp_lt_i32 {mk(8)}, 26, v37
    v_mov_b32 v3, 1
    s_mov_b64 exec, vcc
    ds_write_b32 v{ZERO}, v3 offset:240
    s_mov_b64 exec, -1
    v_lshlrev_b32 v47, 2, v46
    v_lshrrev_b32 v57, 6, v{LA}        ; 4n
    v_and_b32 v58, 15, v0              ; j
    v_bfe_u32 v60, v0, 2, 1
    v_and_b32 v61, 32, v0
    v_lshl_add_u32 v60, v60, 6, v61    ; 32*qg
    v_lshrrev_b32 v62, 1, v0
    v_and_b32 v62, 12, v62             ; 4*gD
    v_and_b32 v61, 12, v57             ; 4*qd
    s_waitcnt vmcnt(5)
    ds_write_b128 v1, v[4:7] offset:{QS}
    """)
    for i in range(4):
        e(f'v_exp_f32 v{8+i}, v{4+i}')
    for i in range(4):
        e(f'v_add_f32 v{8+i}, 1.0, v{8+i}')
    for i in range(4):
        e(f'v_rcp_f32 v{8+i}, v{8+i}')
    for i in range(4):
        e(f'v_mul_f32 v{8+i}, v{4+i}, v{8+i}')
    for k in range(3):
        if k == 2:
            e(f's_cmp_eq_u64 {mk(6)}, 0')
            e('s_cbranch_scc1 L_skipA')
        e(f's_waitcnt vmcnt({4-k})')
        if k == 0: e('@STAMP rec0')
        m = 19 + 4*k
        for i in range(3):
            e(f's_mov_b64 exec, {mk(3*k+i)}')
            e(f'v_bfe_u32 v{28+3*k+i}, v{m}, {8*i}, 8')
            e(f'ds_add_rtn_u32 v{37+3*k+i}, v{28+3*k+i}, v3')
    e(f"""
L_skipA:
    s_mov_b64 exec, -1
    s_cmp_gt_u32 s{S_WV}, 6
    s_cbranch_scc1 L_no_pf
    buffer_load_dword v{E+15}, v12, s[{SRD_P}:{SRD_P+3}], 0 idxen
L_no_pf:
    s_mov_b32 s{S_TMP}, {RECS}
    s_waitcnt lgkmcnt(0)
    @STAMP atomics
    s_barrier
    @STAMP bar2
    ; ---- phase B
    ds_read_b32 v48, v47
    ds_read_b32 v52, v57 offset:4
    s_waitcnt lgkmcnt(1)
    v_add_u32 v49, 7, v48
    v_lshrrev_b32 v49, 3, v49
    v_readlane_b32 s{S_MORE}, v48, 60
    s_nop 0
    v_add_u32_dpp v50, v49, v49 row_shr:1 row_mask:0xf bank_mask:0xf bound_ctrl:0
    """)
    for d in ('row_shr:2', 'row_shr:4', 'row_shr:8'):
        e('s_nop 1')
        e(f'v_add_u32_dpp v50, v50, v50 {d} row_mask:0xf bank_mask:0xf bound_ctrl:0')
    e(f"""
    s_nop 1
    v_add_u32_dpp v50, v50, v50 row_bcast:15 row_mask:0xa bank_mask:0xf
    s_nop 1
    v_add_u32_dpp v50, v50, v50 row_bcast:31 row_mask:0xc bank_mask:0xf
    v_sub_u32 v49, v50, v49            ; uoff
    v_readlane_b32 s{S_TOT}, v50, 50
    v_lshl_add_u32 v51, v49, 5, s{S_TMP}
    s_waitcnt lgkmcnt(0)
    @STAMP scanned
    ds_write_b32 v47, v51 offset:{BASE}
    ds_read_b32 v54, v57 offset:{BASE+4}
    """)
    for sl in range(6):
        e(f's_mov_b64 exec, {mk(sl)}')
        e(f'ds_read_b32 v{64+sl}, v{28+sl} offset:{BASE}')
    e(f"""
    s_mov_b64 exec, -1
    v_sub_u32 v15, 0, v52
    v_and_b32 v15, 7, v15              ; npad
    v_cvt_f32_u32 v53, v15
    s_add_u32 s6, s{S_TOT}, 3
    s_lshr_b32 s6, s6, 2               ; nT
    s_lshr_b32 s{S_QN}, s6, 4
    s_and_b32 s{S_RN}, s6, 15
    v_mul_f32 v8, v53, -v8
    v_mul_f32 v9, v53, -v9
    v_mul_f32 v10, v53, -v10
    v_mul_f32 v11, v53, -v11
    s_cmp_lt_u32 s{S_WV}, s{S_RN}
    s_addc_u32 s{S_NT}, s{S_QN}, 0
    s_min_u32 s6, s{S_WV}, s{S_RN}
    s_mul_i32 s7, s{S_WV}, s{S_QN}
    s_add_u32 s6, s6, s7
    s_lshl_b32 s7, s6, 4               ; ustart*4
    s_lshl_b32 s6, s6, 7               ; ustart*32
    s_add_u32 s6, s6, {RECS}
    s_cmp_eq_u32 s{S_RND}, 0
    s_cbranch_scc1 L_agg0
    ds_read_b128 v[4:7], v1 offset:{AGG}
    s_waitcnt lgkmcnt(0)
    v_pk_add_f32 v[8:9], v[8:9], v[4:5]
    v_pk_add_f32 v[10:11], v[10:11], v[6:7]
L_agg0:
    s_waitcnt lgkmcnt(0)
    @STAMP based
    """)
    recreg = [16, 17, 18, 20, 21, 22, 24, 25, 26]
    for sl in range(6):
        e(f's_mov_b64 exec, {mk(sl)}')
        e(f'v_lshl_add_u32 v{64+sl}, v{37+sl}, 2, v{64+sl}')
        e(f'ds_write_b32 v{64+sl}, v{recreg[sl]}')
    e(f"""
    s_cmp_eq_u64 {mk(6)}, 0
    s_cbranch_scc1 L_skipB
    """)
    for sl in range(6, 9):
        e(f's_mov_b64 exec, {mk(sl)}')
        e(f'ds_read_b32 v{64+sl}, v{28+sl} offset:{BASE}')
    e('s_waitcnt lgkmcnt(0)')
    for sl in range(6, 9):
        e(f's_mov_b64 exec, {mk(sl)}')
        e(f'v_lshl_add_u32 v{64+sl}, v{37+sl}, 2, v{64+sl}')
        e(f'ds_write_b32 v{64+sl}, v{recreg[sl]}')
    e(f"""
L_skipB:
    s_mov_b64 exec, -1
    v_mad_u32_u24 v{AR}, v60, s{S_NT}, v62
    v_mul_u32_u24 v{AN}, s{S_NT}, v61
    v_add_u32 v{AR}, s6, v{AR}
    v_add_u32 v{AN}, s7, v{AN}
    v_mov_b32 v55, {PADREC}
    s_cmp_ge_u32 s{S_WV}, 13
    s_cbranch_scc1 L_special
    ds_write_b128 v1, v[8:11] offset:{AGG}
    v_cmp_gt_u32 vcc, v15, v58
    v_add_u32 v57, v52, v58
    v_lshl_add_u32 v57, v57, 2, v54
    v_lshrrev_b32 v54, 3, v54
    v_lshl_add_u32 v54, v58, 2, v54
    v_lshlrev_b32 v58, 3, v58          ; 8j
    v_mov_b32 v59, v{LA}
    s_mov_b64 exec, vcc
    ds_write_b32 v57, v55
    s_mov_b32 exec_lo, 0x10001
    s_mov_b32 exec_hi, 0x10001
    v_or_b32 v59, 0x80000000, v59
    s_mov_b64 exec, -1
    v_cmp_gt_u32 vcc, v52, v58
    s_mov_b64 exec, vcc
    ds_write_b32 v54, v59 offset:{NTAB-RECS//8}
L_ntab:
    v_add_u32 v58, 128, v58
    v_cmp_gt_u32 vcc, v52, v58
    s_and_b64 exec, exec, vcc
    s_cbranch_execz L_tables_done
    v_add_u32 v54, 64, v54
    ds_write_b32 v54, v{LA} offset:{NTAB-RECS//8}
    s_branch L_ntab
L_special:
    s_cmp_eq_u32 s{S_WV}, 14
    s_cbranch_scc0 L_special2
    s_add_u32 s6, s{S_QN}, 1
    s_lshl_b32 s{S_TMP}, s{S_RN}, 2    ; 4 rn
    s_mul_i32 s7, s{S_TMP}, s6         ; thr
    v_cvt_f32_u32 v52, s6
    v_cvt_f32_u32 v53, s{S_QN}
    v_rcp_f32 v52, v52
    v_rcp_f32 v53, v53
    v_subrev_u32 v54, s7, v49
    v_cvt_f32_u32 v55, v49
    v_cvt_f32_u32 v54, v54
    v_add_f32 v55, 0.5, v55
    v_add_f32 v54, 0.5, v54
    v_mul_f32 v55, v55, v52
    v_mul_f32 v54, v54, v53
    v_cvt_u32_f32 v55, v55
    v_cvt_u32_f32 v54, v54
    v_cmp_gt_u32 vcc, s7, v49
    v_min_u32 v54, 64, v54
    v_add_u32 v54, s{S_TMP}, v54
    v_cndmask_b32 v54, v54, v55, vcc
    v_min_u32 v54, 64, v54
    v_add_lshl_u32 v54, v54, v46, 8    ; 256*(slot+1)
    ds_write_b32 v47, v54 offset:{ST}
    s_branch L_tables_done
L_special2:
    s_cmp_eq_u32 s{S_WV}, 15
    s_cbranch_scc0 L_tables_done
    s_lshl_b32 s6, s{S_TOT}, 5
    s_add_u32 s6, s6, {RECS}
    s_lshl_b32 s7, s{S_TOT}, 2
    v_add_u32 v57, s6, v47
    v_add_u32 v54, s7, v47
    v_mov_b32 v59, {0x80000000 + NB*256}
    s_mov_b64 exec, 0xffffff
    ds_write_b32 v57, v55
    s_mov_b64 exec, 7
    ds_write_b32 v54, v59 offset:{NTAB}
L_tables_done:
    s_mov_b64 exec, -1
    v_lshlrev_b32 v47, 2, v47
    v_add_u32 v47, {LT}, v47
    s_waitcnt lgkmcnt(0)
    @STAMP phaseB
    s_barrier
    @STAMP bar3
    s_cmp_eq_u32 s{S_NT}, 0
    s_cbranch_scc1 L_skip_loop
    s_setprio {3 if PRIO else 0}
    ds_read_u16 v{IDX}, v{AR}
    ds_read_u16 v{N}, v{AR} offset:16
    ds_read_b32 v{X}, v{AN} offset:{NTAB}
    ds_read_u16 v{AV}, v{AR} offset:2
    ds_read_u16 v{N+1}, v{AR} offset:32
    ds_read_u16 v{N+2}, v{AR} offset:18
    ds_read_b128 v[{BS0}:{BS0+3}], v47
    ds_read_b128 v[{BS1}:{BS1+3}], v47 offset:1024
    ds_read_b64 v[{BX}:{BX+1}], v47 offset:2048
    s_mov_b64 s[{S_M}:{S_M+1}], 0
    s_waitcnt lgkmcnt(8)
    {ld(G0, 0)}
    {ld(G0+4, 64)}
    s_waitcnt lgkmcnt(6)
    v_mov_b32 v{IDX}, v{N}
    {ld(G1, 0)}
    {ld(G1+4, 64)}
    """)
    load_c()
    e(f"""
    ds_read_b32 v{X}, v{AN} offset:{NTAB+4}
    v_add_u32 v{Z}, v{Y}, v{LA}
    v_mov_b32 v{ACC}, 0
    v_mov_b32 v{ACC+1}, 0
    v_mov_b32 v{ACC+2}, 0
    v_mov_b32 v{ACC+3}, 0
    s_waitcnt lgkmcnt(8)
    {BUILD_AX}
    v_mov_b32 v{IDX}, v{N+1}
    v_mov_b32 v{AV}, v{N+2}
    s_waitcnt vmcnt(2) lgkmcnt(1)
    """)
    mf(T0, G0, BS0, C)
    mf(T0, G0+4, BS1, T0)
    mf8(T0)
    e(f"""
    {ld(G0, 0)}
    {ld(G0+4, 64)}
    {BUILD_AX}
    ds_read_u16 v{IDX}, v{AR} offset:48
    ds_read_u16 v{AV}, v{AR} offset:34
    s_nop 3
    s_waitcnt vmcnt(2) lgkmcnt(0)
    @STAMP pipeprologue
    s_cmp_lg_u32 s{S_SAFE}, 0
    s_cbranch_scc1 L_safe_loop
    """)
    main_loop(False)
    e(f"""
L_loop_done:
    @STAMP loopdone
    s_setprio 0
    s_movk_i32 s6, 0x300
    v_and_or_b32 v28, v{LA}, s6, v{LQ}  ; 16*lane
    s_and_b32 s{S_TMP}, s{S_WV}, 3     ; mt
    s_lshr_b32 s{S_TMP+1}, s{S_WV}, 2  ; nt
    s_lshl_b32 s6, s{S_TMP}, 12
    s_add_u32 s6, s6, {WUF}
    s_lshl_b32 s7, s{S_TMP+1}, 11
    s_add_u32 s7, s7, {XSF}
    v_add_u32 v29, s6, v28
    v_add_u32 v30, s7, v28
    v_lshrrev_b32 v13, 6, v{LA}        ; 4n
    v_add_u32 v1, v{LA}, v{LQ}         ; 16 t
    ds_read_b128 v[32:35], v29
    ds_read_b128 v[48:51], v30
    ds_read_b128 v[36:39], v29 offset:1024
    ds_read_b128 v[52:55], v30 offset:1024
    ds_read2_b32 v[10:11], v13 offset0:{(ST+4)//4} offset1:{(ST+8)//4}
    ds_read_b128 v[4:7], v1 offset:{AGG}
    ds_read_b128 v[40:43], v29 offset:2048
    ds_read_b128 v[44:47], v29 offset:3072
    v_add_f32 v{TMP}, v{DS}, v{DS+1}
    s_movk_i32 s6, 0x207
    v_and_b32 v31, 12, v13             ; 4*kq
    v_cmp_class_f32 vcc, v{TMP}, s6
    s_mul_i32 s7, s{S_TMP+1}, 2176
    s_add_u32 s7, s7, {AGGB}
    v_lshl_add_u32 v29, v31, 2, v28
    v_add_u32 v29, s7, v29
    v_lshrrev_b32 v14, 5, v{LQ}
    v_mul_u32_u24 v15, 272, v14
    v_bfe_u32 v14, v{LQ}, 4, 1
    v_lshl_add_u32 v15, v14, 3, v15
    v_lshl_add_u32 v15, v31, 2, v15
    s_lshl_b32 s6, s{S_TMP}, 6
    s_add_u32 s7, s7, s6
    v_add_u32 v15, s7, v15
    v_lshlrev_b32 v60, 3, v{LQ}
    v_lshl_add_u32 v60, v31, 1, v60
    v_mov_b32 v{TMP+2}, 1
    s_mov_b64 exec, vcc
    ds_write_b32 v{ZERO}, v{TMP+2} offset:{FLAG}
    s_mov_b64 exec, -1
    s_waitcnt lgkmcnt(0)
    v_mfma_f32_16x16x32_bf16 v[56:59], v[32:35], v[48:51], 0
    v_mfma_f32_16x16x32_bf16 v[56:59], v[36:39], v[52:55], v[56:59]
    v_sub_u32 v11, v11, v10            ; 256*count
    v_add_u32 v10, v{LQ}, v10
    s_movk_i32 s6, 256
    s_movk_i32 s7, 512
    v_cmp_lt_u32 s[{S_TMP+2}:{S_TMP+3}], s6, v11
    v_cmp_lt_u32 s[{S_TMP+4}:{S_TMP+5}], s7, v11
    s_cmp_eq_u32 s{S_WV}, 12
    s_cselect_b64 s[{S_TMP+6}:{S_TMP+7}], 0xffff, -1
    s_cmp_gt_u32 s{S_WV}, 12
    s_barrier
    @STAMP bar4
    ; ---- fold
    s_cbranch_scc1 L_fold_done
    s_mov_b64 exec, s[{S_TMP+6}:{S_TMP+7}]
    ds_read_b128 v[16:19], v10 offset:{PART-256}
    ds_read_b128 v[20:23], v10 offset:{PART}
    ds_read_b128 v[24:27], v10 offset:{PART+256}
    s_waitcnt lgkmcnt(2)
    v_pk_add_f32 v[4:5], v[4:5], v[16:17]
    v_pk_add_f32 v[6:7], v[6:7], v[18:19]
    s_and_b64 exec, exec, s[{S_TMP+2}:{S_TMP+3}]
    s_waitcnt lgkmcnt(1)
    v_pk_add_f32 v[4:5], v[4:5], v[20:21]
    v_pk_add_f32 v[6:7], v[6:7], v[22:23]
    s_and_b64 exec, exec, s[{S_TMP+4}:{S_TMP+5}]
    s_waitcnt lgkmcnt(0)
    v_pk_add_f32 v[4:5], v[4:5], v[24:25]
    v_pk_add_f32 v[6:7], v[6:7], v[26:27]
L_fold:
    s_add_u32 s7, s7, 256
    v_cmp_lt_u32 vcc, s7, v11
    s_and_b64 exec, exec, vcc
    s_cbranch_execz L_fold2
    ds_read_b128 v[16:19], v10 offset:{PART+512}
    v_add_u32 v10, 256, v10
    s_waitcnt lgkmcnt(0)
    v_pk_add_f32 v[4:5], v[4:5], v[16:17]
    v_pk_add_f32 v[6:7], v[6:7], v[18:19]
    s_branch L_fold
L_fold2:
    s_mov_b64 exec, s[{S_TMP+6}:{S_TMP+7}]
    s_cmp_eq_u32 s{S_MORE}, 0
    s_cbranch_scc1 L_fold4
    ds_write_b128 v1, v[4:7] offset:{AGG}
    s_branch L_fold_done
L_fold4:
    s_mov_b32 s6, {NEG_LN2}
    s_mov_b32 s7, {NEG_LN2}
    v_pk_mul_f32 v[4:5], v[4:5], s[6:7]
    v_pk_mul_f32 v[6:7], v[6:7], s[6:7]
    v_cvt_pk_bf16_f32 v4, v4, v5
    v_cvt_pk_bf16_f32 v5, v6, v7
    ds_write_b64 v15, v[4:5]
L_fold_done:
    s_mov_b64 exec, -1
    s_lshl_b32 s6, s{S_TMP}, 5
    s_add_u32 s6, s6, s{S_X0}
    s_lshl_b32 s7, s{S_TMP+1}, 11
    s_add_u32 s6, s6, s7
    s_cmp_eq_u32 s{S_TMP+1}, 3
    s_cselect_b32 s{S_TMP+2}, 0x10001, -1
    s_cmp_eq_u32 s{S_MORE}, 0
    s_waitcnt lgkmcnt(0)
    s_barrier
    s_cbranch_scc1 L_final
    s_add_u32 s{S_RND}, s{S_RND}, 12
L_again:
    v_lshrrev_b32 v0, 4, v1
    s_waitcnt vmcnt(0)
    s_branch L_round
L_final:
    @STAMP bar5
    ds_read_b128 v[48:51], v29
    ds_read_b128 v[52:55], v29 offset:1088
    s_movk_i32 s7, 0x207
    s_waitcnt lgkmcnt(1)
    v_mfma_f32_16x16x32_bf16 v[56:59], v[40:43], v[48:51], v[56:59]
    s_waitcnt lgkmcnt(0)
    v_mfma_f32_16x16x32_bf16 v[56:59], v[44:47], v[52:55], v[56:59]
    s_nop 5
    s_mov_b32 exec_lo, s{S_TMP+2}
    s_mov_b32 exec_hi, s{S_TMP+2}
    """)
    for i in range(4):
        e(f'v_mul_f32 v{4+i}, s{S_L2E}, v{56+i}')
    for i in range(4):
        e(f'v_exp_f32 v{4+i}, v{4+i}')
    e('v_cmp_class_f32 vcc, v56, s7')
    for i in range(4):
        e(f'v_add_f32 v{4+i}, 1.0, v{4+i}')
    for i in range(4):
        e(f'v_rcp_f32 v{4+i}, v{4+i}')
    for i in range(4):
        e(f'v_mul_f32 v{4+i}, v{56+i}, v{4+i}')
    e(f"""
    v_cvt_pk_bf16_f32 v4, v4, v5
    v_cvt_pk_bf16_f32 v5, v6, v7
    buffer_store_dwordx2 v[4:5], v60, s[{SRD_OUT}:{SRD_OUT+3}], s6 offen
    s_cmp_lg_u32 s{S_SAFE}, 0
    s_cbranch_scc1 L_k2_end
    s_mov_b64 exec, vcc
    ds_write_b32 v{ZERO}, v{TMP+2} offset:{FLAG}
    s_mov_b64 exec, -1
    s_waitcnt lgkmcnt(0)
    s_barrier
    ds_read_b32 v2, v{ZERO} offset:{FLAG}
    s_waitcnt lgkmcnt(0)
    v_readfirstlane_b32 s6, v2
    s_cmp_eq_u32 s6, {'s6' if 'nosafe' in X_ else 0}
    s_cbranch_scc1 L_k2_end
    s_mov_b32 s{S_SAFE}, 1
    s_mov_b32 s{S_RND}, 0
    v_mov_b32 v{DS}, 0
    v_mov_b32 v{DS+1}, 0
    s_branch L_again
L_k2_end:
    @FLUSH 1
    s_endpgm
    """)
    main_loop(True)
    e('L_skip_loop:')
    e('s_waitcnt vmcnt(0)')
    e('s_branch L_loop_done')

HEADER = f'''; MPNN edge-MLP layer: two launches.
;  part_kernel: buckets edges by destination range (LDS counting sort) and precomputes P = -log2e * x @ W1 (bf16)
;  main kernel: per bucket of {NB} nodes: sort by node, gather P rows, MFMA unpack(+a*w3+Q), silu sum, update GEMM
; @launch kernel=part_kernel grid=({G+1},1,1) block=({K1_BLOCK},1,1) lds={K1_LDS}
; @launch kernel=gather_scatter__mpnn_edge_mlp__graph_kernel grid=(256,1,1) block=(1024,1,1) lds={K2_LDS}
.amdgcn_target "amdgcn-amd-amdhsa--gfx950"
.text'''

def main():
    k1()
    k2()
    e('.section .rodata,"a"')
    e('.p2align 6')
    kd('part_kernel', 96, 40)
    e('.p2align 6')
    kd('gather_scatter__mpnn_edge_mlp__graph_kernel', 128, 80)
    path = sys.argv[1] if len(sys.argv) > 1 else 'gather_scatter__mpnn_edge_mlp__graph.s'
    open(path, 'w').write(HEADER + '\n' + '\n'.join(out) + '\n')

main()
```

```python
import sys, struct

NODES = 12500
EDGES = 800000
NB = 49
G = 250
CH = 3200
K1_BLOCK = 896
WS_P = 0
WS_Q = 0x200000
WS_TAB = 0x520000
WS_WUF = 0x560000
WS_REC = 0x600000
REC_STRIDE = 20480
INC = 10923

def f32(x):
    return '0x%08x' % struct.unpack('<I', struct.pack('<f', x))[0]
NEG_LOG2E = f32(-1.4426950408889634)
NEG_LN2 = f32(-0.6931471805599453)

out = []
def e(s=''):
    for line in s.split('\n'):
        line = line.strip()
        if not line:
            continue
        if line.startswith('@STAMP'):
            stamp(line[6:].strip()); continue
        if line.startswith('@INIT'):
            stamp_init(); continue
        if line.startswith('@FLUSH'):
            stamp('end'); stamp_rt(1); stamp_flush(int(line[6:])); continue
        if line.endswith(':') or line.startswith('.') or line.startswith(';'):
            out.append(line)
        else:
            out.append('    ' + line)

import os
STAMP = int(os.environ.get('STAMP', '0'))
nstamp = [0]
RTS = os.environ.get('RTS', '').split(',')
kidx_ = [0]
def stamp(name=''):
    if not STAMP: return
    if STAMP == 2:
        k = kidx_[0]
        for j in range(2):
            if len(RTS) > 2*k+j and RTS[2*k+j] == name:
                e(f"""s_waitcnt lgkmcnt(0)
                s_memrealtime s[98:99]
                s_waitcnt lgkmcnt(0)
                s_mov_b32 s{76+j}, s98""")
        return
    if STAMP == 4:
        if name not in ('entry', 'end', 'bar3', 'bar4', 'bar3rt', 'bar4rt', 'loopdone', 'pipeprologue'): return
        if name in ('bar3', 'bar4'): stamp(name + 'rt')
    i = nstamp[0]; nstamp[0] += 1
    e(f"""s_waitcnt lgkmcnt(0)
    {'s_memrealtime' if (STAMP == 3 or name.endswith('rt')) else 's_memtime'} s[98:99]
    s_waitcnt lgkmcnt(0)
    s_mov_b32 s{76+i}, s98""")
def stamp_rt(idx):
    if not STAMP: return
    e(f"""s_waitcnt lgkmcnt(0)
    s_memrealtime s[98:99]
    s_waitcnt lgkmcnt(0)
    s_mov_b32 s{74+idx}, s98""")
def stamp_flush(kidx):
    if not STAMP: return
    e(f"""s_mov_b64 exec, 1
    s_add_u32 s96, s96, {(16+4*kidx)<<20}
    s_addc_u32 s97, s97, 0
    s_mov_b32 s98, 0x400000
    s_mov_b32 s99, 0x20000
    s_lshl_b32 s100, s2, 4
    s_add_u32 s100, s100, s95
    s_lshl_b32 s100, s100, 7
    v_mov_b32 v2, 0""")
    for q in range(1 if STAMP == 2 else 5):
        for i in range(4):
            e(f'v_mov_b32 v{4+4*q+i}, s{74+4*q+i}')
        e(f'buffer_store_dwordx4 v[{4+4*q}:{7+4*q}], v2, s[96:99], s100 offen offset:{16*q}')
    kidx_[0] += 1
def stamp_init():
    if not STAMP: return
    nstamp[0] = 0
    e('s_memrealtime s[98:99]')
    e('s_load_dwordx2 s[96:97], s[0:1], 64')
    for i in range(75, 78 if STAMP == 2 else 94): e(f's_mov_b32 s{i}, 0')
    e('v_readfirstlane_b32 s95, v0')
    e('s_lshr_b32 s95, s95, 6')
    e('s_waitcnt lgkmcnt(0)')
    e('s_mov_b32 s74, s98')
    stamp('entry')

def vr(a, n=1):
    return f'v{a}' if n == 1 else f'v[{a}:{a+n-1}]'
def sr(a, n=1):
    return f's{a}' if n == 1 else f's[{a}:{a+n-1}]'

def scan(v):
    for d in ('row_shr:1', 'row_shr:2', 'row_shr:4', 'row_shr:8'):
        e('s_nop 1')
        e(f'v_add_u32_dpp v{v}, v{v}, v{v} {d} row_mask:0xf bank_mask:0xf bound_ctrl:0')
    e('s_nop 1')
    e(f'v_add_u32_dpp v{v}, v{v}, v{v} row_bcast:15 row_mask:0xa bank_mask:0xf')
    e('s_nop 1')
    e(f'v_add_u32_dpp v{v}, v{v}, v{v} row_bcast:31 row_mask:0xc bank_mask:0xf')

def kd(name, vgpr, sgpr):
    if STAMP: sgpr = 102
    e(f'''.amdhsa_kernel {name}
.amdhsa_next_free_vgpr {vgpr}
.amdhsa_next_free_sgpr {sgpr}
.amdhsa_accum_offset {(vgpr+3)//4*4}
.amdhsa_group_segment_fixed_size 0
.amdhsa_kernarg_size 72
.amdhsa_user_sgpr_count 2
.amdhsa_user_sgpr_kernarg_segment_ptr 1
.amdhsa_system_sgpr_workgroup_id_x 1
.amdhsa_float_denorm_mode_32 {0 if 'nodenorm' in os.environ.get('X','') else 3}
.end_amdhsa_kernel''')

K1_GT = 1024
K1_CELL = 2560
K1_W = K1_CELL + 256*144
K1_X = K1_W + 128*192
K1_LDS = K1_X + 64*144
SDW = 'dst_sel:DWORD dst_unused:UNUSED_PAD'

def tr_addr(dst, cshift, t1, t2):
    e(f"""
    v_bfe_u32 v{t1}, v0, 4, 2
    v_bfe_u32 v{dst}, v0, 2, 2
    v_lshl_add_u32 v{dst}, v{t1}, 3, v{dst}
    v_lshlrev_b32 v{dst}, 7, v{dst}
    v_and_b32 v{t2}, 3, v0
    v_lshl_add_u32 v{dst}, v{t2}, {cshift}, v{dst}
    """)

STF = os.environ.get('STF', '')
STP = os.environ.get('STP', '')
STQ = os.environ.get('STQ', '')
LDF = os.environ.get('LDF', '')
def k1():
    e(""".globl part_kernel
.p2align 8
.type part_kernel,@function
part_kernel:""")
    NE = 5
    e(f"""
    @INIT
    v_readfirstlane_b32 s7, v0
    s_sub_u32 s33, s2, 1
    s_cmp_ge_u32 s33, {G}
    s_cbranch_scc1 L_k1_special
    s_cmp_lt_u32 s7, 256
    s_cbranch_scc1 L_k1_p
    s_load_dwordx2 s[8:9], s[0:1], 24
    s_load_dwordx2 s[12:13], s[0:1], 16
    s_load_dwordx2 s[16:17], s[0:1], 8
    s_load_dwordx2 s[20:21], s[0:1], 64
    s_mov_b32 s10, {EDGES*4}
    s_mov_b32 s11, 0x20000
    s_mov_b32 s14, {EDGES*4}
    s_mov_b32 s15, 0x20000
    s_mov_b32 s18, {EDGES*2}
    s_mov_b32 s19, 0x20000
    s_mul_i32 s3, s33, {CH*4}
    s_add_u32 s4, s3, {2560*4}
    s_mul_i32 s5, s33, {CH*2}
    s_add_u32 s6, s5, {2560*2}
    v_subrev_u32 v0, 256, v0
    v_lshlrev_b32 v1, 4, v0
    v_lshlrev_b32 v25, 2, v0
    v_lshlrev_b32 v2, 3, v0
    v_lshlrev_b32 v3, 1, v0
    s_waitcnt lgkmcnt(0)
    @STAMP kernarg
    buffer_load_dwordx4 v[4:7], v1, s[8:11], s3 offen {LDF}
    buffer_load_dword v8, v25, s[8:11], s4 offen {LDF}
    buffer_load_dwordx4 v[12:15], v1, s[12:15], s3 offen {LDF}
    buffer_load_dwordx2 v[20:21], v2, s[16:19], s5 offen {LDF}
    buffer_load_dword v16, v25, s[12:15], s4 offen {LDF}
    buffer_load_ushort v22, v3, s[16:19], s6 offen {LDF}
    v_mov_b32 v24, 0
    ds_write_b32 v25, v24
    s_lshl_b32 s6, s33, 10
    s_add_u32 s6, s6, {WS_TAB}
    s_add_u32 s24, s20, s6
    s_addc_u32 s25, s21, 0
    s_mov_b32 s26, 1024
    s_mov_b32 s27, 0x20000
    s_mul_i32 s6, s33, {REC_STRIDE}
    s_add_u32 s6, s6, {WS_REC}
    s_add_u32 s20, s20, s6
    s_addc_u32 s21, s21, 0
    s_mov_b32 s22, {REC_STRIDE}
    s_mov_b32 s23, 0x20000
    s_mov_b32 s28, {-NB*4 & 0xffffffff}
    s_mov_b32 s29, 0xffff0000
    s_mov_b32 s32, {32<<13}
    v_mov_b32 v3, {INC}
    v_lshrrev_b32 v26, 3, v0           ; cell
    v_and_b32 v27, 0x70, v1            ; 16*k
    v_mul_u32_u24 v62, 144, v26
    v_add_u32 v62, v62, v27
    v_lshlrev_b32 v26, 2, v26
    v_and_b32 v60, 0x3f0, v1           ; 16*lane
    s_waitcnt lgkmcnt(0)
    s_barrier
    @STAMP bar1
    s_waitcnt vmcnt(4)
    @STAMP dst
    """)
    R = range(NE)
    for i in R: e(f'v_mul_u32_u24 v{28+i}, 42800, v{4+i}')
    for i in R: e(f'v_lshrrev_b32 v{44+i}, 21, v{28+i}')
    for i in R:
        e(f'v_lshlrev_b32 v{28+i}, 2, v{44+i}')
        e(f'ds_add_rtn_u32 v{36+i}, v{28+i}, v3')
    for i in R: e(f'v_lshl_add_u32 v{4+i}, v{4+i}, 2, 4')
    for i in R: e(f'v_mad_i32_i24 v{4+i}, v{44+i}, s28, v{4+i}')
    e('s_waitcnt vmcnt(0)')
    e('@STAMP allloaded')
    for i in R:
        a = 20 + i//2
        if i % 2 == 0:
            e(f'v_lshl_or_b32 v{12+i}, v{a}, 16, v{12+i}')
        else:
            e(f'v_and_or_b32 v{12+i}, v{a}, s29, v{12+i}')
    for i in R:
        e(f's_waitcnt lgkmcnt({NE-1-i+2*i})')
        e(f'v_min_u32 v{44+i}, s32, v{36+i}')
        e(f'v_bfe_u32 v{52+i}, v{44+i}, 13, 2')
        e(f'v_lshrrev_b32 v{44+i}, 13, v{44+i}')
        e(f'v_mad_u32_u24 v{44+i}, v{28+i}, 9, v{44+i}')
        e(f'v_lshlrev_b32 v{44+i}, 2, v{44+i}')
        e(f'ds_write_b32 v{44+i}, v{12+i} offset:{K1_CELL}')
        e(f'v_mad_i32_i24 v{52+i}, v{52+i}, -3, v{44+i}')
        e(f'ds_write_b8 v{52+i}, v{4+i} offset:{K1_CELL+12}')
    e(f"""
    v_max3_u32 v2, v36, v37, v38
    v_max3_u32 v2, v2, v39, v40
    v_cmp_le_u32 s[34:35], s32, v2
    s_waitcnt lgkmcnt(0)
    @STAMP placed
    s_barrier
    @STAMP bar2
    ds_read_b128 v[52:55], v60
    """)
    NP = 4
    for p in range(NP):
        e(f'ds_read_b128 v[{64+4*p}:{67+4*p}], v62 offset:{K1_CELL + p*80*144}')
    e(f's_waitcnt lgkmcnt({NP})')
    for i in range(4): e(f'v_add_u32 v{44+i}, {2*INC}, v{52+i}')
    for i in range(4): e(f'v_lshrrev_b32 v{44+i}, 15, v{44+i}')
    e("""
    v_add_u32 v48, v44, v45
    v_add_u32 v49, v48, v46
    v_add_u32 v50, v49, v47
    s_nop 1
    v_add_u32_dpp v61, v50, v50 row_shr:1 row_mask:0xf bank_mask:0xf bound_ctrl:0
    """)
    for d in ('row_shr:2', 'row_shr:4', 'row_shr:8'):
        e('s_nop 1')
        e(f'v_add_u32_dpp v61, v61, v61 {d} row_mask:0xf bank_mask:0xf bound_ctrl:0')
    e(f"""
    s_nop 1
    v_add_u32_dpp v61, v61, v61 row_bcast:15 row_mask:0xa bank_mask:0xf
    s_nop 1
    v_add_u32_dpp v61, v61, v61 row_bcast:31 row_mask:0xc bank_mask:0xf
    v_sub_u32 v56, v61, v50
    v_add_u32 v57, v56, v44
    v_add_u32 v58, v56, v48
    v_add_u32 v59, v56, v49
    """)
    for i in range(4): e(f'v_lshl_or_b32 v{44+i}, v{44+i}, 16, v{56+i}')
    for i in range(4): e(f'v_lshlrev_b32 v{44+i}, 4, v{44+i}')
    e(f'ds_write_b128 v60, v[44:47] offset:{K1_GT}')
    for p in range(NP):
        e(f'ds_read_b32 v{84+p}, v26 offset:{K1_GT + p*320}')
    e(f"""
    s_cmp_lg_u32 s7, 832
    s_cbranch_scc1 L_k1_notab
    """)
    for i in range(4): e(f'v_lshl_add_u32 v{52+i}, v{52+i}, 1, v{52+i}')
    for i in range(4): e(f'v_lshrrev_b32 v{52+i}, 15, v{52+i}')
    for i in range(4): e(f'v_lshl_or_b32 v{52+i}, v{52+i}, 16, v{56+i}')
    e(f"""
    buffer_store_dwordx4 v[52:55], v60, s[24:27], 0 offen {STF}
L_k1_notab:
    @STAMP scan
    """)
    for p in range(NP):
        if p == NP-1:
            e('s_cmp_ge_u32 s7, 384')
            e('s_cbranch_scc1 L_k1_copied')
        e(f's_waitcnt lgkmcnt({NP-1-p})')
        e(f'v_cmp_lt_u32_sdwa vcc, v27, v{84+p} src0_sel:DWORD src1_sel:WORD_1')
        e(f'v_add_u32_sdwa v{84+p}, v27, v{84+p} {SDW} src0_sel:DWORD src1_sel:WORD_0')
        e('s_and_b64 exec, exec, vcc')
        e(f's_cbranch_execz L_k1_c{p}')
        e(f'buffer_store_dwordx4 v[{64+4*p}:{67+4*p}], v{84+p}, s[20:23], 0 offen {STF}')
        e(f'L_k1_c{p}:')
        e('s_mov_b64 exec, -1')
    e(f"""
L_k1_copied:
    s_cmp_eq_u64 s[34:35], 0
    s_cbranch_scc1 L_k1_end
    """)
    for i in R:
        e(f"""
        s_mov_b64 exec, -1
        v_cmp_le_u32 vcc, s32, v{36+i}
        s_and_b64 exec, exec, vcc
        s_cbranch_execz L_k1_o{i}
        ds_read_u16 v44, v{28+i} offset:{K1_GT}
        v_lshrrev_b32 v45, 13, v{36+i}
        v_and_b32 v46, 3, v45
        s_waitcnt lgkmcnt(0)
        v_lshl_add_u32 v45, v45, 2, v44
        v_mad_i32_i24 v46, v46, -3, v45
        buffer_store_dword v{12+i}, v45, s[20:23], 0 offen
        buffer_store_byte v{4+i}, v46, s[20:23], 0 offen offset:12
L_k1_o{i}:""")
    e(f"""
L_k1_end:
    @STAMP issued
    @FLUSH 0
    s_endpgm
    """)
    e(f"""
L_k1_p:
    s_load_dwordx2 s[8:9], s[0:1], 0
    s_load_dwordx2 s[12:13], s[0:1], 32
    s_load_dwordx2 s[16:17], s[0:1], 64
    s_mul_i32 s3, s33, {50*128}
    s_add_u32 s10, s3, {50*128}
    s_mov_b32 s11, 0x20000
    s_mov_b32 s14, 16384
    s_mov_b32 s15, 0x20000
    s_mov_b32 s19, 0x20000
    s_movk_i32 s4, 4096
    s_movk_i32 s5, 8192
    s_movk_i32 s6, 12288
    s_add_u32 s20, s3, 4096
    v_lshlrev_b32 v1, 4, v0
    s_waitcnt lgkmcnt(0)
    buffer_load_dwordx4 v[40:43], v1, s[8:11], s3 offen
    buffer_load_dwordx4 v[44:47], v1, s[8:11], s20 offen
    buffer_load_dwordx4 v[24:27], v1, s[12:15], 0 offen
    buffer_load_dwordx4 v[28:31], v1, s[12:15], s4 offen
    buffer_load_dwordx4 v[32:35], v1, s[12:15], s5 offen
    buffer_load_dwordx4 v[36:39], v1, s[12:15], s6 offen
    v_lshrrev_b32 v2, 3, v0
    v_and_b32 v3, 0x70, v1
    v_mul_u32_u24 v4, 192, v2
    v_add_u32 v4, v4, v3
    v_mul_u32_u24 v5, 144, v2
    v_add_u32 v5, v5, v3
    v_add_u32 v5, {K1_X}, v5
    v_bfe_u32 v6, v0, 5, 1             ; h
    v_bfe_u32 v7, v0, 2, 2             ; r
    v_lshl_add_u32 v8, v6, 3, v7
    v_mul_u32_u24 v8, 192, v8          ; (8h + r)*192
    v_bfe_u32 v9, v0, 4, 1
    v_and_b32 v10, 3, v0               ; c
    v_lshl_add_u32 v11, v9, 2, v10     ; gamma
    s_lshr_b32 s21, s7, 7              ; which
    s_bfe_u32 s22, s7, 0x10006
    s_sub_u32 s23, 4, s21
    v_lshlrev_b32 v11, s23, v11
    s_mul_i32 s23, s21, {64*192}
    v_add3_u32 v8, v8, v11, s23
    s_mul_i32 s23, s21, 56
    s_add_u32 s23, s23, 8
    v_add_u32 v12, s23, v8
    v_and_b32 v13, 31, v0
    v_mul_u32_u24 v14, 144, v13
    v_lshl_add_u32 v14, v6, 4, v14
    s_mul_i32 s23, s22, {32*144}
    s_add_u32 s23, s23, {K1_X}
    v_add_u32 v14, s23, v14
    s_lshl_b32 s22, s22, 12
    s_add_u32 s3, s3, s22
    s_mov_b32 s24, {NEG_LOG2E}
    s_waitcnt vmcnt(5)
    ds_write_b128 v5, v[40:43]
    s_waitcnt vmcnt(4)
    ds_write_b128 v5, v[44:47] offset:{32*144}
    """)
    for i in range(4):
        e(f's_waitcnt vmcnt({3-i})')
        e(f'ds_write_b128 v4, v[{24+4*i}:{27+4*i}] offset:{K1_W + 32*192*i}')
    e("""
    s_waitcnt lgkmcnt(0)
    s_barrier
    """)
    def step_reads(s_):
        e(f'ds_read_b128 v[{16+12*s_}:{19+12*s_}], v14 offset:{32*s_}')
        for t_ in range(2):
            for h in range(2):
                r = 20 + 12*s_ + 4*t_ + 2*h
                e(f'ds_read_b64_tr_b16 v[{r}:{r+1}], v{8 if t_ == 0 else 12} offset:{K1_W + (16*s_ + 4*h)*192}')
    for s_ in range(3): step_reads(s_)
    for s_ in range(4):
        e(f's_waitcnt lgkmcnt({[10, 10, 5, 0][s_]})')
        for t_ in range(2):
            d = 64 + 16*t_
            e(f'v_mfma_f32_32x32x16_bf16 v[{d}:{d+15}], v[{16+12*s_}:{19+12*s_}], v[{20+12*s_+4*t_}:{23+12*s_+4*t_}], ' + ('0' if s_ == 0 else f'v[{d}:{d+15}]'))
        if s_ == 0: step_reads(3)
    e(f"""
    s_cmp_eq_u32 s21, 0
    s_cbranch_scc0 L_k1_q
    s_mov_b32 s18, s10
    v_lshlrev_b32 v2, 6, v9
    v_lshl_add_u32 v2, v10, 4, v2
    v_lshl_add_u32 v2, v7, 2, v2
    v_lshl_add_u32 v2, v6, 9, v2       ; + 4h rows
    s_nop 7
    """)
    for v in range(16):
        e(f'v_mul_f32 v{64+v}, s24, v{64+v}')
        e(f'v_mul_f32 v{80+v}, s24, v{80+v}')
        e(f'v_cvt_pk_bf16_f32 v{64+v}, v{64+v}, v{80+v}')
        e(f'buffer_store_dword v{64+v}, v2, s[16:19], s3 offen offset:{(8*(v//4) + v%4)*128} {STP}')
    e(f"""
    s_barrier
    s_branch L_k1_end
L_k1_q:
    s_add_u32 s16, s16, {WS_Q}
    s_addc_u32 s17, s17, 0
    s_lshl_b32 s18, s10, 1
    s_lshl_b32 s3, s3, 1
    s_add_u32 s4, s3, 4096
    v_lshlrev_b32 v2, 2, v13
    v_lshl_add_u32 v2, v6, 10, v2
    s_nop 7
    """)
    for v in range(16):
        for t_ in range(2):
            r = 64 + 16*t_ + v
            off = (8*(v//4) + v%4)*256 + 128*t_
            e(f'v_mul_f32 v{r}, s24, v{r}')
            e(f'buffer_store_dword v{r}, v2, s[16:19], {"s3" if off < 4096 else "s4"} offen offset:{off % 4096} {STQ}')
    e("""
    s_barrier
    s_branch L_k1_end
    """)
    e(f"""
L_k1_special:
    s_cmp_lg_u32 s2, 0
    s_cbranch_scc1 L_k1_end
    s_cmp_gt_u32 s7, 512
    s_cbranch_scc1 L_k1_end
    s_load_dwordx2 s[8:9], s[0:1], 40
    s_load_dwordx2 s[12:13], s[0:1], 32
    s_load_dwordx2 s[16:17], s[0:1], 64
    s_mov_b32 s10, 16384
    s_mov_b32 s11, 0x20000
    s_mov_b32 s14, {129*128}
    s_mov_b32 s15, 0x20000
    s_mov_b32 s18, {16384+3072}
    s_mov_b32 s19, 0x20000
    v_lshlrev_b32 v1, 4, v0
    v_and_b32 v2, 0x3f0, v1            ; 16*lane
    s_movk_i32 s4, 8192
    s_movk_i32 s5, 16384
    s_waitcnt lgkmcnt(0)
    s_add_u32 s16, s16, {WS_WUF}
    s_addc_u32 s17, s17, 0
    s_cmp_eq_u32 s7, 512
    s_cbranch_scc1 L_k1_lt
    buffer_load_dwordx4 v[24:27], v1, s[8:11], 0 offen
    buffer_load_dwordx4 v[28:31], v1, s[8:11], s4 offen
    """)
    tr_addr(6, 3, 7, 8)
    e(f"""
    s_lshr_b32 s6, s7, 6
    s_and_b32 s3, s6, 3                ; mt
    s_lshr_b32 s6, s6, 2
    s_lshl_b32 s20, s3, 5
    s_lshl_b32 s21, s6, 13
    s_add_u32 s20, s20, s21
    v_add_u32 v6, s20, v6
    s_lshl_b32 s3, s3, 12
    s_lshl_b32 s6, s6, 11
    s_add_u32 s3, s3, s6
    s_waitcnt vmcnt(1)
    ds_write_b128 v1, v[24:27]
    s_waitcnt vmcnt(0)
    ds_write_b128 v1, v[28:31] offset:8192
    s_waitcnt lgkmcnt(0)
    s_barrier
    ds_read_b64_tr_b16 v[24:25], v6
    ds_read_b64_tr_b16 v[26:27], v6 offset:512
    ds_read_b64_tr_b16 v[28:29], v6 offset:4096
    ds_read_b64_tr_b16 v[30:31], v6 offset:4608
    s_waitcnt lgkmcnt(2)
    buffer_store_dwordx4 v[24:27], v2, s[16:19], s3 offen
    s_waitcnt lgkmcnt(0)
    buffer_store_dwordx4 v[28:31], v2, s[16:19], s3 offen offset:1024
    s_branch L_k1_end
L_k1_lt:
    v_and_b32 v14, 15, v0
    v_lshlrev_b32 v15, 3, v14
    buffer_load_dwordx2 v[12:13], v15, s[12:15], s5 offen
    v_lshrrev_b32 v32, 1, v0
    v_xor_b32 v32, v32, v0
    v_and_b32 v32, 16, v32
    v_and_b32 v33, 1, v0
    v_lshlrev_b32 v33, 4, v33
    v_mov_b32 v41, 0x3f80
    v_lshlrev_b32 v33, v33, v41
    v_bfe_u32 v41, v0, 1, 3
    v_or_b32 v41, v41, v32
    """)
    for d in range(8):
        e(f'v_cmp_eq_u32 vcc, {d}, v41')
        e('s_nop 1')
        e(f'v_cndmask_b32 v{16+d}, 0, v33, vcc')
    e(f"""
    v_cmp_eq_u32 vcc, 0, v32
    s_mov_b32 s24, {NEG_LOG2E}
    buffer_store_dwordx4 v[16:19], v2, s[16:19], s5 offen
    buffer_store_dwordx4 v[20:23], v2, s[16:19], s5 offen offset:1024
    s_waitcnt vmcnt(2)
    v_cndmask_b32 v12, 0, v12, vcc
    v_cndmask_b32 v13, 0, v13, vcc
    v_lshlrev_b32 v24, 16, v12
    v_and_b32 v25, 0xffff0000, v12
    v_lshlrev_b32 v26, 16, v13
    v_and_b32 v27, 0xffff0000, v13
    v_mul_f32 v24, s24, v24
    v_mul_f32 v25, s24, v25
    v_mul_f32 v26, s24, v26
    v_mul_f32 v27, s24, v27
    v_cvt_pk_bf16_f32 v24, v24, v25
    v_cvt_pk_bf16_f32 v25, v26, v27
    v_mov_b32 v26, 0
    v_mov_b32 v27, 0
    buffer_store_dwordx4 v[24:27], v2, s[16:19], s5 offen offset:2048
    s_branch L_k1_end
    """)

CNT, BASE, ST, FLAG = 0, 256, 512, 768
QS = 1024
NTAB = QS + 16384
AGG = NTAB + 5120
PART = AGG + 16384
RECS = PART + 32768
WUF = RECS + 39424
XSF = WUF + 16384
LT = XSF + 8192
AGGB = LT + 4096
K2_LDS = AGGB + 8704
PADREC = 0xffff
T0, T1, C, E, G0, G1, BS0, BS1, BX, AX, N, D, TMP, ACC, DS = 0, 16, 32, 48, 64, 72, 80, 84, 88, 90, 92, 96, 100, 104, 108
IDX, CH16, AV, ZERO, X, Y, Z, LQ, LA, AR, AN = 110, 111, 112, 113, 114, 115, 116, 117, 118, 119, 120
S_B, S_WV, S_X0 = 3, 4, 5
SRD_P, SRD_TAB, SRD_REC, SRD_X, SRD_Q, SRD_WF, SRD_OUT = 8, 12, 16, 20, 24, 28, 32
S_MASK = 36
S_RND, S_SAFE, S_TOT, S_NT, S_QN, S_RN, S_MORE = 54, 55, 56, 57, 58, 59, 60
S_M = 62
S_TMP = 64
S_L2E = 72

X_ = os.environ.get('X', '').split(',')
PRIO = [int(x) for x in os.environ.get('PRIO', '3,1').split(',') if x]
def mf(T, a, b, c):
    if 'nomfma' in X_: return
    e(f'v_mfma_f32_32x32x16_bf16 v[{T}:{T+15}], v[{a}:{a+3}], v[{b}:{b+3}], v[{c}:{c+15}]')
def mf8(T):
    if 'nomfma' in X_: return
    e(f'v_mfma_f32_32x32x8_bf16 v[{T}:{T+15}], v[{AX}:{AX+1}], v[{BX}:{BX+1}], v[{T}:{T+15}]')
BUILD_AX = f'v_lshlrev_b64 v[{AX}:{AX+1}], v{CH16}, v[{AV}:{AV+1}]'
def ld(g, off):
    if 'nogather' in X_: return 's_nop 0\ns_nop 0'
    return f'buffer_load_dwordx4 v[{g}:{g+3}], v[{IDX}:{IDX+1}], s[{SRD_P}:{SRD_P+3}], 0 idxen offen' + (f' offset:{off}' if off else '')
def load_c():
    e(f'v_add_u32_sdwa v{Y}, v{X}, v{LQ} {SDW} src0_sel:WORD_0 src1_sel:DWORD')
    for i in range(4):
        e(f'ds_read_b128 v[{C+4*i}:{C+4*i+3}], v{Y} offset:{QS}')
def exps(T, a, b):
    if 'noexp' in X_: return
    for i in range(a, b):
        e(f'v_exp_f32 v{E+i}, v{T+i}')
def p2(r):
    return f'v[{r}:{r+1}]'
def pk_phase(T, first, safe):
    if 'nopk' in X_: return
    if safe:
        for i in range(8):
            e(f'v_pk_add_f32 {p2(E+2*i)}, {p2(E+2*i)}, 1.0 op_sel_hi:[1,0]')
        for i in range(16):
            e(f'v_rcp_f32 v{E+i}, v{E+i}')
        for gd in range(4):
            for s in range(2):
                if first and gd == 0:
                    e(f'v_pk_mul_f32 {p2(N+2*s)}, {p2(T+2*s)}, {p2(E+2*s)}')
                else:
                    e(f'v_pk_fma_f32 {p2(N+2*s)}, {p2(T+4*gd+2*s)}, {p2(E+4*gd+2*s)}, {p2(N+2*s)}')
        return
    for gd in range(4):
        if first and gd == 0:
            for s in range(2):
                e(f'v_pk_add_f32 {p2(D+2*s)}, {p2(E+2*s)}, 1.0 op_sel_hi:[1,0]')
            continue
        for s in range(2):
            ns = (T+2*s) if (first and gd == 1) else (N+2*s)
            e(f'v_pk_fma_f32 {p2(TMP+2*s)}, {p2(ns)}, {p2(E+4*gd+2*s)}, {p2(ns)}')
        for s in range(2):
            e(f'v_pk_fma_f32 {p2(N+2*s)}, {p2(T+4*gd+2*s)}, {p2(D+2*s)}, {p2(TMP+2*s)}')
        for s in range(2):
            e(f'v_pk_fma_f32 {p2(D+2*s)}, {p2(D+2*s)}, {p2(E+4*gd+2*s)}, {p2(D+2*s)}')

def capture(fn, *a):
    n0 = len(out)
    fn(*a)
    r = [x.strip() for x in out[n0:]]
    del out[n0:]
    return r

def weave(main, fillers, start=0, step=2):
    fillers = list(fillers)
    for i, m in enumerate(main):
        e(m)
        if i >= start and (i - start) % step == 0 and fillers:
            e(fillers.pop(0))
    for f in fillers:
        e(f)

NCOVER = int(os.environ.get('NCOVER', '12'))
WSTEP = int(os.environ.get('WSTEP', '2'))
def msection(Tn, Gn, Tc, extra):
    mf(Tn, Gn, BS0, C)
    exps(Tc, 0, 3)
    mf(Tn, Gn+4, BS1, Tn)
    exps(Tc, 3, 6)
    mf8(Tn)
    exps(Tc, 6, 8)
    for x in extra: e(x)
    exps(Tc, 8, NCOVER)

def main_loop(safe):
    L = 'L_safe' if safe else 'L_fast'
    M = f's[{S_M}:{S_M+1}]'
    e('.p2align 6')
    e(f'{L}_loop:')
    msection(T1, G1, T0, [BUILD_AX, f'v_cmp_gt_i32 vcc, 0, v{X}', f'v_add_u32 v{AN}, 4, v{AN}'])
    e(ld(G1, 0))
    flush = f"""s_mov_b64 exec, {M}
    s_cbranch_execz {L}_nf
    ds_write_b128 v{Z}, v[{ACC}:{ACC+3}] offset:{PART}
    v_add_u32_e64 v{Z}, v{Y}, v{LA}
    ds_read_b128 v[{ACC}:{ACC+3}], v{Z} offset:{PART}
{L}_nf:
    s_mov_b64 exec, vcc
    s_cbranch_execz {L}_nc
    """ + '\n'.join(capture(load_c)) + f"""
{L}_nc:
    s_mov_b64 exec, -1
    s_mov_b64 {M}, vcc"""
    weave(capture(exps, T0, NCOVER, 16), [ld(G1+4, 64), flush], 1, 2)
    fl = [f'ds_read_u16 v{IDX}, v{AR} offset:64', f'ds_read_u16 v{AV}, v{AR} offset:50', f'ds_read_b32 v{X}, v{AN} offset:{NTAB+4}']
    weave(capture(pk_phase, T0, True, safe), fl, 1, WSTEP)
    e(f's_sub_u32 s{S_NT}, s{S_NT}, 1')
    e('s_waitcnt vmcnt(2) lgkmcnt(1)')
    msection(T0, G0, T1, [BUILD_AX])
    e(ld(G0, 0))
    weave(capture(exps, T1, NCOVER, 16), [ld(G0+4, 64)], 1, 2)
    fl = [f'ds_read_u16 v{IDX}, v{AR} offset:80', f'ds_read_u16 v{AV}, v{AR} offset:66']
    if 'iter' in X_ and not safe:
        fl += [('s_memrealtime' if 'iterrt' in X_ else 's_memtime') + ' s[98:99]', f's_mov_b32 m0, s{S_NT}\ns_nop 0']
    if PRIO and not safe:
        fl += [f's_cmp_eq_u32 s{S_NT}, {PRIO[0]}\ns_cbranch_scc0 {L}_p1\ns_setprio 2\n{L}_p1:\ns_cmp_eq_u32 s{S_NT}, {PRIO[1]}\ns_cbranch_scc0 {L}_p2\ns_setprio 1\n{L}_p2:']
    weave(capture(pk_phase, T1, False, safe), fl, 1, WSTEP)
    if not safe:
        for i in range(4):
            e(f'v_rcp_f32 v{TMP+i}, v{D+i}')
        e(f'v_pk_fma_f32 {p2(DS)}, {p2(D)}, {p2(D+2)}, {p2(DS)}')
    e(f'v_add_u32_e64 v{AR}, 32, v{AR}')
    e(f's_cmp_lg_u32 s{S_NT}, 0')
    e('s_waitcnt vmcnt(2) lgkmcnt(0)')
    if 'iter' in X_ and not safe:
        e('s_movreld_b32 s84, s98\ns_nop 0')
    for s in range(2):
        if safe:
            e(f'v_pk_add_f32 {p2(ACC+2*s)}, {p2(N+2*s)}, {p2(ACC+2*s)}')
        else:
            e(f'v_pk_fma_f32 {p2(ACC+2*s)}, {p2(N+2*s)}, {p2(TMP+2*s)}, {p2(ACC+2*s)}')
    e(f's_cbranch_scc1 {L}_loop')
    e(f'ds_write_b128 v{Z}, v[{ACC}:{ACC+3}] offset:{PART}')

def k2():
    e(""".globl gather_scatter__mpnn_edge_mlp__graph_kernel
.p2align 8
.type gather_scatter__mpnn_edge_mlp__graph_kernel,@function
gather_scatter__mpnn_edge_mlp__graph_kernel:""")
    def mk(i): return f's[{S_MASK+2*i}:{S_MASK+2*i+1}]'
    e(f"""
    @INIT
    s_cmp_ge_u32 s2, 256
    s_cbranch_scc1 L_k2_end
    s_load_dwordx2 s[{SRD_P}:{SRD_P+1}], s[0:1], 64
    s_load_dwordx2 s[{SRD_X}:{SRD_X+1}], s[0:1], 0
    s_load_dwordx2 s[{SRD_OUT}:{SRD_OUT+1}], s[0:1], 48
    v_readfirstlane_b32 s{S_WV}, v0
    s_and_b32 s{S_B}, s2, 7
    s_lshl_b32 s{S_B}, s{S_B}, 5
    s_lshr_b32 s{S_TMP}, s2, 3
    s_add_u32 s{S_B}, s{S_B}, s{S_TMP}
    s_mul_i32 s{S_X0}, s{S_B}, {NB*128}
    s_lshl_b32 s{S_B}, s{S_B}, 2
    s_lshr_b32 s{S_WV}, s{S_WV}, 6
    s_mov_b32 s{SRD_TAB+2}, {G*1024}
    s_mov_b32 s{SRD_TAB+3}, 0x20000
    s_add_u32 s6, s{S_X0}, {(NB+1)*128}
    s_min_u32 s{SRD_X+2}, s6, {NODES*128}
    s_mov_b32 s{SRD_X+3}, 0x20000
    s_lshl_b32 s{SRD_Q+2}, s{SRD_X+2}, 1
    s_mov_b32 s{SRD_Q+3}, 0x20000
    s_mov_b32 s{SRD_P+2}, {NODES}
    s_mov_b32 s{SRD_P+3}, 0x20000
    s_mov_b32 s{SRD_REC+2}, {G*REC_STRIDE}
    s_mov_b32 s{SRD_REC+3}, 0x20000
    s_mov_b32 s{SRD_WF+2}, {16384+3072}
    s_mov_b32 s{SRD_WF+3}, 0x20000
    s_mov_b32 s{SRD_OUT+2}, {NODES*128}
    s_mov_b32 s{SRD_OUT+3}, 0x20000
    s_mov_b32 s{S_RND}, 0
    s_mov_b32 s{S_SAFE}, 0
    s_mov_b32 s{S_L2E}, {NEG_LOG2E}
    v_lshlrev_b32 v1, 4, v0            ; 16 t
    v_and_b32 v{LQ}, 0xf0, v1
    v_and_b32 v{LA}, 0x3f00, v1
    v_and_b32 v{CH16}, 0x30, v1
    v_mov_b32 v{DS}, 0
    v_mov_b32 v{DS+1}, 0
    v_mov_b32 v{ZERO}, 0
    ds_write_b32 v{ZERO}, v{ZERO} offset:{FLAG}
    s_waitcnt lgkmcnt(0)
    @STAMP kernarg
    s_add_u32 s{SRD_TAB}, s{SRD_P}, {WS_TAB}
    s_addc_u32 s{SRD_TAB+1}, s{SRD_P+1}, 0
    s_add_u32 s{SRD_Q}, s{SRD_P}, {WS_Q}
    s_addc_u32 s{SRD_Q+1}, s{SRD_P+1}, 0
    s_add_u32 s{SRD_REC}, s{SRD_P}, {WS_REC}
    s_addc_u32 s{SRD_REC+1}, s{SRD_P+1}, 0
    s_add_u32 s{SRD_WF}, s{SRD_P}, {WS_WUF}
    s_addc_u32 s{SRD_WF+1}, s{SRD_P+1}, 0
    s_or_b32 s{SRD_P+1}, s{SRD_P+1}, {128<<16}
L_round:
    s_cmp_lt_u32 s{S_WV}, 13
    s_cbranch_scc1 L_no_lt
    s_sub_u32 s6, s{S_WV}, 13
    s_lshl_b32 s6, s6, 10
    s_add_u32 m0, s6, {LT}
    s_movk_i32 s6, {16384 - 13*1024}
    buffer_load_dwordx4 v1, s[{SRD_WF}:{SRD_WF+3}], s6 offen lds
L_no_lt:
    v_lshrrev_b32 v2, 2, v0            ; g
    v_lshlrev_b32 v3, 10, v2
    s_lshl_b32 s6, s{S_X0}, 1
    buffer_load_dword v46, v3, s[{SRD_TAB}:{SRD_TAB+3}], s{S_B} offen
    buffer_load_dwordx4 v[4:7], v1, s[{SRD_Q}:{SRD_Q+3}], s6 offen
    v_mov_b32 v28, 0
    v_mov_b32 v29, 0
    v_mov_b32 v30, 0
    v_mov_b32 v31, 0
    v_and_b32 v33, 0xfc, v0
    ds_write_b32 v33, v28
    ds_write_b128 v1, v[28:31] offset:{PART}
    ds_write_b128 v1, v[28:31] offset:{PART+16384}
    v_and_b32 v3, 3, v0
    v_add_u32 v3, s{S_RND}, v3
    v_mul_u32_u24 v2, {REC_STRIDE//16}, v2
    v_add_u32 v2, v2, v3
    v_mul_u32_u24 v3, 3, v3
    v_mov_b32 v34, 0x7ffffff0
    s_waitcnt vmcnt(1)
    @STAMP tab
    v_sub_u32_sdwa v37, v46, v3 {SDW} src0_sel:WORD_1 src1_sel:DWORD
    v_add_u32_sdwa v2, v46, v2 {SDW} src0_sel:WORD_0 src1_sel:DWORD
    v_cmp_lt_i32 {mk(0)}, 0, v37
    v_cmp_lt_i32 {mk(3)}, 12, v37
    v_cmp_lt_i32 {mk(6)}, 24, v37
    v_lshlrev_b32 v2, 4, v2
    v_cndmask_b32 v38, v34, v2, {mk(0)}
    buffer_load_dwordx4 v[16:19], v38, s[{SRD_REC}:{SRD_REC+3}], 0 offen
    v_cndmask_b32 v39, v34, v2, {mk(3)}
    buffer_load_dwordx4 v[20:23], v39, s[{SRD_REC}:{SRD_REC+3}], 0 offen offset:64
    v_cndmask_b32 v40, v34, v2, {mk(6)}
    buffer_load_dwordx4 v[24:27], v40, s[{SRD_REC}:{SRD_REC+3}], 0 offen offset:128
    v_and_b32 v46, 63, v0
    v_lshlrev_b32 v8, 3, v{LQ}
    v_and_or_b32 v8, v0, 16, v8
    s_lshr_b32 s6, s2, 3
    s_mul_i32 s6, s6, 391
    v_add_u32 v12, s6, v0
    s_lshl_b32 s{S_TMP}, s{S_WV}, 10
    s_add_u32 m0, s{S_TMP}, {WUF}
    s_lshr_b32 s6, s{S_WV}, 2
    s_lshl_b32 s6, s6, 11
    s_and_b32 s7, s{S_WV}, 3
    s_lshl_b32 s7, s7, 5
    s_add_u32 s6, s6, s7
    s_add_u32 s6, s6, s{S_X0}
    s_lshl_b32 s7, s{S_WV}, 9
    s_waitcnt lgkmcnt(0)
    s_barrier
    @STAMP bar1
    buffer_load_dwordx4 v1, s[{SRD_WF}:{SRD_WF+3}], 0 offen lds
    s_add_u32 m0, s7, {XSF}
    s_mov_b32 exec_hi, 0
    buffer_load_dwordx4 v8, s[{SRD_X}:{SRD_X+3}], s6 offen lds
    s_mov_b32 exec_hi, -1
    v_cmp_lt_i32 vcc, 36, v37
    v_cmp_lt_i32 {mk(1)}, 1, v37
    v_cmp_lt_i32 {mk(2)}, 2, v37
    v_cmp_lt_i32 {mk(4)}, 13, v37
    v_cmp_lt_i32 {mk(5)}, 14, v37
    v_cmp_lt_i32 {mk(7)}, 25, v37
    v_cmp_lt_i32 {mk(8)}, 26, v37
    v_mov_b32 v3, 1
    s_mov_b64 exec, vcc
    ds_write_b32 v{ZERO}, v3 offset:240
    s_mov_b64 exec, -1
    v_lshlrev_b32 v47, 2, v46
    v_lshrrev_b32 v57, 6, v{LA}        ; 4n
    v_and_b32 v58, 15, v0              ; j
    v_bfe_u32 v60, v0, 2, 1
    v_and_b32 v61, 32, v0
    v_lshl_add_u32 v60, v60, 6, v61    ; 32*qg
    v_lshrrev_b32 v62, 1, v0
    v_and_b32 v62, 12, v62             ; 4*gD
    v_and_b32 v61, 12, v57             ; 4*qd
    s_waitcnt vmcnt(5)
    ds_write_b128 v1, v[4:7] offset:{QS}
    """)
    for i in range(4):
        e(f'v_exp_f32 v{8+i}, v{4+i}')
    for i in range(4):
        e(f'v_add_f32 v{8+i}, 1.0, v{8+i}')
    for i in range(4):
        e(f'v_rcp_f32 v{8+i}, v{8+i}')
    for i in range(4):
        e(f'v_mul_f32 v{8+i}, v{4+i}, v{8+i}')
    for k in range(3):
        if k == 2:
            e(f's_cmp_eq_u64 {mk(6)}, 0')
            e('s_cbranch_scc1 L_skipA')
        e(f's_waitcnt vmcnt({4-k})')
        if k == 0: e('@STAMP rec0')
        m = 19 + 4*k
        for i in range(3):
            e(f's_mov_b64 exec, {mk(3*k+i)}')
            e(f'v_bfe_u32 v{28+3*k+i}, v{m}, {8*i}, 8')
            e(f'ds_add_rtn_u32 v{37+3*k+i}, v{28+3*k+i}, v3')
    e(f"""
L_skipA:
    s_mov_b64 exec, -1
    s_cmp_gt_u32 s{S_WV}, 6
    s_cbranch_scc1 L_no_pf
    buffer_load_dword v{E+15}, v12, s[{SRD_P}:{SRD_P+3}], 0 idxen
L_no_pf:
    s_mov_b32 s{S_TMP}, {RECS}
    s_waitcnt lgkmcnt(0)
    @STAMP atomics
    s_barrier
    @STAMP bar2
    ; ---- phase B
    ds_read_b32 v48, v47
    ds_read_b32 v52, v57 offset:4
    s_waitcnt lgkmcnt(1)
    v_add_u32 v49, 7, v48
    v_lshrrev_b32 v49, 3, v49
    v_readlane_b32 s{S_MORE}, v48, 60
    s_nop 0
    v_add_u32_dpp v50, v49, v49 row_shr:1 row_mask:0xf bank_mask:0xf bound_ctrl:0
    """)
    for d in ('row_shr:2', 'row_shr:4', 'row_shr:8'):
        e('s_nop 1')
        e(f'v_add_u32_dpp v50, v50, v50 {d} row_mask:0xf bank_mask:0xf bound_ctrl:0')
    e(f"""
    s_nop 1
    v_add_u32_dpp v50, v50, v50 row_bcast:15 row_mask:0xa bank_mask:0xf
    s_nop 1
    v_add_u32_dpp v50, v50, v50 row_bcast:31 row_mask:0xc bank_mask:0xf
    v_sub_u32 v49, v50, v49            ; uoff
    v_readlane_b32 s{S_TOT}, v50, 50
    v_lshl_add_u32 v51, v49, 5, s{S_TMP}
    s_waitcnt lgkmcnt(0)
    @STAMP scanned
    ds_write_b32 v47, v51 offset:{BASE}
    ds_read_b32 v54, v57 offset:{BASE+4}
    """)
    for sl in range(6):
        e(f's_mov_b64 exec, {mk(sl)}')
        e(f'ds_read_b32 v{64+sl}, v{28+sl} offset:{BASE}')
    e(f"""
    s_mov_b64 exec, -1
    v_sub_u32 v15, 0, v52
    v_and_b32 v15, 7, v15              ; npad
    v_cvt_f32_u32 v53, v15
    s_add_u32 s6, s{S_TOT}, 3
    s_lshr_b32 s6, s6, 2               ; nT
    s_lshr_b32 s{S_QN}, s6, 4
    s_and_b32 s{S_RN}, s6, 15
    v_mul_f32 v8, v53, -v8
    v_mul_f32 v9, v53, -v9
    v_mul_f32 v10, v53, -v10
    v_mul_f32 v11, v53, -v11
    s_cmp_lt_u32 s{S_WV}, s{S_RN}
    s_addc_u32 s{S_NT}, s{S_QN}, 0
    s_min_u32 s6, s{S_WV}, s{S_RN}
    s_mul_i32 s7, s{S_WV}, s{S_QN}
    s_add_u32 s6, s6, s7
    s_lshl_b32 s7, s6, 4               ; ustart*4
    s_lshl_b32 s6, s6, 7               ; ustart*32
    s_add_u32 s6, s6, {RECS}
    s_cmp_eq_u32 s{S_RND}, 0
    s_cbranch_scc1 L_agg0
    ds_read_b128 v[4:7], v1 offset:{AGG}
    s_waitcnt lgkmcnt(0)
    v_pk_add_f32 v[8:9], v[8:9], v[4:5]
    v_pk_add_f32 v[10:11], v[10:11], v[6:7]
L_agg0:
    s_waitcnt lgkmcnt(0)
    @STAMP based
    """)
    recreg = [16, 17, 18, 20, 21, 22, 24, 25, 26]
    for sl in range(6):
        e(f's_mov_b64 exec, {mk(sl)}')
        e(f'v_lshl_add_u32 v{64+sl}, v{37+sl}, 2, v{64+sl}')
        e(f'ds_write_b32 v{64+sl}, v{recreg[sl]}')
    e(f"""
    s_cmp_eq_u64 {mk(6)}, 0
    s_cbranch_scc1 L_skipB
    """)
    for sl in range(6, 9):
        e(f's_mov_b64 exec, {mk(sl)}')
        e(f'ds_read_b32 v{64+sl}, v{28+sl} offset:{BASE}')
    e('s_waitcnt lgkmcnt(0)')
    for sl in range(6, 9):
        e(f's_mov_b64 exec, {mk(sl)}')
        e(f'v_lshl_add_u32 v{64+sl}, v{37+sl}, 2, v{64+sl}')
        e(f'ds_write_b32 v{64+sl}, v{recreg[sl]}')
    e(f"""
L_skipB:
    s_mov_b64 exec, -1
    v_mad_u32_u24 v{AR}, v60, s{S_NT}, v62
    v_mul_u32_u24 v{AN}, s{S_NT}, v61
    v_add_u32 v{AR}, s6, v{AR}
    v_add_u32 v{AN}, s7, v{AN}
    v_mov_b32 v55, {PADREC}
    s_cmp_ge_u32 s{S_WV}, 13
    s_cbranch_scc1 L_special
    ds_write_b128 v1, v[8:11] offset:{AGG}
    v_cmp_gt_u32 vcc, v15, v58
    v_add_u32 v57, v52, v58
    v_lshl_add_u32 v57, v57, 2, v54
    v_lshrrev_b32 v54, 3, v54
    v_lshl_add_u32 v54, v58, 2, v54
    v_lshlrev_b32 v58, 3, v58          ; 8j
    v_mov_b32 v59, v{LA}
    s_mov_b64 exec, vcc
    ds_write_b32 v57, v55
    s_mov_b32 exec_lo, 0x10001
    s_mov_b32 exec_hi, 0x10001
    v_or_b32 v59, 0x80000000, v59
    s_mov_b64 exec, -1
    v_cmp_gt_u32 vcc, v52, v58
    s_mov_b64 exec, vcc
    ds_write_b32 v54, v59 offset:{NTAB-RECS//8}
L_ntab:
    v_add_u32 v58, 128, v58
    v_cmp_gt_u32 vcc, v52, v58
    s_and_b64 exec, exec, vcc
    s_cbranch_execz L_tables_done
    v_add_u32 v54, 64, v54
    ds_write_b32 v54, v{LA} offset:{NTAB-RECS//8}
    s_branch L_ntab
L_special:
    s_cmp_eq_u32 s{S_WV}, 14
    s_cbranch_scc0 L_special2
    s_add_u32 s6, s{S_QN}, 1
    s_lshl_b32 s{S_TMP}, s{S_RN}, 2    ; 4 rn
    s_mul_i32 s7, s{S_TMP}, s6         ; thr
    v_cvt_f32_u32 v52, s6
    v_cvt_f32_u32 v53, s{S_QN}
    v_rcp_f32 v52, v52
    v_rcp_f32 v53, v53
    v_subrev_u32 v54, s7, v49
    v_cvt_f32_u32 v55, v49
    v_cvt_f32_u32 v54, v54
    v_add_f32 v55, 0.5, v55
    v_add_f32 v54, 0.5, v54
    v_mul_f32 v55, v55, v52
    v_mul_f32 v54, v54, v53
    v_cvt_u32_f32 v55, v55
    v_cvt_u32_f32 v54, v54
    v_cmp_gt_u32 vcc, s7, v49
    v_min_u32 v54, 64, v54
    v_add_u32 v54, s{S_TMP}, v54
    v_cndmask_b32 v54, v54, v55, vcc
    v_min_u32 v54, 64, v54
    v_add_lshl_u32 v54, v54, v46, 8    ; 256*(slot+1)
    ds_write_b32 v47, v54 offset:{ST}
    s_branch L_tables_done
L_special2:
    s_cmp_eq_u32 s{S_WV}, 15
    s_cbranch_scc0 L_tables_done
    s_lshl_b32 s6, s{S_TOT}, 5
    s_add_u32 s6, s6, {RECS}
    s_lshl_b32 s7, s{S_TOT}, 2
    v_add_u32 v57, s6, v47
    v_add_u32 v54, s7, v47
    v_mov_b32 v59, {0x80000000 + NB*256}
    s_mov_b64 exec, 0xffffff
    ds_write_b32 v57, v55
    s_mov_b64 exec, 7
    ds_write_b32 v54, v59 offset:{NTAB}
L_tables_done:
    s_mov_b64 exec, -1
    v_lshlrev_b32 v47, 2, v47
    v_add_u32 v47, {LT}, v47
    s_waitcnt lgkmcnt(0)
    @STAMP phaseB
    s_barrier
    @STAMP bar3
    s_cmp_eq_u32 s{S_NT}, 0
    s_cbranch_scc1 L_skip_loop
    s_setprio {3 if PRIO else 0}
    ds_read_u16 v{IDX}, v{AR}
    ds_read_u16 v{N}, v{AR} offset:16
    ds_read_b32 v{X}, v{AN} offset:{NTAB}
    ds_read_u16 v{AV}, v{AR} offset:2
    ds_read_u16 v{N+1}, v{AR} offset:32
    ds_read_u16 v{N+2}, v{AR} offset:18
    ds_read_b128 v[{BS0}:{BS0+3}], v47
    ds_read_b128 v[{BS1}:{BS1+3}], v47 offset:1024
    ds_read_b64 v[{BX}:{BX+1}], v47 offset:2048
    s_mov_b64 s[{S_M}:{S_M+1}], 0
    s_waitcnt lgkmcnt(8)
    {ld(G0, 0)}
    {ld(G0+4, 64)}
    s_waitcnt lgkmcnt(6)
    v_mov_b32 v{IDX}, v{N}
    {ld(G1, 0)}
    {ld(G1+4, 64)}
    """)
    load_c()
    e(f"""
    ds_read_b32 v{X}, v{AN} offset:{NTAB+4}
    v_add_u32 v{Z}, v{Y}, v{LA}
    v_mov_b32 v{ACC}, 0
    v_mov_b32 v{ACC+1}, 0
    v_mov_b32 v{ACC+2}, 0
    v_mov_b32 v{ACC+3}, 0
    s_waitcnt lgkmcnt(8)
    {BUILD_AX}
    v_mov_b32 v{IDX}, v{N+1}
    v_mov_b32 v{AV}, v{N+2}
    s_waitcnt vmcnt(2) lgkmcnt(1)
    """)
    mf(T0, G0, BS0, C)
    mf(T0, G0+4, BS1, T0)
    mf8(T0)
    e(f"""
    {ld(G0, 0)}
    {ld(G0+4, 64)}
    {BUILD_AX}
    ds_read_u16 v{IDX}, v{AR} offset:48
    ds_read_u16 v{AV}, v{AR} offset:34
    s_nop 3
    s_waitcnt vmcnt(2) lgkmcnt(0)
    @STAMP pipeprologue
    s_cmp_lg_u32 s{S_SAFE}, 0
    s_cbranch_scc1 L_safe_loop
    """)
    main_loop(False)
    e(f"""
L_loop_done:
    @STAMP loopdone
    s_setprio 0
    s_movk_i32 s6, 0x300
    v_and_or_b32 v28, v{LA}, s6, v{LQ}  ; 16*lane
    s_and_b32 s{S_TMP}, s{S_WV}, 3     ; mt
    s_lshr_b32 s{S_TMP+1}, s{S_WV}, 2  ; nt
    s_lshl_b32 s6, s{S_TMP}, 12
    s_add_u32 s6, s6, {WUF}
    s_lshl_b32 s7, s{S_TMP+1}, 11
    s_add_u32 s7, s7, {XSF}
    v_add_u32 v29, s6, v28
    v_add_u32 v30, s7, v28
    v_lshrrev_b32 v13, 6, v{LA}        ; 4n
    v_add_u32 v1, v{LA}, v{LQ}         ; 16 t
    ds_read_b128 v[32:35], v29
    ds_read_b128 v[48:51], v30
    ds_read_b128 v[36:39], v29 offset:1024
    ds_read_b128 v[52:55], v30 offset:1024
    ds_read2_b32 v[10:11], v13 offset0:{(ST+4)//4} offset1:{(ST+8)//4}
    ds_read_b128 v[4:7], v1 offset:{AGG}
    ds_read_b128 v[40:43], v29 offset:2048
    ds_read_b128 v[44:47], v29 offset:3072
    v_add_f32 v{TMP}, v{DS}, v{DS+1}
    s_movk_i32 s6, 0x207
    v_and_b32 v31, 12, v13             ; 4*kq
    v_cmp_class_f32 vcc, v{TMP}, s6
    s_mul_i32 s7, s{S_TMP+1}, 2176
    s_add_u32 s7, s7, {AGGB}
    v_lshl_add_u32 v29, v31, 2, v28
    v_add_u32 v29, s7, v29
    v_lshrrev_b32 v14, 5, v{LQ}
    v_mul_u32_u24 v15, 272, v14
    v_bfe_u32 v14, v{LQ}, 4, 1
    v_lshl_add_u32 v15, v14, 3, v15
    v_lshl_add_u32 v15, v31, 2, v15
    s_lshl_b32 s6, s{S_TMP}, 6
    s_add_u32 s7, s7, s6
    v_add_u32 v15, s7, v15
    v_lshlrev_b32 v60, 3, v{LQ}
    v_lshl_add_u32 v60, v31, 1, v60
    v_mov_b32 v{TMP+2}, 1
    s_mov_b64 exec, vcc
    ds_write_b32 v{ZERO}, v{TMP+2} offset:{FLAG}
    s_mov_b64 exec, -1
    s_waitcnt lgkmcnt(0)
    v_mfma_f32_16x16x32_bf16 v[56:59], v[32:35], v[48:51], 0
    v_mfma_f32_16x16x32_bf16 v[56:59], v[36:39], v[52:55], v[56:59]
    v_sub_u32 v11, v11, v10            ; 256*count
    v_add_u32 v10, v{LQ}, v10
    s_movk_i32 s6, 256
    s_movk_i32 s7, 512
    v_cmp_lt_u32 s[{S_TMP+2}:{S_TMP+3}], s6, v11
    v_cmp_lt_u32 s[{S_TMP+4}:{S_TMP+5}], s7, v11
    s_cmp_eq_u32 s{S_WV}, 12
    s_cselect_b64 s[{S_TMP+6}:{S_TMP+7}], 0xffff, -1
    s_cmp_gt_u32 s{S_WV}, 12
    s_barrier
    @STAMP bar4
    ; ---- fold
    s_cbranch_scc1 L_fold_done
    s_mov_b64 exec, s[{S_TMP+6}:{S_TMP+7}]
    ds_read_b128 v[16:19], v10 offset:{PART-256}
    ds_read_b128 v[20:23], v10 offset:{PART}
    ds_read_b128 v[24:27], v10 offset:{PART+256}
    s_waitcnt lgkmcnt(2)
    v_pk_add_f32 v[4:5], v[4:5], v[16:17]
    v_pk_add_f32 v[6:7], v[6:7], v[18:19]
    s_and_b64 exec, exec, s[{S_TMP+2}:{S_TMP+3}]
    s_waitcnt lgkmcnt(1)
    v_pk_add_f32 v[4:5], v[4:5], v[20:21]
    v_pk_add_f32 v[6:7], v[6:7], v[22:23]
    s_and_b64 exec, exec, s[{S_TMP+4}:{S_TMP+5}]
    s_waitcnt lgkmcnt(0)
    v_pk_add_f32 v[4:5], v[4:5], v[24:25]
    v_pk_add_f32 v[6:7], v[6:7], v[26:27]
L_fold:
    s_add_u32 s7, s7, 256
    v_cmp_lt_u32 vcc, s7, v11
    s_and_b64 exec, exec, vcc
    s_cbranch_execz L_fold2
    ds_read_b128 v[16:19], v10 offset:{PART+512}
    v_add_u32 v10, 256, v10
    s_waitcnt lgkmcnt(0)
    v_pk_add_f32 v[4:5], v[4:5], v[16:17]
    v_pk_add_f32 v[6:7], v[6:7], v[18:19]
    s_branch L_fold
L_fold2:
    s_mov_b64 exec, s[{S_TMP+6}:{S_TMP+7}]
    s_cmp_eq_u32 s{S_MORE}, 0
    s_cbranch_scc1 L_fold4
    ds_write_b128 v1, v[4:7] offset:{AGG}
    s_branch L_fold_done
L_fold4:
    s_mov_b32 s6, {NEG_LN2}
    s_mov_b32 s7, {NEG_LN2}
    v_pk_mul_f32 v[4:5], v[4:5], s[6:7]
    v_pk_mul_f32 v[6:7], v[6:7], s[6:7]
    v_cvt_pk_bf16_f32 v4, v4, v5
    v_cvt_pk_bf16_f32 v5, v6, v7
    ds_write_b64 v15, v[4:5]
L_fold_done:
    s_mov_b64 exec, -1
    s_lshl_b32 s6, s{S_TMP}, 5
    s_add_u32 s6, s6, s{S_X0}
    s_lshl_b32 s7, s{S_TMP+1}, 11
    s_add_u32 s6, s6, s7
    s_cmp_eq_u32 s{S_TMP+1}, 3
    s_cselect_b32 s{S_TMP+2}, 0x10001, -1
    s_cmp_eq_u32 s{S_MORE}, 0
    s_waitcnt lgkmcnt(0)
    s_barrier
    s_cbranch_scc1 L_final
    s_add_u32 s{S_RND}, s{S_RND}, 12
L_again:
    v_lshrrev_b32 v0, 4, v1
    s_waitcnt vmcnt(0)
    s_branch L_round
L_final:
    @STAMP bar5
    ds_read_b128 v[48:51], v29
    ds_read_b128 v[52:55], v29 offset:1088
    s_movk_i32 s7, 0x207
    s_waitcnt lgkmcnt(1)
    v_mfma_f32_16x16x32_bf16 v[56:59], v[40:43], v[48:51], v[56:59]
    s_waitcnt lgkmcnt(0)
    v_mfma_f32_16x16x32_bf16 v[56:59], v[44:47], v[52:55], v[56:59]
    s_nop 5
    s_mov_b32 exec_lo, s{S_TMP+2}
    s_mov_b32 exec_hi, s{S_TMP+2}
    """)
    for i in range(4):
        e(f'v_mul_f32 v{4+i}, s{S_L2E}, v{56+i}')
    for i in range(4):
        e(f'v_exp_f32 v{4+i}, v{4+i}')
    e('v_cmp_class_f32 vcc, v56, s7')
    for i in range(4):
        e(f'v_add_f32 v{4+i}, 1.0, v{4+i}')
    for i in range(4):
        e(f'v_rcp_f32 v{4+i}, v{4+i}')
    for i in range(4):
        e(f'v_mul_f32 v{4+i}, v{56+i}, v{4+i}')
    e(f"""
    v_cvt_pk_bf16_f32 v4, v4, v5
    v_cvt_pk_bf16_f32 v5, v6, v7
    buffer_store_dwordx2 v[4:5], v60, s[{SRD_OUT}:{SRD_OUT+3}], s6 offen
    s_cmp_lg_u32 s{S_SAFE}, 0
    s_cbranch_scc1 L_k2_end
    s_mov_b64 exec, vcc
    ds_write_b32 v{ZERO}, v{TMP+2} offset:{FLAG}
    s_mov_b64 exec, -1
    s_waitcnt lgkmcnt(0)
    s_barrier
    ds_read_b32 v2, v{ZERO} offset:{FLAG}
    s_waitcnt lgkmcnt(0)
    v_readfirstlane_b32 s6, v2
    s_cmp_eq_u32 s6, {'s6' if 'nosafe' in X_ else 0}
    s_cbranch_scc1 L_k2_end
    s_mov_b32 s{S_SAFE}, 1
    s_mov_b32 s{S_RND}, 0
    v_mov_b32 v{DS}, 0
    v_mov_b32 v{DS+1}, 0
    s_branch L_again
L_k2_end:
    @FLUSH 1
    s_endpgm
    """)
    main_loop(True)
    e('L_skip_loop:')
    e('s_waitcnt vmcnt(0)')
    e('s_branch L_loop_done')

HEADER = f'''; MPNN edge-MLP layer: two launches.
;  part_kernel: buckets edges by destination range (LDS counting sort) and precomputes P = -log2e * x @ W1 (bf16)
;  main kernel: per bucket of {NB} nodes: sort by node, gather P rows, MFMA unpack(+a*w3+Q), silu sum, update GEMM
; @launch kernel=part_kernel grid=({G+1},1,1) block=({K1_BLOCK},1,1) lds={K1_LDS}
; @launch kernel=gather_scatter__mpnn_edge_mlp__graph_kernel grid=(256,1,1) block=(1024,1,1) lds={K2_LDS}
.amdgcn_target "amdgcn-amd-amdhsa--gfx950"
.text'''

def main():
    k1()
    k2()
    e('.section .rodata,"a"')
    e('.p2align 6')
    kd('part_kernel', 96, 40)
    e('.p2align 6')
    kd('gather_scatter__mpnn_edge_mlp__graph_kernel', 128, 80)
    path = sys.argv[1] if len(sys.argv) > 1 else 'gather_scatter__mpnn_edge_mlp__graph.s'
    open(path, 'w').write(HEADER + '\n' + '\n'.join(out) + '\n')

main()
```

```python
import sys, struct

NODES = 12500
EDGES = 800000
NB = 49
G = 250
CH = 3200
K1_BLOCK = 896
WS_P = 0
WS_Q = 0x200000
WS_TAB = 0x520000
WS_WUF = 0x560000
WS_REC = 0x600000
REC_STRIDE = 20480
INC = 10923

def f32(x):
    return '0x%08x' % struct.unpack('<I', struct.pack('<f', x))[0]
NEG_LOG2E = f32(-1.4426950408889634)
NEG_LN2 = f32(-0.6931471805599453)

out = []
def e(s=''):
    for line in s.split('\n'):
        line = line.strip()
        if not line:
            continue
        if line.startswith('@STAMP'):
            stamp(line[6:].strip()); continue
        if line.startswith('@INIT'):
            stamp_init(); continue
        if line.startswith('@FLUSH'):
            stamp('end'); stamp_rt(1); stamp_flush(int(line[6:])); continue
        if line.endswith(':') or line.startswith('.') or line.startswith(';'):
            out.append(line)
        else:
            out.append('    ' + line)

import os
STAMP = int(os.environ.get('STAMP', '0'))
nstamp = [0]
RTS = os.environ.get('RTS', '').split(',')
kidx_ = [0]
def stamp(name=''):
    if not STAMP: return
    if STAMP == 2:
        k = kidx_[0]
        for j in range(2):
            if len(RTS) > 2*k+j and RTS[2*k+j] == name:
                e(f"""s_waitcnt lgkmcnt(0)
                s_memrealtime s[98:99]
                s_waitcnt lgkmcnt(0)
                s_mov_b32 s{76+j}, s98""")
        return
    if STAMP == 4:
        if name not in ('entry', 'end', 'bar3', 'bar4', 'bar3rt', 'bar4rt', 'loopdone', 'pipeprologue'): return
        if name in ('bar3', 'bar4'): stamp(name + 'rt')
    i = nstamp[0]; nstamp[0] += 1
    e(f"""s_waitcnt lgkmcnt(0)
    {'s_memrealtime' if (STAMP == 3 or name.endswith('rt')) else 's_memtime'} s[98:99]
    s_waitcnt lgkmcnt(0)
    s_mov_b32 s{76+i}, s98""")
def stamp_rt(idx):
    if not STAMP: return
    e(f"""s_waitcnt lgkmcnt(0)
    s_memrealtime s[98:99]
    s_waitcnt lgkmcnt(0)
    s_mov_b32 s{74+idx}, s98""")
def stamp_flush(kidx):
    if not STAMP: return
    e(f"""s_mov_b64 exec, 1
    s_add_u32 s96, s96, {(16+4*kidx)<<20}
    s_addc_u32 s97, s97, 0
    s_mov_b32 s98, 0x400000
    s_mov_b32 s99, 0x20000
    s_lshl_b32 s100, s2, 4
    s_add_u32 s100, s100, s95
    s_lshl_b32 s100, s100, 7
    v_mov_b32 v2, 0""")
    for q in range(1 if STAMP == 2 else 5):
        for i in range(4):
            e(f'v_mov_b32 v{4+4*q+i}, s{74+4*q+i}')
        e(f'buffer_store_dwordx4 v[{4+4*q}:{7+4*q}], v2, s[96:99], s100 offen offset:{16*q}')
    kidx_[0] += 1
def stamp_init():
    if not STAMP: return
    nstamp[0] = 0
    e('s_memrealtime s[98:99]')
    e('s_load_dwordx2 s[96:97], s[0:1], 64')
    for i in range(75, 78 if STAMP == 2 else 94): e(f's_mov_b32 s{i}, 0')
    e('v_readfirstlane_b32 s95, v0')
    e('s_lshr_b32 s95, s95, 6')
    e('s_waitcnt lgkmcnt(0)')
    e('s_mov_b32 s74, s98')
    stamp('entry')

def vr(a, n=1):
    return f'v{a}' if n == 1 else f'v[{a}:{a+n-1}]'
def sr(a, n=1):
    return f's{a}' if n == 1 else f's[{a}:{a+n-1}]'

def scan(v):
    for d in ('row_shr:1', 'row_shr:2', 'row_shr:4', 'row_shr:8'):
        e('s_nop 1')
        e(f'v_add_u32_dpp v{v}, v{v}, v{v} {d} row_mask:0xf bank_mask:0xf bound_ctrl:0')
    e('s_nop 1')
    e(f'v_add_u32_dpp v{v}, v{v}, v{v} row_bcast:15 row_mask:0xa bank_mask:0xf')
    e('s_nop 1')
    e(f'v_add_u32_dpp v{v}, v{v}, v{v} row_bcast:31 row_mask:0xc bank_mask:0xf')

def kd(name, vgpr, sgpr):
    if STAMP: sgpr = 102
    e(f'''.amdhsa_kernel {name}
.amdhsa_next_free_vgpr {vgpr}
.amdhsa_next_free_sgpr {sgpr}
.amdhsa_accum_offset {(vgpr+3)//4*4}
.amdhsa_group_segment_fixed_size 0
.amdhsa_kernarg_size 72
.amdhsa_user_sgpr_count 2
.amdhsa_user_sgpr_kernarg_segment_ptr 1
.amdhsa_system_sgpr_workgroup_id_x 1
.amdhsa_float_denorm_mode_32 {0 if 'nodenorm' in os.environ.get('X','') else 3}
.end_amdhsa_kernel''')

SDW = 'dst_sel:DWORD dst_unused:UNUSED_PAD'
CNT, BASE, ST, FLAG = 0, 256, 512, 768
QS = 1024
NTAB = QS + 16384
AGG = NTAB + 5120
PART = AGG + 16384
RECS = PART + 32768
XS = RECS + 39424
WUS = XS + 64*144
AGGB = WUS + 128*144
K2_LDS = AGGB + 8704
CNT1 = NTAB
GT = NTAB + 1024
W12 = PART
CELL = RECS
PADREC = 0xffff
T0, T1, C, E, G0, G1, BS0, BS1, BX, AX, N, D, TMP, ACC, DS = 0, 16, 32, 48, 64, 72, 80, 84, 88, 90, 92, 96, 100, 104, 108
IDX, CH16, AV, ZERO, X, Y, Z, LQ, LA, AR, AN = 110, 111, 112, 113, 114, 115, 116, 117, 118, 119, 120
WA, XA, BR, BW, OO, QG32, GD4 = 121, 122, 123, 124, 125, 126, 127
S_B, S_WV, S_X0 = 3, 4, 5
SRD_P, SRD_TAB, SRD_REC, SRD_OUT, SRD_A, SRD_B, SRD_C = 8, 12, 16, 20, 24, 28, 32
S_MASK = 36
S_RND, S_SAFE, S_TOT, S_NT, S_QN, S_RN, S_MORE, S_SPIN = 54, 55, 56, 57, 58, 59, 60, 61
S_M = 62
S_TMP = 64
S_L2E = 72
SPIN_MAX = 400000

X_ = os.environ.get('X', '').split(',')
PRIO = [int(x) for x in os.environ.get('PRIO', '3,1').split(',') if x]
def mf(T, a, b, c):
    if 'nomfma' in X_: return
    e(f'v_mfma_f32_32x32x16_bf16 v[{T}:{T+15}], v[{a}:{a+3}], v[{b}:{b+3}], v[{c}:{c+15}]')
def mf8(T):
    if 'nomfma' in X_: return
    e(f'v_mfma_f32_32x32x8_bf16 v[{T}:{T+15}], v[{AX}:{AX+1}], v[{BX}:{BX+1}], v[{T}:{T+15}]')
BUILD_AX = f'v_lshlrev_b64 v[{AX}:{AX+1}], v{CH16}, v[{AV}:{AV+1}]'
def ld(g, off):
    if 'nogather' in X_: return 's_nop 0\ns_nop 0'
    return f'buffer_load_dwordx4 v[{g}:{g+3}], v[{IDX}:{IDX+1}], s[{SRD_P}:{SRD_P+3}], 0 idxen offen' + (f' offset:{off}' if off else '')
def load_c():
    e(f'v_add_u32_sdwa v{Y}, v{X}, v{LQ} {SDW} src0_sel:WORD_0 src1_sel:DWORD')
    for i in range(4):
        e(f'ds_read_b128 v[{C+4*i}:{C+4*i+3}], v{Y} offset:{QS}')
def exps(T, a, b):
    if 'noexp' in X_: return
    for i in range(a, b):
        e(f'v_exp_f32 v{E+i}, v{T+i}')
def p2(r):
    return f'v[{r}:{r+1}]'
def pk_phase(T, first, safe):
    if 'nopk' in X_: return
    if safe:
        for i in range(8):
            e(f'v_pk_add_f32 {p2(E+2*i)}, {p2(E+2*i)}, 1.0 op_sel_hi:[1,0]')
        for i in range(16):
            e(f'v_rcp_f32 v{E+i}, v{E+i}')
        for gd in range(4):
            for s in range(2):
                if first and gd == 0:
                    e(f'v_pk_mul_f32 {p2(N+2*s)}, {p2(T+2*s)}, {p2(E+2*s)}')
                else:
                    e(f'v_pk_fma_f32 {p2(N+2*s)}, {p2(T+4*gd+2*s)}, {p2(E+4*gd+2*s)}, {p2(N+2*s)}')
        return
    for gd in range(4):
        if first and gd == 0:
            for s in range(2):
                e(f'v_pk_add_f32 {p2(D+2*s)}, {p2(E+2*s)}, 1.0 op_sel_hi:[1,0]')
            continue
        for s in range(2):
            ns = (T+2*s) if (first and gd == 1) else (N+2*s)
            e(f'v_pk_fma_f32 {p2(TMP+2*s)}, {p2(ns)}, {p2(E+4*gd+2*s)}, {p2(ns)}')
        for s in range(2):
            e(f'v_pk_fma_f32 {p2(N+2*s)}, {p2(T+4*gd+2*s)}, {p2(D+2*s)}, {p2(TMP+2*s)}')
        for s in range(2):
            e(f'v_pk_fma_f32 {p2(D+2*s)}, {p2(D+2*s)}, {p2(E+4*gd+2*s)}, {p2(D+2*s)}')

def capture(fn, *a):
    n0 = len(out)
    fn(*a)
    r = [x.strip() for x in out[n0:]]
    del out[n0:]
    return r

def weave(main, fillers, start=0, step=2):
    fillers = list(fillers)
    for i, m in enumerate(main):
        e(m)
        if i >= start and (i - start) % step == 0 and fillers:
            e(fillers.pop(0))
    for f in fillers:
        e(f)

NCOVER = int(os.environ.get('NCOVER', '12'))
WSTEP = int(os.environ.get('WSTEP', '2'))
def msection(Tn, Gn, Tc, extra):
    mf(Tn, Gn, BS0, C)
    exps(Tc, 0, 3)
    mf(Tn, Gn+4, BS1, Tn)
    exps(Tc, 3, 6)
    mf8(Tn)
    exps(Tc, 6, 8)
    for x in extra: e(x)
    exps(Tc, 8, NCOVER)

def main_loop(safe):
    L = 'L_safe' if safe else 'L_fast'
    M = f's[{S_M}:{S_M+1}]'
    e('.p2align 6')
    e(f'{L}_loop:')
    msection(T1, G1, T0, [BUILD_AX, f'v_cmp_gt_i32 vcc, 0, v{X}', f'v_add_u32 v{AN}, 4, v{AN}'])
    e(ld(G1, 0))
    flush = f"""s_mov_b64 exec, {M}
    s_cbranch_execz {L}_nf
    ds_write_b128 v{Z}, v[{ACC}:{ACC+3}] offset:{PART}
    v_add_u32_e64 v{Z}, v{Y}, v{LA}
    ds_read_b128 v[{ACC}:{ACC+3}], v{Z} offset:{PART}
{L}_nf:
    s_mov_b64 exec, vcc
    s_cbranch_execz {L}_nc
    """ + '\n'.join(capture(load_c)) + f"""
{L}_nc:
    s_mov_b64 exec, -1
    s_mov_b64 {M}, vcc"""
    weave(capture(exps, T0, NCOVER, 16), [ld(G1+4, 64), flush], 1, 2)
    fl = [f'ds_read_u16 v{IDX}, v{AR} offset:64', f'ds_read_u16 v{AV}, v{AR} offset:50', f'ds_read_b32 v{X}, v{AN} offset:{NTAB+4}']
    weave(capture(pk_phase, T0, True, safe), fl, 1, WSTEP)
    e(f's_sub_u32 s{S_NT}, s{S_NT}, 1')
    e('s_waitcnt vmcnt(2) lgkmcnt(1)')
    msection(T0, G0, T1, [BUILD_AX])
    e(ld(G0, 0))
    weave(capture(exps, T1, NCOVER, 16), [ld(G0+4, 64)], 1, 2)
    fl = [f'ds_read_u16 v{IDX}, v{AR} offset:80', f'ds_read_u16 v{AV}, v{AR} offset:66']
    if 'iter' in X_ and not safe:
        fl += [('s_memrealtime' if 'iterrt' in X_ else 's_memtime') + ' s[98:99]', f's_mov_b32 m0, s{S_NT}\ns_nop 0']
    if PRIO and not safe:
        fl += [f's_cmp_eq_u32 s{S_NT}, {PRIO[0]}\ns_cbranch_scc0 {L}_p1\ns_setprio 2\n{L}_p1:\ns_cmp_eq_u32 s{S_NT}, {PRIO[1]}\ns_cbranch_scc0 {L}_p2\ns_setprio 1\n{L}_p2:']
    weave(capture(pk_phase, T1, False, safe), fl, 1, WSTEP)
    if not safe:
        for i in range(4):
            e(f'v_rcp_f32 v{TMP+i}, v{D+i}')
        e(f'v_pk_fma_f32 {p2(DS)}, {p2(D)}, {p2(D+2)}, {p2(DS)}')
    e(f'v_add_u32_e64 v{AR}, 32, v{AR}')
    e(f's_cmp_lg_u32 s{S_NT}, 0')
    e('s_waitcnt vmcnt(2) lgkmcnt(0)')
    if 'iter' in X_ and not safe:
        e('s_movreld_b32 s84, s98\ns_nop 0')
    for s in range(2):
        if safe:
            e(f'v_pk_add_f32 {p2(ACC+2*s)}, {p2(N+2*s)}, {p2(ACC+2*s)}')
        else:
            e(f'v_pk_fma_f32 {p2(ACC+2*s)}, {p2(N+2*s)}, {p2(TMP+2*s)}, {p2(ACC+2*s)}')
    e(f's_cbranch_scc1 {L}_loop')
    e(f'ds_write_b128 v{Z}, v[{ACC}:{ACC+3}] offset:{PART}')

RLF = os.environ.get('RLF', 'sc1')
def srd(r): return f's[{r}:{r+3}]'
def phase1():
    NE, NP = 5, 4
    A, B, Cc = SRD_A, SRD_B, SRD_C
    e(f"""
    @INIT
    s_cmp_ge_u32 s2, 256
    s_cbranch_scc1 L_k2_end
    v_readfirstlane_b32 s{S_WV}, v0
    s_load_dwordx2 s[{SRD_P}:{SRD_P+1}], s[0:1], 64
    s_and_b32 s{S_B}, s2, 7
    s_lshl_b32 s{S_B}, s{S_B}, 5
    s_lshr_b32 s{S_TMP}, s2, 3
    s_add_u32 s{S_B}, s{S_B}, s{S_TMP}
    s_mul_i32 s{S_X0}, s{S_B}, {NB*128}
    s_lshr_b32 s{S_WV}, s{S_WV}, 6
    s_mov_b32 s{A+3}, 0x20000
    s_mov_b32 s{B+3}, 0x20000
    s_mov_b32 s{Cc+3}, 0x20000
    s_mov_b32 s{SRD_P+3}, 0x20000
    s_mov_b32 s{SRD_TAB+2}, {256*1024}
    s_mov_b32 s{SRD_TAB+3}, 0x20000
    s_mov_b32 s{SRD_REC+2}, {G*REC_STRIDE}
    s_mov_b32 s{SRD_REC+3}, 0x20000
    s_cmp_lt_u32 s{S_WV}, 4
    s_cbranch_scc1 L_p
    s_cmp_ge_u32 s{S_WV}, 14
    s_cbranch_scc1 L_aux
    s_load_dwordx2 s[{A}:{A+1}], s[0:1], 24
    s_load_dwordx2 s[{B}:{B+1}], s[0:1], 16
    s_load_dwordx2 s[{Cc}:{Cc+1}], s[0:1], 8
    s_mov_b32 s{A+2}, {EDGES*4}
    s_mov_b32 s{B+2}, {EDGES*4}
    s_mov_b32 s{Cc+2}, {EDGES*2}
    s_mul_i32 s40, s{S_B}, {CH*4}
    s_add_u32 s41, s40, {2560*4}
    s_mul_i32 s42, s{S_B}, {CH*2}
    s_add_u32 s43, s42, {2560*2}
    v_subrev_u32 v9, 256, v0
    v_lshlrev_b32 v1, 4, v9
    v_lshlrev_b32 v25, 2, v9
    v_lshlrev_b32 v2, 3, v9
    v_lshlrev_b32 v3, 1, v9
    s_waitcnt lgkmcnt(0)
    buffer_load_dwordx4 v[4:7], v1, {srd(A)}, s40 offen
    buffer_load_dword v8, v25, {srd(A)}, s41 offen
    buffer_load_dwordx4 v[12:15], v1, {srd(B)}, s40 offen
    buffer_load_dwordx2 v[20:21], v2, {srd(Cc)}, s42 offen
    buffer_load_dword v16, v25, {srd(B)}, s41 offen
    buffer_load_ushort v22, v3, {srd(Cc)}, s43 offen
    v_mov_b32 v24, 0
    ds_write_b32 v25, v24 offset:{CNT1}
    s_add_u32 s{SRD_REC}, s{SRD_P}, {WS_REC}
    s_addc_u32 s{SRD_REC+1}, s{SRD_P+1}, 0
    s_mul_i32 s44, s{S_B}, {REC_STRIDE}
    s_mov_b32 s45, {-NB*4 & 0xffffffff}
    s_mov_b32 s46, 0xffff0000
    s_mov_b32 s47, {32<<13}
    s_mov_b32 s48, {CELL}
    s_mov_b64 s[50:51], 0
    v_mov_b32 v3, {INC}
    v_lshrrev_b32 v26, 3, v9           ; cell
    v_and_b32 v27, 0x70, v1            ; 16*k
    v_mul_u32_u24 v62, 144, v26
    v_add3_u32 v62, v62, v27, s48
    v_lshlrev_b32 v26, 2, v26
    v_and_b32 v60, 0x3f0, v1           ; 16*lane
    s_cmp_ge_u32 s{S_B}, {G}
    s_waitcnt lgkmcnt(0)
    s_barrier
    @STAMP bar1
    s_cbranch_scc1 L_noedges
    s_waitcnt vmcnt(4)
    """)
    R = range(NE)
    for i in R: e(f'v_mul_u32_u24 v{28+i}, 42800, v{4+i}')
    for i in R: e(f'v_lshrrev_b32 v{44+i}, 21, v{28+i}')
    for i in R:
        e(f'v_lshlrev_b32 v{28+i}, 2, v{44+i}')
        e(f'ds_add_rtn_u32 v{36+i}, v{28+i}, v3 offset:{CNT1}')
    for i in R: e(f'v_lshl_add_u32 v{4+i}, v{4+i}, 2, 4')
    for i in R: e(f'v_mad_i32_i24 v{4+i}, v{44+i}, s45, v{4+i}')
    e('s_waitcnt vmcnt(0)')
    e('@STAMP allloaded')
    for i in R:
        a = 20 + i//2
        if i % 2 == 0:
            e(f'v_lshl_or_b32 v{12+i}, v{a}, 16, v{12+i}')
        else:
            e(f'v_and_or_b32 v{12+i}, v{a}, s46, v{12+i}')
    for i in R:
        e(f's_waitcnt lgkmcnt({NE-1-i+2*i})')
        e(f'v_min_u32 v{44+i}, s47, v{36+i}')
        e(f'v_bfe_u32 v{52+i}, v{44+i}, 13, 2')
        e(f'v_lshrrev_b32 v{44+i}, 13, v{44+i}')
        e(f'v_mad_u32_u24 v{44+i}, v{28+i}, 9, v{44+i}')
        e(f'v_lshl_add_u32 v{44+i}, v{44+i}, 2, s48')
        e(f'ds_write_b32 v{44+i}, v{12+i}')
        e(f'v_mad_i32_i24 v{52+i}, v{52+i}, -3, v{44+i}')
        e(f'ds_write_b8 v{52+i}, v{4+i} offset:12')
    e(f"""
    v_max3_u32 v2, v36, v37, v38
    v_max3_u32 v2, v2, v39, v40
    v_cmp_le_u32 s[50:51], s47, v2
L_noedges:
    s_waitcnt vmcnt(0) lgkmcnt(0)
    s_barrier
    @STAMP bar2p
    ds_read_b128 v[52:55], v60 offset:{CNT1}
    """)
    for p in range(NP):
        e(f'ds_read_b128 v[{64+4*p}:{67+4*p}], v62 offset:{p*80*144}')
    e(f's_waitcnt lgkmcnt({NP})')
    for i in range(4): e(f'v_add_u32 v{44+i}, {2*INC}, v{52+i}')
    for i in range(4): e(f'v_lshrrev_b32 v{44+i}, 15, v{44+i}')
    e("""
    v_add_u32 v48, v44, v45
    v_add_u32 v49, v48, v46
    v_add_u32 v50, v49, v47
    s_nop 1
    v_add_u32_dpp v61, v50, v50 row_shr:1 row_mask:0xf bank_mask:0xf bound_ctrl:0
    """)
    for d in ('row_shr:2', 'row_shr:4', 'row_shr:8'):
        e('s_nop 1')
        e(f'v_add_u32_dpp v61, v61, v61 {d} row_mask:0xf bank_mask:0xf bound_ctrl:0')
    e(f"""
    s_nop 1
    v_add_u32_dpp v61, v61, v61 row_bcast:15 row_mask:0xa bank_mask:0xf
    s_nop 1
    v_add_u32_dpp v61, v61, v61 row_bcast:31 row_mask:0xc bank_mask:0xf
    v_sub_u32 v56, v61, v50
    v_add_u32 v57, v56, v44
    v_add_u32 v58, v56, v48
    v_add_u32 v59, v56, v49
    """)
    for i in range(4): e(f'v_lshl_or_b32 v{44+i}, v{44+i}, 16, v{56+i}')
    for i in range(4): e(f'v_lshlrev_b32 v{44+i}, 4, v{44+i}')
    e(f'ds_write_b128 v60, v[44:47] offset:{GT}')
    for p in range(NP):
        e(f'ds_read_b32 v{48+p}, v26 offset:{GT + p*320}')
    for p in range(NP):
        if p == NP-1:
            e(f's_cmp_ge_u32 s{S_WV}, 6')
            e('s_cbranch_scc1 L_copied')
        e(f's_waitcnt lgkmcnt({NP-1-p})')
        e(f'v_cmp_lt_u32_sdwa vcc, v27, v{48+p} src0_sel:DWORD src1_sel:WORD_1')
        e(f'v_add_u32_sdwa v{48+p}, v27, v{48+p} {SDW} src0_sel:DWORD src1_sel:WORD_0')
        e('s_and_b64 exec, exec, vcc')
        e(f's_cbranch_execz L_c{p}')
        e(f'buffer_store_dwordx4 v[{64+4*p}:{67+4*p}], v{48+p}, {srd(SRD_REC)}, s44 offen sc1')
        e(f'L_c{p}:')
        e('s_mov_b64 exec, -1')
    e(f"""
L_copied:
    s_cmp_eq_u64 s[50:51], 0
    s_cbranch_scc1 L_common
    """)
    for i in R:
        e(f"""
        v_cmp_le_u32 vcc, s47, v{36+i}
        s_and_b64 exec, exec, vcc
        s_cbranch_execz L_o{i}
        ds_read_u16 v44, v{28+i} offset:{GT}
        v_lshrrev_b32 v45, 13, v{36+i}
        v_and_b32 v46, 3, v45
        s_waitcnt lgkmcnt(0)
        v_lshl_add_u32 v45, v45, 2, v44
        v_mad_i32_i24 v46, v46, -3, v45
        buffer_store_dword v{12+i}, v45, {srd(SRD_REC)}, s44 offen sc1
        buffer_store_byte v{4+i}, v46, {srd(SRD_REC)}, s44 offen offset:12 sc1
L_o{i}:
        s_mov_b64 exec, -1""")
    e('s_branch L_common')
    e(f"""
L_p:
    s_load_dwordx2 s[{A}:{A+1}], s[0:1], 0
    s_load_dwordx2 s[{B}:{B+1}], s[0:1], 32
    s_add_u32 s40, s{S_X0}, {(NB+1)*128}
    s_min_u32 s{A+2}, s40, {NODES*128}
    s_mov_b32 s{B+2}, 16384
    s_movk_i32 s41, 4096
    s_movk_i32 s42, 8192
    s_movk_i32 s43, 12288
    s_add_u32 s44, s{S_X0}, 4096
    v_lshlrev_b32 v1, 4, v0
    s_waitcnt lgkmcnt(0)
    buffer_load_dwordx4 v[40:43], v1, {srd(A)}, s{S_X0} offen
    buffer_load_dwordx4 v[44:47], v1, {srd(A)}, s44 offen
    buffer_load_dwordx4 v[24:27], v1, {srd(B)}, 0 offen
    buffer_load_dwordx4 v[28:31], v1, {srd(B)}, s41 offen
    buffer_load_dwordx4 v[32:35], v1, {srd(B)}, s42 offen
    buffer_load_dwordx4 v[36:39], v1, {srd(B)}, s43 offen
    s_add_u32 s{SRD_REC}, s{SRD_P}, {WS_REC}
    s_addc_u32 s{SRD_REC+1}, s{SRD_P+1}, 0
    v_lshrrev_b32 v2, 3, v0
    v_and_b32 v3, 0x70, v1
    v_mul_u32_u24 v4, 192, v2
    v_add_u32 v4, v4, v3
    v_mul_u32_u24 v5, 144, v2
    v_add_u32 v5, v5, v3
    v_add_u32 v5, {XS}, v5
    v_bfe_u32 v6, v0, 5, 1             ; h
    v_bfe_u32 v7, v0, 2, 2             ; r
    v_lshl_add_u32 v8, v6, 3, v7
    v_mul_u32_u24 v8, 192, v8          ; (8h + r)*192
    v_bfe_u32 v9, v0, 4, 1
    v_and_b32 v10, 3, v0               ; c
    v_lshl_add_u32 v11, v9, 2, v10     ; gamma
    s_lshr_b32 s45, s{S_WV}, 1         ; which
    s_and_b32 s46, s{S_WV}, 1
    s_sub_u32 s47, 4, s45
    v_lshlrev_b32 v11, s47, v11
    s_mul_i32 s47, s45, {64*192}
    v_add3_u32 v8, v8, v11, s47
    s_mul_i32 s47, s45, 56
    s_add_u32 s47, s47, 8
    v_add_u32 v12, s47, v8
    v_and_b32 v13, 31, v0
    v_mul_u32_u24 v14, 144, v13
    v_lshl_add_u32 v14, v6, 4, v14
    s_mul_i32 s47, s46, {32*144}
    s_add_u32 s47, s47, {XS}
    v_add_u32 v14, s47, v14
    s_mov_b32 s48, {NEG_LOG2E}
    s_waitcnt vmcnt(5)
    ds_write_b128 v5, v[40:43]
    s_waitcnt vmcnt(4)
    ds_write_b128 v5, v[44:47] offset:{32*144}
    """)
    for i in range(4):
        e(f's_waitcnt vmcnt({3-i})')
        e(f'ds_write_b128 v4, v[{24+4*i}:{27+4*i}] offset:{W12 + 32*192*i}')
    e("""
    s_waitcnt lgkmcnt(0)
    s_barrier
    """)
    def step_reads(s_):
        e(f'ds_read_b128 v[{16+12*s_}:{19+12*s_}], v14 offset:{32*s_}')
        for t_ in range(2):
            for h in range(2):
                r = 20 + 12*s_ + 4*t_ + 2*h
                e(f'ds_read_b64_tr_b16 v[{r}:{r+1}], v{8 if t_ == 0 else 12} offset:{W12 + (16*s_ + 4*h)*192}')
    for s_ in range(3): step_reads(s_)
    for s_ in range(4):
        e(f's_waitcnt lgkmcnt({[10, 10, 5, 0][s_]})')
        for t_ in range(2):
            d = 64 + 16*t_
            e(f'v_mfma_f32_32x32x16_bf16 v[{d}:{d+15}], v[{16+12*s_}:{19+12*s_}], v[{20+12*s_+4*t_}:{23+12*s_+4*t_}], ' + ('0' if s_ == 0 else f'v[{d}:{d+15}]'))
        if s_ == 0: step_reads(3)
    e(f"""
    s_cmp_eq_u32 s45, 0
    s_cbranch_scc0 L_q
    s_add_u32 s40, s{S_X0}, {NB*128}
    s_min_u32 s{SRD_P+2}, s40, {NODES*128}
    s_lshl_b32 s46, s46, 12
    s_add_u32 s46, s46, s{S_X0}
    v_lshlrev_b32 v2, 6, v9
    v_lshl_add_u32 v2, v10, 4, v2
    v_lshl_add_u32 v2, v7, 2, v2
    v_lshl_add_u32 v2, v6, 9, v2       ; + 4h rows
    s_nop 3
    """)
    for v in range(16):
        e(f'v_mul_f32 v{64+v}, s48, v{64+v}')
        e(f'v_mul_f32 v{80+v}, s48, v{80+v}')
        e(f'v_cvt_pk_bf16_f32 v{64+v}, v{64+v}, v{80+v}')
        e(f'buffer_store_dword v{64+v}, v2, {srd(SRD_P)}, s46 offen offset:{(8*(v//4) + v%4)*128} sc1')
    e(f"""
    s_barrier
    s_branch L_common
L_q:
    s_lshl_b32 s46, s46, 13
    v_lshlrev_b32 v2, 2, v13
    v_lshl_add_u32 v2, v6, 10, v2
    v_add_u32 v2, s46, v2
    s_nop 7
    """)
    for v in range(16):
        e(f'v_mul_f32 v{64+v}, s48, v{64+v}')
        e(f'v_mul_f32 v{80+v}, s48, v{80+v}')
        off = QS + (8*(v//4) + v%4)*256
        e(f'ds_write_b32 v2, v{64+v} offset:{off}')
        e(f'ds_write_b32 v2, v{80+v} offset:{off+128}')
    e(f"""
    s_waitcnt lgkmcnt(0)
    s_barrier
    s_branch L_common
L_aux:
    s_load_dwordx2 s[{A}:{A+1}], s[0:1], 40
    s_load_dwordx2 s[{B}:{B+1}], s[0:1], 56
    s_mov_b32 s{A+2}, 16384
    s_mov_b32 s{B+2}, 256
    v_subrev_u32 v9, 896, v0
    v_lshlrev_b32 v1, 4, v9
    v_lshrrev_b32 v2, 3, v9
    v_mul_u32_u24 v2, 144, v2
    v_and_b32 v3, 0x70, v1
    v_add_u32 v2, v2, v3
    v_add_u32 v2, {WUS}, v2
    v_mov_b32 v4, 0
    v_mov_b32 v5, 0
    v_mov_b32 v6, 0
    v_mov_b32 v7, 0
    s_movk_i32 s41, 4096
    s_movk_i32 s42, 8192
    s_movk_i32 s43, 12288
    s_lshl_b32 s40, s{S_B}, 10
    s_waitcnt lgkmcnt(0)
    s_add_u32 s{SRD_TAB}, s{SRD_P}, {WS_TAB}
    s_addc_u32 s{SRD_TAB+1}, s{SRD_P+1}, 0
    s_add_u32 s{SRD_REC}, s{SRD_P}, {WS_REC}
    s_addc_u32 s{SRD_REC+1}, s{SRD_P+1}, 0
    s_cmp_eq_u32 s{S_WV}, 14
    s_cbranch_scc0 L_aux1
    buffer_store_dwordx4 v[4:7], v1, {srd(SRD_TAB)}, s40 offen sc1
L_aux1:
    s_barrier
    """)
    for i in range(8):
        e(f'buffer_load_dwordx4 v[{16+4*i}:{19+4*i}], v1, {srd(A)}, {["0", "s41", "s42", "s43"][i//2]} offen offset:{2048*(i%2)}')
    e(f"""
    s_cmp_eq_u32 s{S_WV}, 14
    s_cbranch_scc0 L_aux2
    s_and_b32 s40, s2, 3
    s_lshl_b32 s40, s40, 6
    v_mov_b32 v5, 1
    s_waitcnt vmcnt(8)
    s_mov_b64 exec, 1
    buffer_atomic_add v5, v4, {srd(B)}, s40 offen sc1
    s_mov_b64 exec, -1
L_aux2:
    s_barrier
    s_waitcnt vmcnt(0)
    """)
    for i in range(8):
        e(f'ds_write_b128 v2, v[{16+4*i}:{19+4*i}] offset:{16*144*i}')
    e(f"""
    s_cmp_eq_u32 s{S_WV}, 14
    s_cbranch_scc0 L_common
    v_lshlrev_b32 v5, 6, v9
    s_mov_b32 s{S_SPIN}, 0
    s_mov_b64 exec, 15
L_ipoll:
    buffer_load_dword v6, v5, {srd(B)}, 0 offen sc1
    s_add_u32 s{S_SPIN}, s{S_SPIN}, 1
    s_waitcnt vmcnt(0)
    v_cmp_ne_u32 vcc, 64, v6
    s_cbranch_vccz L_ipoll_done
    s_sleep 8
    s_cmp_lt_u32 s{S_SPIN}, {SPIN_MAX}
    s_cbranch_scc1 L_ipoll
L_ipoll_done:
    s_mov_b64 exec, -1
    """)

def k2():
    e(""".globl gather_scatter__mpnn_edge_mlp__graph_kernel
.p2align 8
.type gather_scatter__mpnn_edge_mlp__graph_kernel,@function
gather_scatter__mpnn_edge_mlp__graph_kernel:""")
    def mk(i): return f's[{S_MASK+2*i}:{S_MASK+2*i+1}]'
    phase1()
    A = SRD_A
    e(f"""
L_common:
    @STAMP issued
    s_load_dwordx2 s[{A}:{A+1}], s[0:1], 32
    s_load_dwordx2 s[{SRD_OUT}:{SRD_OUT+1}], s[0:1], 48
    s_mov_b32 s{A+2}, {129*128}
    s_mov_b32 s{SRD_OUT+2}, {NODES*128}
    s_mov_b32 s{SRD_OUT+3}, 0x20000
    s_add_u32 s{SRD_TAB}, s{SRD_P}, {WS_TAB}
    s_addc_u32 s{SRD_TAB+1}, s{SRD_P+1}, 0
    s_or_b32 s{SRD_P+1}, s{SRD_P+1}, {128<<16}
    s_mov_b32 s{SRD_P+2}, {NODES}
    s_mov_b32 s{S_RND}, 0
    s_mov_b32 s{S_SAFE}, 0
    s_mov_b32 s{S_L2E}, {NEG_LOG2E}
    s_movk_i32 s6, 16384
    v_lshlrev_b32 v1, 4, v0            ; 16 t
    v_and_b32 v{LQ}, 0xf0, v1
    v_and_b32 v{LA}, 0x3f00, v1
    v_and_b32 v{CH16}, 0x30, v1
    v_lshrrev_b32 v2, 1, v{LQ}
    v_mov_b32 v{DS}, 0
    v_mov_b32 v{DS+1}, 0
    v_mov_b32 v{ZERO}, 0
    v_and_b32 v60, 0x3f0, v1
    s_cmp_lg_u32 s{S_WV}, 13
    s_cbranch_scc1 L_norow
    ; table row of wave 13: counts<<16 | 0x8000 | start
    """)
    for i in range(4): e(f'v_lshl_add_u32 v{52+i}, v{52+i}, 1, v{52+i}')
    for i in range(4): e(f'v_lshrrev_b32 v{52+i}, 15, v{52+i}')
    for i in range(4): e(f'v_lshl_or_b32 v{52+i}, v{52+i}, 16, v{56+i}')
    for i in range(4): e(f'v_or_b32 v{52+i}, 0x8000, v{52+i}')
    e('L_norow:')
    e(f"""
    s_waitcnt lgkmcnt(0)
    buffer_load_dwordx2 v[12:13], v2, {srd(A)}, s6 offen
    ds_write_b32 v{ZERO}, v{ZERO} offset:{FLAG}
    v_lshrrev_b32 v32, 1, v0
    v_xor_b32 v32, v32, v0
    v_and_b32 v32, 16, v32
    v_and_b32 v33, 16, v1
    v_mov_b32 v41, 0x3f80
    v_lshlrev_b32 v33, v33, v41
    v_bfe_u32 v41, v0, 1, 3
    v_or_b32 v41, v41, v32
    """)
    for d in range(8):
        e(f'v_cmp_eq_u32 {mk(d)}, {d}, v41')
    for d in range(8):
        e(f'v_cndmask_b32 v{BS0+d}, 0, v33, {mk(d)}')
    e(f"""
    v_cmp_eq_u32 {mk(8)}, 0, v32
    s_and_b32 s{S_TMP}, s{S_WV}, 3     ; mt
    s_lshr_b32 s{S_TMP+1}, s{S_WV}, 2  ; nt
    v_bfe_u32 v31, v0, 4, 2            ; kq
    v_bfe_u32 v{WA}, v0, 2, 2
    v_lshl_add_u32 v{WA}, v31, 3, v{WA}
    v_mul_u32_u24 v{WA}, 144, v{WA}
    v_lshrrev_b32 v30, 1, v{CH16}
    s_lshl_b32 s6, s{S_TMP}, 5
    s_add_u32 s6, s6, {WUS}
    v_add3_u32 v{WA}, v{WA}, v30, s6
    v_and_b32 v30, 0x30, v0            ; 16*kq
    v_mad_u32_u24 v{XA}, v{LQ}, 9, v30
    s_mul_i32 s6, s{S_TMP+1}, {16*144}
    s_add_u32 s6, s6, {XS}
    v_add_u32 v{XA}, s6, v{XA}
    s_mul_i32 s7, s{S_TMP+1}, 2176
    s_add_u32 s7, s7, {AGGB}
    v_mad_u32_u24 v{BR}, v30, 17, v{LQ}
    v_add_u32 v{BR}, s7, v{BR}         ; 272*kq + 16*(l&15)
    v_lshrrev_b32 v14, 5, v{LQ}
    v_mul_u32_u24 v{BW}, 272, v14
    v_bfe_u32 v14, v0, 0, 1
    v_lshl_add_u32 v{BW}, v14, 3, v{BW}
    s_lshl_b32 s6, s{S_TMP}, 6
    s_add_u32 s7, s7, s6
    v_add3_u32 v{BW}, v{BW}, v30, s7   ; (j>>1)*272 + 16*(n&15) + 8*(j&1)
    v_lshlrev_b32 v{OO}, 3, v{LQ}
    v_lshl_add_u32 v{OO}, v31, 3, v{OO}
    v_bfe_u32 v14, v0, 2, 1
    v_and_b32 v15, 32, v0
    v_lshl_add_u32 v{QG32}, v14, 6, v15
    v_lshrrev_b32 v{GD4}, 1, v0
    v_and_b32 v{GD4}, 12, v{GD4}
    s_lshl_b32 s6, s{S_B}, 10
    s_lshl_b32 s{S_B}, s{S_B}, 2
    s_mov_b32 s{S_SPIN}, 0
    s_cmp_eq_u32 s{S_WV}, 13
    s_waitcnt vmcnt(0)
    @STAMP drained
    s_barrier
    s_cbranch_scc0 L_nopub
    buffer_store_dwordx4 v[52:55], v60, {srd(SRD_TAB)}, s6 offen sc1
L_nopub:
    v_cndmask_b32 v12, 0, v12, {mk(8)}
    v_cndmask_b32 v13, 0, v13, {mk(8)}
    v_lshlrev_b32 v24, 16, v12
    v_and_b32 v25, 0xffff0000, v12
    v_lshlrev_b32 v26, 16, v13
    v_and_b32 v27, 0xffff0000, v13
    v_mul_f32 v24, s{S_L2E}, v24
    v_mul_f32 v25, s{S_L2E}, v25
    v_mul_f32 v26, s{S_L2E}, v26
    v_mul_f32 v27, s{S_L2E}, v27
    v_cvt_pk_bf16_f32 v{BX}, v24, v25
    v_cvt_pk_bf16_f32 v{BX+1}, v26, v27
L_round:
    ds_read_b128 v[4:7], v1 offset:{QS}
    v_mov_b32 v28, 0
    v_mov_b32 v29, 0
    v_mov_b32 v30, 0
    v_mov_b32 v31, 0
    v_and_b32 v33, 0xfc, v0
    ds_write_b32 v33, v28
    ds_write_b128 v1, v[28:31] offset:{PART}
    ds_write_b128 v1, v[28:31] offset:{PART+16384}
    v_lshrrev_b32 v2, 2, v0            ; g
    v_lshlrev_b32 v14, 10, v2
    v_and_b32 v3, 3, v0
    v_add_u32 v3, s{S_RND}, v3
    v_mul_u32_u24 v2, {REC_STRIDE//16}, v2
    v_add_u32 v2, v2, v3
    v_subrev_u32 v2, 0x8000, v2
    v_mul_u32_u24 v13, 3, v3
    v_mov_b32 v34, 0x7ffffff0
    v_and_b32 v46, 63, v0
    s_lshr_b32 s6, s2, 3
    s_mul_i32 s6, s6, 25
    s_sub_u32 s7, 784, s6
    s_min_u32 s7, s7, 25
    s_bfm_b64 s[{S_TMP+2}:{S_TMP+3}], s7, 0
    s_mul_i32 s7, s{S_WV}, 784
    s_add_u32 s6, s6, s7
    v_add_u32 v12, s6, v46
    v_lshlrev_b32 v47, 2, v46
    v_lshrrev_b32 v57, 6, v{LA}        ; 4n
    v_and_b32 v58, 15, v0              ; j
    v_and_b32 v61, 12, v57             ; 4*qd
    v_mov_b32 v3, 1
    s_waitcnt lgkmcnt(3)
    """)
    for i in range(4):
        e(f'v_exp_f32 v{8+i}, v{4+i}')
    for i in range(4):
        e(f'v_add_f32 v{8+i}, 1.0, v{8+i}')
    for i in range(4):
        e(f'v_rcp_f32 v{8+i}, v{8+i}')
    for i in range(4):
        e(f'v_mul_f32 v{8+i}, v{4+i}, v{8+i}')
    e(f"""
    s_waitcnt lgkmcnt(0)
    s_barrier
    @STAMP bar1q
L_poll:
    buffer_load_dword v15, v14, {srd(SRD_TAB)}, s{S_B} offen sc1
    s_add_u32 s{S_SPIN}, s{S_SPIN}, 1
    s_waitcnt vmcnt(0)
    v_cmp_eq_u32 vcc, 0, v15
    s_and_b64 exec, exec, vcc
    s_cbranch_execz L_poll_done
    s_sleep {int(os.environ.get('SLP', '2'))}
    s_cmp_lt_u32 s{S_SPIN}, {SPIN_MAX}
    s_cbranch_scc1 L_poll
    v_mov_b32 v15, 0x8000
L_poll_done:
    s_mov_b64 exec, -1
    @STAMP tab
    v_sub_u32_sdwa v37, v15, v13 {SDW} src0_sel:WORD_1 src1_sel:DWORD
    v_add_u32_sdwa v2, v15, v2 {SDW} src0_sel:WORD_0 src1_sel:DWORD
    v_cmp_lt_i32 {mk(0)}, 0, v37
    v_cmp_lt_i32 {mk(3)}, 12, v37
    v_cmp_lt_i32 {mk(6)}, 24, v37
    v_lshlrev_b32 v2, 4, v2
    v_cndmask_b32 v38, v34, v2, {mk(0)}
    buffer_load_dwordx4 v[16:19], v38, {srd(SRD_REC)}, 0 offen {RLF}
    v_cndmask_b32 v39, v34, v2, {mk(3)}
    buffer_load_dwordx4 v[20:23], v39, {srd(SRD_REC)}, 0 offen offset:64 {RLF}
    v_cndmask_b32 v40, v34, v2, {mk(6)}
    buffer_load_dwordx4 v[24:27], v40, {srd(SRD_REC)}, 0 offen offset:128 {RLF}
    v_cmp_lt_i32 vcc, 36, v37
    v_cmp_lt_i32 {mk(1)}, 1, v37
    v_cmp_lt_i32 {mk(2)}, 2, v37
    v_cmp_lt_i32 {mk(4)}, 13, v37
    v_cmp_lt_i32 {mk(5)}, 14, v37
    v_cmp_lt_i32 {mk(7)}, 25, v37
    v_cmp_lt_i32 {mk(8)}, 26, v37
    s_mov_b64 exec, vcc
    ds_write_b32 v{ZERO}, v3 offset:240
    """)
    for k in range(3):
        if k == 2:
            e(f's_cmp_eq_u64 {mk(6)}, 0')
            e('s_cbranch_scc1 L_skipA')
        e(f's_waitcnt vmcnt({2-k})')
        if k == 0: e('@STAMP rec0')
        m = 19 + 4*k
        for i in range(3):
            e(f's_mov_b64 exec, {mk(3*k+i)}')
            e(f'v_bfe_u32 v{28+3*k+i}, v{m}, {8*i}, 8')
            e(f'ds_add_rtn_u32 v{37+3*k+i}, v{28+3*k+i}, v3')
    e(f"""
L_skipA:
    s_mov_b64 exec, s[{S_TMP+2}:{S_TMP+3}]
    buffer_load_dword v{E+15}, v12, s[{SRD_P}:{SRD_P+3}], 0 idxen
    s_mov_b64 exec, -1
    s_mov_b32 s{S_TMP}, {RECS}
    s_waitcnt lgkmcnt(0)
    @STAMP atomics
    s_barrier
    @STAMP bar2
    ; ---- phase B
    ds_read_b32 v48, v47
    ds_read_b32 v52, v57 offset:4
    s_waitcnt lgkmcnt(1)
    v_add_u32 v49, 7, v48
    v_lshrrev_b32 v49, 3, v49
    v_readlane_b32 s{S_MORE}, v48, 60
    s_nop 0
    v_add_u32_dpp v50, v49, v49 row_shr:1 row_mask:0xf bank_mask:0xf bound_ctrl:0
    """)
    for d in ('row_shr:2', 'row_shr:4', 'row_shr:8'):
        e('s_nop 1')
        e(f'v_add_u32_dpp v50, v50, v50 {d} row_mask:0xf bank_mask:0xf bound_ctrl:0')
    e(f"""
    s_nop 1
    v_add_u32_dpp v50, v50, v50 row_bcast:15 row_mask:0xa bank_mask:0xf
    s_nop 1
    v_add_u32_dpp v50, v50, v50 row_bcast:31 row_mask:0xc bank_mask:0xf
    v_sub_u32 v49, v50, v49            ; uoff
    v_readlane_b32 s{S_TOT}, v50, 50
    v_lshl_add_u32 v51, v49, 5, s{S_TMP}
    s_waitcnt lgkmcnt(0)
    ds_write_b32 v47, v51 offset:{BASE}
    ds_read_b32 v54, v57 offset:{BASE+4}
    """)
    for sl in range(6):
        e(f's_mov_b64 exec, {mk(sl)}')
        e(f'ds_read_b32 v{64+sl}, v{28+sl} offset:{BASE}')
    e(f"""
    s_mov_b64 exec, -1
    v_sub_u32 v15, 0, v52
    v_and_b32 v15, 7, v15              ; npad
    v_cvt_f32_u32 v53, v15
    s_add_u32 s6, s{S_TOT}, 3
    s_lshr_b32 s6, s6, 2               ; nT
    s_lshr_b32 s{S_QN}, s6, 4
    s_and_b32 s{S_RN}, s6, 15
    v_mul_f32 v8, v53, -v8
    v_mul_f32 v9, v53, -v9
    v_mul_f32 v10, v53, -v10
    v_mul_f32 v11, v53, -v11
    s_cmp_lt_u32 s{S_WV}, s{S_RN}
    s_addc_u32 s{S_NT}, s{S_QN}, 0
    s_min_u32 s6, s{S_WV}, s{S_RN}
    s_mul_i32 s7, s{S_WV}, s{S_QN}
    s_add_u32 s6, s6, s7
    s_lshl_b32 s7, s6, 4               ; ustart*4
    s_lshl_b32 s6, s6, 7               ; ustart*32
    s_add_u32 s6, s6, {RECS}
    s_cmp_eq_u32 s{S_RND}, 0
    s_cbranch_scc1 L_agg0
    ds_read_b128 v[4:7], v1 offset:{AGG}
    s_waitcnt lgkmcnt(0)
    v_pk_add_f32 v[8:9], v[8:9], v[4:5]
    v_pk_add_f32 v[10:11], v[10:11], v[6:7]
L_agg0:
    s_waitcnt lgkmcnt(0)
    """)
    recreg = [16, 17, 18, 20, 21, 22, 24, 25, 26]
    for sl in range(6):
        e(f's_mov_b64 exec, {mk(sl)}')
        e(f'v_lshl_add_u32 v{64+sl}, v{37+sl}, 2, v{64+sl}')
        e(f'ds_write_b32 v{64+sl}, v{recreg[sl]}')
    e(f"""
    s_cmp_eq_u64 {mk(6)}, 0
    s_cbranch_scc1 L_skipB
    """)
    for sl in range(6, 9):
        e(f's_mov_b64 exec, {mk(sl)}')
        e(f'ds_read_b32 v{64+sl}, v{28+sl} offset:{BASE}')
    e('s_waitcnt lgkmcnt(0)')
    for sl in range(6, 9):
        e(f's_mov_b64 exec, {mk(sl)}')
        e(f'v_lshl_add_u32 v{64+sl}, v{37+sl}, 2, v{64+sl}')
        e(f'ds_write_b32 v{64+sl}, v{recreg[sl]}')
    e(f"""
L_skipB:
    s_mov_b64 exec, -1
    v_mad_u32_u24 v{AR}, v{QG32}, s{S_NT}, v{GD4}
    v_mul_u32_u24 v{AN}, s{S_NT}, v61
    v_add_u32 v{AR}, s6, v{AR}
    v_add_u32 v{AN}, s7, v{AN}
    v_mov_b32 v55, {PADREC}
    s_cmp_ge_u32 s{S_WV}, 13
    s_cbranch_scc1 L_special
    ds_write_b128 v1, v[8:11] offset:{AGG}
    v_cmp_gt_u32 vcc, v15, v58
    v_add_u32 v57, v52, v58
    v_lshl_add_u32 v57, v57, 2, v54
    v_lshrrev_b32 v54, 3, v54
    v_lshl_add_u32 v54, v58, 2, v54
    v_lshlrev_b32 v58, 3, v58          ; 8j
    v_mov_b32 v59, v{LA}
    s_mov_b64 exec, vcc
    ds_write_b32 v57, v55
    s_mov_b32 exec_lo, 0x10001
    s_mov_b32 exec_hi, 0x10001
    v_or_b32 v59, 0x80000000, v59
    s_mov_b64 exec, -1
    v_cmp_gt_u32 vcc, v52, v58
    s_mov_b64 exec, vcc
    ds_write_b32 v54, v59 offset:{NTAB-RECS//8}
L_ntab:
    v_add_u32 v58, 128, v58
    v_cmp_gt_u32 vcc, v52, v58
    s_and_b64 exec, exec, vcc
    s_cbranch_execz L_tables_done
    v_add_u32 v54, 64, v54
    ds_write_b32 v54, v{LA} offset:{NTAB-RECS//8}
    s_branch L_ntab
L_special:
    s_cmp_eq_u32 s{S_WV}, 14
    s_cbranch_scc0 L_special2
    s_add_u32 s6, s{S_QN}, 1
    s_lshl_b32 s{S_TMP}, s{S_RN}, 2    ; 4 rn
    s_mul_i32 s7, s{S_TMP}, s6         ; thr
    v_cvt_f32_u32 v52, s6
    v_cvt_f32_u32 v53, s{S_QN}
    v_rcp_f32 v52, v52
    v_rcp_f32 v53, v53
    v_subrev_u32 v54, s7, v49
    v_cvt_f32_u32 v55, v49
    v_cvt_f32_u32 v54, v54
    v_add_f32 v55, 0.5, v55
    v_add_f32 v54, 0.5, v54
    v_mul_f32 v55, v55, v52
    v_mul_f32 v54, v54, v53
    v_cvt_u32_f32 v55, v55
    v_cvt_u32_f32 v54, v54
    v_cmp_gt_u32 vcc, s7, v49
    v_min_u32 v54, 64, v54
    v_add_u32 v54, s{S_TMP}, v54
    v_cndmask_b32 v54, v54, v55, vcc
    v_min_u32 v54, 64, v54
    v_add_lshl_u32 v54, v54, v46, 8    ; 256*(slot+1)
    ds_write_b32 v47, v54 offset:{ST}
    s_branch L_tables_done
L_special2:
    s_cmp_eq_u32 s{S_WV}, 15
    s_cbranch_scc0 L_tables_done
    s_lshl_b32 s6, s{S_TOT}, 5
    s_add_u32 s6, s6, {RECS}
    s_lshl_b32 s7, s{S_TOT}, 2
    v_add_u32 v57, s6, v47
    v_add_u32 v54, s7, v47
    v_mov_b32 v59, {0x80000000 + NB*256}
    s_mov_b64 exec, 0xffffff
    ds_write_b32 v57, v55
    s_mov_b64 exec, 7
    ds_write_b32 v54, v59 offset:{NTAB}
L_tables_done:
    s_mov_b64 exec, -1
    s_waitcnt lgkmcnt(0)
    s_barrier
    @STAMP bar3
    s_cmp_eq_u32 s{S_NT}, 0
    s_cbranch_scc1 L_skip_loop
    s_setprio {3 if PRIO else 0}
    ds_read_u16 v{IDX}, v{AR}
    ds_read_u16 v{N}, v{AR} offset:16
    ds_read_b32 v{X}, v{AN} offset:{NTAB}
    ds_read_u16 v{AV}, v{AR} offset:2
    ds_read_u16 v{N+1}, v{AR} offset:32
    ds_read_u16 v{N+2}, v{AR} offset:18
    s_mov_b64 s[{S_M}:{S_M+1}], 0
    s_waitcnt lgkmcnt(5)
    {ld(G0, 0)}
    {ld(G0+4, 64)}
    s_waitcnt lgkmcnt(3)
    v_mov_b32 v{IDX}, v{N}
    {ld(G1, 0)}
    {ld(G1+4, 64)}
    """)
    load_c()
    e(f"""
    ds_read_b32 v{X}, v{AN} offset:{NTAB+4}
    v_add_u32 v{Z}, v{Y}, v{LA}
    v_mov_b32 v{ACC}, 0
    v_mov_b32 v{ACC+1}, 0
    v_mov_b32 v{ACC+2}, 0
    v_mov_b32 v{ACC+3}, 0
    s_waitcnt lgkmcnt(5)
    {BUILD_AX}
    v_mov_b32 v{IDX}, v{N+1}
    v_mov_b32 v{AV}, v{N+2}
    s_waitcnt vmcnt(2) lgkmcnt(1)
    """)
    mf(T0, G0, BS0, C)
    mf(T0, G0+4, BS1, T0)
    mf8(T0)
    e(f"""
    {ld(G0, 0)}
    {ld(G0+4, 64)}
    {BUILD_AX}
    ds_read_u16 v{IDX}, v{AR} offset:48
    ds_read_u16 v{AV}, v{AR} offset:34
    s_nop 3
    s_waitcnt vmcnt(2) lgkmcnt(0)
    @STAMP pipeprologue
    s_cmp_lg_u32 s{S_SAFE}, 0
    s_cbranch_scc1 L_safe_loop
    """)
    main_loop(False)
    e(f"""
L_loop_done:
    @STAMP loopdone
    s_setprio 0
    v_lshrrev_b32 v13, 6, v{LA}        ; 4n
    v_add_u32 v1, v{LA}, v{LQ}         ; 16 t
    ds_read_b128 v[48:51], v{XA}
    ds_read_b128 v[52:55], v{XA} offset:64
    ds_read_b64_tr_b16 v[32:33], v{WA} offset:0
    ds_read_b64_tr_b16 v[34:35], v{WA} offset:576
    ds_read_b64_tr_b16 v[36:37], v{WA} offset:4608
    ds_read_b64_tr_b16 v[38:39], v{WA} offset:5184
    ds_read_b64_tr_b16 v[40:41], v{WA} offset:9216
    ds_read_b64_tr_b16 v[42:43], v{WA} offset:9792
    ds_read_b64_tr_b16 v[44:45], v{WA} offset:13824
    ds_read_b64_tr_b16 v[46:47], v{WA} offset:14400
    ds_read2_b32 v[10:11], v13 offset0:{(ST+4)//4} offset1:{(ST+8)//4}
    ds_read_b128 v[4:7], v1 offset:{AGG}
    v_add_f32 v{TMP}, v{DS}, v{DS+1}
    s_movk_i32 s6, 0x207
    s_and_b32 s{S_TMP}, s{S_WV}, 3     ; mt
    v_cmp_class_f32 vcc, v{TMP}, s6
    s_lshr_b32 s{S_TMP+1}, s{S_WV}, 2  ; nt
    v_mov_b32 v{TMP+2}, 1
    s_mov_b64 exec, vcc
    ds_write_b32 v{ZERO}, v{TMP+2} offset:{FLAG}
    s_mov_b64 exec, -1
    s_waitcnt lgkmcnt(0)
    v_mfma_f32_16x16x32_bf16 v[56:59], v[32:35], v[48:51], 0
    v_mfma_f32_16x16x32_bf16 v[56:59], v[36:39], v[52:55], v[56:59]
    v_sub_u32 v11, v11, v10            ; 256*count
    v_add_u32 v10, v{LQ}, v10
    s_movk_i32 s6, 256
    s_movk_i32 s7, 512
    v_cmp_lt_u32 s[{S_TMP+2}:{S_TMP+3}], s6, v11
    v_cmp_lt_u32 s[{S_TMP+4}:{S_TMP+5}], s7, v11
    s_cmp_eq_u32 s{S_WV}, 12
    s_cselect_b64 s[{S_TMP+6}:{S_TMP+7}], 0xffff, -1
    s_cmp_gt_u32 s{S_WV}, 12
    s_barrier
    @STAMP bar4
    ; ---- fold
    s_cbranch_scc1 L_fold_done
    s_mov_b64 exec, s[{S_TMP+6}:{S_TMP+7}]
    ds_read_b128 v[16:19], v10 offset:{PART-256}
    ds_read_b128 v[20:23], v10 offset:{PART}
    ds_read_b128 v[24:27], v10 offset:{PART+256}
    s_waitcnt lgkmcnt(2)
    v_pk_add_f32 v[4:5], v[4:5], v[16:17]
    v_pk_add_f32 v[6:7], v[6:7], v[18:19]
    s_and_b64 exec, exec, s[{S_TMP+2}:{S_TMP+3}]
    s_waitcnt lgkmcnt(1)
    v_pk_add_f32 v[4:5], v[4:5], v[20:21]
    v_pk_add_f32 v[6:7], v[6:7], v[22:23]
    s_and_b64 exec, exec, s[{S_TMP+4}:{S_TMP+5}]
    s_waitcnt lgkmcnt(0)
    v_pk_add_f32 v[4:5], v[4:5], v[24:25]
    v_pk_add_f32 v[6:7], v[6:7], v[26:27]
L_fold:
    s_add_u32 s7, s7, 256
    v_cmp_lt_u32 vcc, s7, v11
    s_and_b64 exec, exec, vcc
    s_cbranch_execz L_fold2
    ds_read_b128 v[16:19], v10 offset:{PART+512}
    v_add_u32 v10, 256, v10
    s_waitcnt lgkmcnt(0)
    v_pk_add_f32 v[4:5], v[4:5], v[16:17]
    v_pk_add_f32 v[6:7], v[6:7], v[18:19]
    s_branch L_fold
L_fold2:
    s_mov_b64 exec, s[{S_TMP+6}:{S_TMP+7}]
    s_cmp_eq_u32 s{S_MORE}, 0
    s_cbranch_scc1 L_fold4
    ds_write_b128 v1, v[4:7] offset:{AGG}
    s_branch L_fold_done
L_fold4:
    s_mov_b32 s6, {NEG_LN2}
    s_mov_b32 s7, {NEG_LN2}
    v_pk_mul_f32 v[4:5], v[4:5], s[6:7]
    v_pk_mul_f32 v[6:7], v[6:7], s[6:7]
    v_cvt_pk_bf16_f32 v4, v4, v5
    v_cvt_pk_bf16_f32 v5, v6, v7
    ds_write_b64 v{BW}, v[4:5]
L_fold_done:
    s_mov_b64 exec, -1
    s_lshl_b32 s6, s{S_TMP}, 5
    s_add_u32 s6, s6, s{S_X0}
    s_lshl_b32 s7, s{S_TMP+1}, 11
    s_add_u32 s6, s6, s7
    s_cmp_eq_u32 s{S_TMP+1}, 3
    s_cselect_b32 s{S_TMP+2}, 0x10001, -1
    s_cmp_eq_u32 s{S_MORE}, 0
    s_waitcnt lgkmcnt(0)
    s_barrier
    s_cbranch_scc1 L_final
    s_add_u32 s{S_RND}, s{S_RND}, 12
L_again:
    v_lshrrev_b32 v0, 4, v1
    s_waitcnt vmcnt(0)
    s_branch L_round
L_final:
    @STAMP bar5
    ds_read_b128 v[48:51], v{BR}
    ds_read_b128 v[52:55], v{BR} offset:1088
    s_movk_i32 s7, 0x207
    s_waitcnt lgkmcnt(1)
    v_mfma_f32_16x16x32_bf16 v[56:59], v[40:43], v[48:51], v[56:59]
    s_waitcnt lgkmcnt(0)
    v_mfma_f32_16x16x32_bf16 v[56:59], v[44:47], v[52:55], v[56:59]
    s_nop 5
    s_mov_b32 exec_lo, s{S_TMP+2}
    s_mov_b32 exec_hi, s{S_TMP+2}
    """)
    for i in range(4):
        e(f'v_mul_f32 v{4+i}, s{S_L2E}, v{56+i}')
    for i in range(4):
        e(f'v_exp_f32 v{4+i}, v{4+i}')
    e('v_cmp_class_f32 vcc, v56, s7')
    for i in range(4):
        e(f'v_add_f32 v{4+i}, 1.0, v{4+i}')
    for i in range(4):
        e(f'v_rcp_f32 v{4+i}, v{4+i}')
    for i in range(4):
        e(f'v_mul_f32 v{4+i}, v{56+i}, v{4+i}')
    e(f"""
    v_cvt_pk_bf16_f32 v4, v4, v5
    v_cvt_pk_bf16_f32 v5, v6, v7
    buffer_store_dwordx2 v[4:5], v{OO}, s[{SRD_OUT}:{SRD_OUT+3}], s6 offen
    s_cmp_lg_u32 s{S_SAFE}, 0
    s_cbranch_scc1 L_k2_end
    s_mov_b64 exec, vcc
    ds_write_b32 v{ZERO}, v{TMP+2} offset:{FLAG}
    s_mov_b64 exec, -1
    s_waitcnt lgkmcnt(0)
    s_barrier
    ds_read_b32 v2, v{ZERO} offset:{FLAG}
    s_waitcnt lgkmcnt(0)
    v_readfirstlane_b32 s6, v2
    s_cmp_eq_u32 s6, {'s6' if 'nosafe' in X_ else 0}
    s_cbranch_scc1 L_k2_end
    s_mov_b32 s{S_SAFE}, 1
    s_mov_b32 s{S_RND}, 0
    v_mov_b32 v{DS}, 0
    v_mov_b32 v{DS+1}, 0
    s_branch L_again
L_k2_end:
    @FLUSH 0
    s_endpgm
    """)
    main_loop(True)
    e('L_skip_loop:')
    e('s_waitcnt vmcnt(0)')
    e('s_branch L_loop_done')

HEADER = f"""; MPNN edge-MLP layer in one launch, one workgroup per CU.
;  phase 1: bucket a chunk of edges by destination range (LDS counting sort), P = -log2e * x @ W1 (bf16), Q = -log2e * x @ W2
;  phase 2: per bucket of {NB} nodes: sort by node, gather P rows, MFMA unpack (+a*w3+Q), silu sum, update GEMM
; @launch grid=(256,1,1) block=(1024,1,1) lds={K2_LDS}
.amdgcn_target "amdgcn-amd-amdhsa--gfx950"
.text"""

def main():
    k2()
    e('.section .rodata,"a"')
    e('.p2align 6')
    kd('gather_scatter__mpnn_edge_mlp__graph_kernel', 128, 80)
    path = sys.argv[1] if len(sys.argv) > 1 else 'gather_scatter__mpnn_edge_mlp__graph.s'
    open(path, 'w').write(HEADER + '\n' + '\n'.join(out) + '\n')

main()
```

```python
import sys
def red(k, word, nwg0, nwg, nwv, op, dst):
    c = [f'v_mov_b32 v10, {"0x7fffffff" if op=="min" else "0x80000000"}']
    for w in range((4 if (k == 0 and word >= 2) else 0), nwv):
        for ch in range((nwg+63)//64):
            c.append(f's_mov_b32 s20, {(k*4<<20) + ((nwg0+ch*64)*16+w)*128 + 4*word}')
            c.append(f'buffer_load_dword v11, v9, s[4:7], s20 offen')
            c.append(f'v_cmp_gt_u32 vcc, {min(64, nwg-ch*64)}, v0')
            c.append('s_waitcnt vmcnt(0)')
            c.append('v_subrev_u32 v11, s8, v11')
            c.append('v_cndmask_b32 v11, v10, v11, vcc')
            c.append(f'v_{op}_i32 v10, v10, v11')
    c.append('s_nop 1')
    c.append(f'v_readlane_b32 s{dst}, v10, 0')
    for l in range(1, 64):
        c.append(f'v_readlane_b32 s21, v10, {l}')
        c.append('s_nop 1')
        c.append(f's_{op}_i32 s{dst}, s{dst}, s21')
    return '\n'.join('    '+x for x in c)
def mk(src, name, q, X=10000, k1wg=250, k1wv=7):
    s = open(src).read()
    lines = s.split('\n')
    idx = max(i for i,l in enumerate(lines) if '@launch' in l)
    lines[idx] = lines[idx].replace('@launch grid', '@launch kernel=gather_scatter__mpnn_edge_mlp__graph_kernel grid')
    lines.insert(idx+1, '; @launch kernel=spin_kernel grid=(1,1,1) block=(64,1,1) lds=0')
    s = '\n'.join(lines)
    code = f'''.globl spin_kernel
.p2align 8
.type spin_kernel,@function
spin_kernel:
    s_cmp_ge_u32 s2, 1
    s_cbranch_scc1 L_spin_end
    s_load_dwordx2 s[4:5], s[0:1], 64
    s_waitcnt lgkmcnt(0)
    s_add_u32 s4, s4, {32<<20}
    s_addc_u32 s5, s5, 0
    s_mov_b32 s6, 0x800000
    s_mov_b32 s7, 0x20000
    v_mov_b32 v1, 0
    v_lshlrev_b32 v9, 11, v0
    buffer_load_dword v4, v1, s[4:7], 0 offen
    s_waitcnt vmcnt(0)
    v_readfirstlane_b32 s8, v4
    s_nop 4
{red(0, 0, 0, k1wg, 1, 'min', 9)}
    s_add_u32 s8, s8, s9
{red(*q, 10) if q else '    s_mov_b32 s10, 0'}
    s_min_u32 s10, s10, 100000
    s_add_u32 s10, s10, {X}
L_spin:
    s_memrealtime s[12:13]
    s_waitcnt lgkmcnt(0)
    s_sub_u32 s12, s12, s8
    s_cmp_lt_u32 s12, s10
    s_cbranch_scc1 L_spin
L_spin_end:
    s_endpgm
'''
    kd = '''.p2align 6
.amdhsa_kernel spin_kernel
.amdhsa_next_free_vgpr 16
.amdhsa_next_free_sgpr 32
.amdhsa_accum_offset 16
.amdhsa_group_segment_fixed_size 0
.amdhsa_kernarg_size 72
.amdhsa_user_sgpr_count 2
.amdhsa_user_sgpr_kernarg_segment_ptr 1
.amdhsa_system_sgpr_workgroup_id_x 1
.end_amdhsa_kernel
'''
    s = s.replace('.section .rodata,"a"', code + '.section .rodata,"a"') + kd
    open(name, 'w').write(s)
if __name__ == '__main__':
    import os, subprocess
    for i, sp in enumerate(sys.argv[1:]):
        nm, op = (sp.split(':') + ['max'])[:2]
        env = dict(os.environ, STAMP='2', RTS=nm)
        subprocess.check_call(['python', 'gen.py', 'dsrc.s'], env=env)
        if nm == 'F': mk('dsrc.s', f'd{i+1}.s', None, k1wg=256)
        elif nm == 'end': mk('dsrc.s', f'd{i+1}.s', (0, 1, 0, 256, 16, op), k1wg=256)
        elif nm == 'start': mk('dsrc.s', f'd{i+1}.s', (0, 0, 0, 256, 16, op), k1wg=256)
        else: mk('dsrc.s', f'd{i+1}.s', (0, 2, 48, 208, 14, op), k1wg=256)
```

```python
import sys, struct

NODES = 12500
EDGES = 800000
NB = 49
G = 250
CH = 3200
K1_BLOCK = 896
WS_P = 0
WS_Q = 0x200000
WS_TAB = 0x520000
WS_WUF = 0x560000
WS_REC = 0x600000
REC_STRIDE = 69632
T3 = 32768
TABF = 49152
OVF = 50176
CS = 208
INC = 10923

def f32(x):
    return '0x%08x' % struct.unpack('<I', struct.pack('<f', x))[0]
NEG_LOG2E = f32(-1.4426950408889634)
NEG_LN2 = f32(-0.6931471805599453)

out = []
def e(s=''):
    for line in s.split('\n'):
        line = line.strip()
        if not line:
            continue
        if line.startswith('@STAMP2'):
            if STAMP == 2: stamp(line[7:].strip())
            continue
        if line.startswith('@STAMP'):
            stamp(line[6:].strip()); continue
        if line.startswith('@INIT'):
            stamp_init(); continue
        if line.startswith('@FLUSH'):
            stamp('end'); stamp_rt(1); stamp_flush(int(line[6:])); continue
        if line.endswith(':') or line.startswith('.') or line.startswith(';'):
            out.append(line)
        else:
            out.append('    ' + line)

import os
STAMP = int(os.environ.get('STAMP', '0'))
nstamp = [0]
RTS = os.environ.get('RTS', '').split(',')
kidx_ = [0]
def stamp(name=''):
    if not STAMP: return
    if STAMP == 2:
        k = kidx_[0]
        for j in range(2):
            if len(RTS) > 2*k+j and RTS[2*k+j] == name:
                e(f"""s_waitcnt lgkmcnt(0)
                s_memrealtime s[98:99]
                s_waitcnt lgkmcnt(0)
                s_mov_b32 s{76+j}, s98""")
        return
    if STAMP == 4:
        if name not in ('entry', 'end', 'bar3', 'bar4', 'bar3rt', 'bar4rt', 'loopdone', 'pipeprologue'): return
        if name in ('bar3', 'bar4'): stamp(name + 'rt')
    i = nstamp[0]; nstamp[0] += 1
    e(f"""s_waitcnt lgkmcnt(0)
    {'s_memrealtime' if (STAMP == 3 or name.endswith('rt')) else 's_memtime'} s[98:99]
    s_waitcnt lgkmcnt(0)
    s_mov_b32 s{76+i}, s98""")
def stamp_rt(idx):
    if not STAMP: return
    e(f"""s_waitcnt lgkmcnt(0)
    s_memrealtime s[98:99]
    s_waitcnt lgkmcnt(0)
    s_mov_b32 s{74+idx}, s98""")
def stamp_flush(kidx):
    if not STAMP: return
    e(f"""s_mov_b64 exec, 1
    s_add_u32 s96, s96, {(32+4*kidx)<<20}
    s_addc_u32 s97, s97, 0
    s_mov_b32 s98, 0x400000
    s_mov_b32 s99, 0x20000
    s_lshl_b32 s100, s2, 4
    s_add_u32 s100, s100, s95
    s_lshl_b32 s100, s100, 7
    v_mov_b32 v2, 0""")
    for q in range(1 if STAMP == 2 else 5):
        for i in range(4):
            e(f'v_mov_b32 v{4+4*q+i}, s{74+4*q+i}')
        e(f'buffer_store_dwordx4 v[{4+4*q}:{7+4*q}], v2, s[96:99], s100 offen offset:{16*q}')
    kidx_[0] += 1
def stamp_init():
    if not STAMP: return
    nstamp[0] = 0
    e('s_memrealtime s[98:99]')
    e('s_load_dwordx2 s[96:97], s[0:1], 64')
    for i in range(75, 78 if STAMP == 2 else 94): e(f's_mov_b32 s{i}, 0')
    e('v_readfirstlane_b32 s95, v0')
    e('s_lshr_b32 s95, s95, 6')
    e('s_waitcnt lgkmcnt(0)')
    e('s_mov_b32 s74, s98')
    stamp('entry')

def vr(a, n=1):
    return f'v{a}' if n == 1 else f'v[{a}:{a+n-1}]'
def sr(a, n=1):
    return f's{a}' if n == 1 else f's[{a}:{a+n-1}]'

def scan(v):
    for d in ('row_shr:1', 'row_shr:2', 'row_shr:4', 'row_shr:8'):
        e('s_nop 1')
        e(f'v_add_u32_dpp v{v}, v{v}, v{v} {d} row_mask:0xf bank_mask:0xf bound_ctrl:0')
    e('s_nop 1')
    e(f'v_add_u32_dpp v{v}, v{v}, v{v} row_bcast:15 row_mask:0xa bank_mask:0xf')
    e('s_nop 1')
    e(f'v_add_u32_dpp v{v}, v{v}, v{v} row_bcast:31 row_mask:0xc bank_mask:0xf')

def kd(name, vgpr, sgpr):
    if STAMP: sgpr = 102
    e(f'''.amdhsa_kernel {name}
.amdhsa_next_free_vgpr {vgpr}
.amdhsa_next_free_sgpr {sgpr}
.amdhsa_accum_offset {(vgpr+3)//4*4}
.amdhsa_group_segment_fixed_size 0
.amdhsa_kernarg_size 72
.amdhsa_user_sgpr_count 2
.amdhsa_user_sgpr_kernarg_segment_ptr 1
.amdhsa_system_sgpr_workgroup_id_x 1
.amdhsa_float_denorm_mode_32 {0 if 'nodenorm' in os.environ.get('X','') else 3}
.end_amdhsa_kernel''')

SDW = 'dst_sel:DWORD dst_unused:UNUSED_PAD'
CNT, BASE, ST, FLAG = 0, 256, 512, 768
QS = 1024
NTAB = QS + 16384
AGG = NTAB + 5120
PART = AGG + 16384
RECS = PART + 32768
XS = RECS + 256*CS
WUS = XS + 64*144
AGGB = WUS + 128*144
K2_LDS = AGGB + 8704
CNT1 = NTAB
GT = NTAB + 1024
W12 = PART
CELL = RECS
PADREC = 0xffff
T0, T1, C, E, G0, G1, BS0, BS1, BX, AX, N, D, TMP, ACC, DS = 0, 16, 32, 48, 64, 72, 80, 84, 88, 90, 92, 96, 100, 104, 108
IDX, CH16, AV, ZERO, X, Y, Z, LQ, LA, AR, AN = 110, 111, 112, 113, 114, 115, 116, 117, 118, 119, 120
WA, XA, BR, BW, OO, QG32, GD4 = 121, 122, 123, 124, 125, 126, 127
S_B, S_WV, S_X0 = 3, 4, 5
SRD_P, SRD_TAB, SRD_REC, SRD_OUT, SRD_A, SRD_B, SRD_C = 8, 12, 16, 20, 24, 28, 32
S_MASK = 36
S_RND, S_SAFE, S_TOT, S_NT, S_QN, S_RN, S_MORE, S_SPIN = 54, 55, 56, 57, 58, 59, 60, 61
S_M = 62
S_TMP = 64
S_L2E = 72
S_PUB = 73
SPIN_MAX = 400000

X_ = os.environ.get('X', '').split(',')
PRIO = [int(x) for x in os.environ.get('PRIO', '3,1').split(',') if x]
def mf(T, a, b, c):
    if 'nomfma' in X_: return
    e(f'v_mfma_f32_32x32x16_bf16 v[{T}:{T+15}], v[{a}:{a+3}], v[{b}:{b+3}], v[{c}:{c+15}]')
def mf8(T):
    if 'nomfma' in X_: return
    e(f'v_mfma_f32_32x32x8_bf16 v[{T}:{T+15}], v[{AX}:{AX+1}], v[{BX}:{BX+1}], v[{T}:{T+15}]')
BUILD_AX = f'v_lshlrev_b64 v[{AX}:{AX+1}], v{CH16}, v[{AV}:{AV+1}]'
def ld(g, off):
    if 'nogather' in X_: return 's_nop 0\ns_nop 0'
    return f'buffer_load_dwordx4 v[{g}:{g+3}], v[{IDX}:{IDX+1}], s[{SRD_P}:{SRD_P+3}], 0 idxen offen' + (f' offset:{off}' if off else '')
def load_c():
    e(f'v_add_u32_sdwa v{Y}, v{X}, v{LQ} {SDW} src0_sel:WORD_0 src1_sel:DWORD')
    for i in range(4):
        e(f'ds_read_b128 v[{C+4*i}:{C+4*i+3}], v{Y} offset:{QS}')
def exps(T, a, b):
    if 'noexp' in X_: return
    for i in range(a, b):
        e(f'v_exp_f32 v{E+i}, v{T+i}')
def p2(r):
    return f'v[{r}:{r+1}]'
def pk_phase(T, first, safe):
    if 'nopk' in X_: return
    if safe:
        for i in range(8):
            e(f'v_pk_add_f32 {p2(E+2*i)}, {p2(E+2*i)}, 1.0 op_sel_hi:[1,0]')
        for i in range(16):
            e(f'v_rcp_f32 v{E+i}, v{E+i}')
        for gd in range(4):
            for s in range(2):
                if first and gd == 0:
                    e(f'v_pk_mul_f32 {p2(N+2*s)}, {p2(T+2*s)}, {p2(E+2*s)}')
                else:
                    e(f'v_pk_fma_f32 {p2(N+2*s)}, {p2(T+4*gd+2*s)}, {p2(E+4*gd+2*s)}, {p2(N+2*s)}')
        return
    for gd in range(4):
        if first and gd == 0:
            for s in range(2):
                e(f'v_pk_add_f32 {p2(D+2*s)}, {p2(E+2*s)}, 1.0 op_sel_hi:[1,0]')
            continue
        for s in range(2):
            ns = (T+2*s) if (first and gd == 1) else (N+2*s)
            e(f'v_pk_fma_f32 {p2(TMP+2*s)}, {p2(ns)}, {p2(E+4*gd+2*s)}, {p2(ns)}')
        for s in range(2):
            e(f'v_pk_fma_f32 {p2(N+2*s)}, {p2(T+4*gd+2*s)}, {p2(D+2*s)}, {p2(TMP+2*s)}')
        for s in range(2):
            e(f'v_pk_fma_f32 {p2(D+2*s)}, {p2(D+2*s)}, {p2(E+4*gd+2*s)}, {p2(D+2*s)}')

def capture(fn, *a):
    n0 = len(out)
    fn(*a)
    r = [x.strip() for x in out[n0:]]
    del out[n0:]
    return r

def weave(main, fillers, start=0, step=2):
    fillers = list(fillers)
    for i, m in enumerate(main):
        e(m)
        if i >= start and (i - start) % step == 0 and fillers:
            e(fillers.pop(0))
    for f in fillers:
        e(f)

NCOVER = int(os.environ.get('NCOVER', '12'))
WSTEP = int(os.environ.get('WSTEP', '2'))
def msection(Tn, Gn, Tc, extra):
    mf(Tn, Gn, BS0, C)
    exps(Tc, 0, 3)
    mf(Tn, Gn+4, BS1, Tn)
    exps(Tc, 3, 6)
    mf8(Tn)
    exps(Tc, 6, 8)
    for x in extra: e(x)
    exps(Tc, 8, NCOVER)

def main_loop(safe):
    L = 'L_safe' if safe else 'L_fast'
    M = f's[{S_M}:{S_M+1}]'
    e('.p2align 6')
    e(f'{L}_loop:')
    msection(T1, G1, T0, [BUILD_AX, f'v_cmp_gt_i32 vcc, 0, v{X}', f'v_add_u32 v{AN}, 4, v{AN}'])
    e(ld(G1, 0))
    flush = f"""s_mov_b64 exec, {M}
    s_cbranch_execz {L}_nf
    ds_write_b128 v{Z}, v[{ACC}:{ACC+3}] offset:{PART}
    v_add_u32_e64 v{Z}, v{Y}, v{LA}
    ds_read_b128 v[{ACC}:{ACC+3}], v{Z} offset:{PART}
{L}_nf:
    s_mov_b64 exec, vcc
    s_cbranch_execz {L}_nc
    """ + '\n'.join(capture(load_c)) + f"""
{L}_nc:
    s_mov_b64 exec, -1
    s_mov_b64 {M}, vcc"""
    weave(capture(exps, T0, NCOVER, 16), [ld(G1+4, 64), flush], 1, 2)
    fl = [f'ds_read_u16 v{IDX}, v{AR} offset:64', f'ds_read_u16 v{AV}, v{AR} offset:50', f'ds_read_b32 v{X}, v{AN} offset:{NTAB+4}']
    weave(capture(pk_phase, T0, True, safe), fl, 1, WSTEP)
    e(f's_sub_u32 s{S_NT}, s{S_NT}, 1')
    e('s_waitcnt vmcnt(2) lgkmcnt(1)')
    msection(T0, G0, T1, [BUILD_AX])
    e(ld(G0, 0))
    weave(capture(exps, T1, NCOVER, 16), [ld(G0+4, 64)], 1, 2)
    fl = [f'ds_read_u16 v{IDX}, v{AR} offset:80', f'ds_read_u16 v{AV}, v{AR} offset:66']
    if 'iter' in X_ and not safe:
        fl += [('s_memrealtime' if 'iterrt' in X_ else 's_memtime') + ' s[98:99]', f's_mov_b32 m0, s{S_NT}\ns_nop 0']
    if PRIO and not safe:
        fl += [f's_cmp_eq_u32 s{S_NT}, {PRIO[0]}\ns_cbranch_scc0 {L}_p1\ns_setprio 2\n{L}_p1:\ns_cmp_eq_u32 s{S_NT}, {PRIO[1]}\ns_cbranch_scc0 {L}_p2\ns_setprio 1\n{L}_p2:']
    weave(capture(pk_phase, T1, False, safe), fl, 1, WSTEP)
    if not safe:
        for i in range(4):
            e(f'v_rcp_f32 v{TMP+i}, v{D+i}')
        e(f'v_pk_fma_f32 {p2(DS)}, {p2(D)}, {p2(D+2)}, {p2(DS)}')
    e(f'v_add_u32_e64 v{AR}, 32, v{AR}')
    e(f's_cmp_lg_u32 s{S_NT}, 0')
    e('s_waitcnt vmcnt(2) lgkmcnt(0)')
    if 'iter' in X_ and not safe:
        e('s_movreld_b32 s84, s98\ns_nop 0')
    for s in range(2):
        if safe:
            e(f'v_pk_add_f32 {p2(ACC+2*s)}, {p2(N+2*s)}, {p2(ACC+2*s)}')
        else:
            e(f'v_pk_fma_f32 {p2(ACC+2*s)}, {p2(N+2*s)}, {p2(TMP+2*s)}, {p2(ACC+2*s)}')
    e(f's_cbranch_scc1 {L}_loop')
    e(f'ds_write_b128 v{Z}, v[{ACC}:{ACC+3}] offset:{PART}')

RLF = os.environ.get('RLF', 'sc1')
def srd(r): return f's[{r}:{r+3}]'
def scan64(dst, src):
    e(f"""
    s_nop 1
    v_add_u32_dpp v{dst}, v{src}, v{src} row_shr:1 row_mask:0xf bank_mask:0xf bound_ctrl:0
    """)
    for d in ('row_shr:2', 'row_shr:4', 'row_shr:8'):
        e('s_nop 1')
        e(f'v_add_u32_dpp v{dst}, v{dst}, v{dst} {d} row_mask:0xf bank_mask:0xf bound_ctrl:0')
    e(f"""
    s_nop 1
    v_add_u32_dpp v{dst}, v{dst}, v{dst} row_bcast:15 row_mask:0xa bank_mask:0xf
    s_nop 1
    v_add_u32_dpp v{dst}, v{dst}, v{dst} row_bcast:31 row_mask:0xc bank_mask:0xf
    """)

def ovf_scan():
    for i in range(4): e(f'v_add_u32 v{44+i}, {2*INC}, v{52+i}')
    for i in range(4): e(f'v_lshrrev_b32 v{44+i}, 15, v{44+i}')
    for i in range(4): e(f'v_sub_u32 v{44+i}, v{44+i}, 12 clamp')
    e("""
    v_add_u32 v48, v44, v45
    v_add_u32 v49, v48, v46
    v_add_u32 v50, v49, v47
    """)
    scan64(61, 50)
    e("""
    v_sub_u32 v56, v61, v50
    v_add_u32 v57, v56, v44
    v_add_u32 v58, v56, v48
    v_add_u32 v59, v56, v49
    """)

TSH = int(os.environ.get('TSH', '0'))
W3 = QG32
def phase1():
    NE, NP = 5, 4
    A, B, Cc = SRD_A, SRD_B, SRD_C
    w3load = f'buffer_load_dwordx2 v[{W3}:{W3+1}], v{OO}, {srd(SRD_OUT)}, s49 offen'
    recsrd = f"""s_add_u32 s{SRD_REC}, s{SRD_P}, {WS_REC}
    s_addc_u32 s{SRD_REC+1}, s{SRD_P+1}, 0"""
    e(f"""
    @INIT
    s_cmp_ge_u32 s2, 256
    s_cbranch_scc1 L_k2_end
    v_readfirstlane_b32 s{S_WV}, v0
    s_load_dwordx2 s[{SRD_P}:{SRD_P+1}], s[0:1], 64
    s_load_dwordx2 s[{SRD_OUT}:{SRD_OUT+1}], s[0:1], 32
    s_and_b32 s{S_B}, s2, 7
    s_lshl_b32 s{S_B}, s{S_B}, 5
    s_lshr_b32 s{S_TMP}, s2, 3
    s_add_u32 s{S_B}, s{S_B}, s{S_TMP}
    s_sub_u32 s{S_B}, 255, s{S_B}
    s_mul_i32 s{S_X0}, s{S_B}, {NB*128}
    s_lshr_b32 s{S_WV}, s{S_WV}, 6
    s_mov_b32 s{A+3}, 0x20000
    s_mov_b32 s{B+3}, 0x20000
    s_mov_b32 s{Cc+3}, 0x20000
    s_mov_b32 s{SRD_P+3}, 0x20000
    s_mov_b32 s{SRD_TAB+2}, {(256*256)<<TSH}
    s_mov_b32 s{SRD_TAB+3}, 0x20000
    s_mov_b32 s{SRD_REC+2}, {G*REC_STRIDE}
    s_mov_b32 s{SRD_REC+3}, 0x20000
    s_mov_b32 s{SRD_OUT+2}, {129*128}
    s_mov_b32 s{SRD_OUT+3}, 0x20000
    s_movk_i32 s49, 16384
    v_and_b32 v{OO}, 15, v0
    v_lshlrev_b32 v{OO}, 3, v{OO}
    s_cmp_lt_u32 s{S_WV}, 4
    s_cbranch_scc1 L_p
    s_cmp_ge_u32 s{S_WV}, 14
    s_cbranch_scc1 L_aux
    v_subrev_u32 v9, 256, v0
    v_lshlrev_b32 v1, 4, v9
    v_lshlrev_b32 v25, 2, v9
    v_mov_b32 v24, 0
    s_cmp_lt_u32 s{S_B}, {G}
    s_cbranch_scc1 L_edge
    s_load_dwordx2 s[{B}:{B+1}], s[0:1], 56
    s_mov_b32 s{B+2}, 128
    s_sub_u32 s41, 255, s{S_B}
    s_lshl_b32 s40, s41, {14+TSH}
    s_add_u32 s42, s40, {8192<<TSH}
    v_lshrrev_b32 v10, {7-TSH}, v1
    v_and_b32 v11, {(128>>TSH)-1}, v1
    v_lshl_add_u32 v10, v10, 7, v11
    s_lshl_b32 s41, s41, 3
    s_add_u32 s41, s41, s{S_WV}
    s_sub_u32 s41, s41, 4
    s_lshl_b32 s41, s41, 2
    v_mov_b32 v4, 0
    v_mov_b32 v5, 0
    v_mov_b32 v6, 0
    v_mov_b32 v7, 0
    v_mov_b32 v8, 1
    s_waitcnt lgkmcnt(0)
    s_add_u32 s{SRD_TAB}, s{SRD_P}, {WS_TAB}
    s_addc_u32 s{SRD_TAB+1}, s{SRD_P+1}, 0
    s_cmp_ge_u32 s{S_WV}, 12
    s_cbranch_scc1 L_clear1
    buffer_store_dwordx4 v[4:7], v10, {srd(SRD_TAB)}, s40 offen sc1
    buffer_store_dwordx4 v[4:7], v10, {srd(SRD_TAB)}, s42 offen sc1
    s_waitcnt vmcnt(0)
    @STAMP2 clrdrained
    s_mov_b64 exec, 1
    buffer_store_dword v8, v4, {srd(B)}, s41 offen sc1
    s_mov_b64 exec, -1
L_clear1:
    {w3load}
    ds_write_b32 v25, v24 offset:{CNT1}
    {recsrd}
    s_waitcnt lgkmcnt(0)
    s_barrier
    s_barrier
    s_waitcnt vmcnt(0)
    s_branch L_common
L_edge:
    s_load_dwordx2 s[{A}:{A+1}], s[0:1], 24
    s_load_dwordx2 s[{B}:{B+1}], s[0:1], 16
    s_load_dwordx2 s[{Cc}:{Cc+1}], s[0:1], 8
    s_mov_b32 s{A+2}, {EDGES*4}
    s_mov_b32 s{B+2}, {EDGES*4}
    s_mov_b32 s{Cc+2}, {EDGES*2}
    s_mul_i32 s40, s{S_B}, {CH*4}
    s_add_u32 s41, s40, {2560*4}
    s_mul_i32 s42, s{S_B}, {CH*2}
    s_add_u32 s43, s42, {2560*2}
    v_lshlrev_b32 v2, 3, v9
    v_lshlrev_b32 v3, 1, v9
    s_waitcnt lgkmcnt(0)
    buffer_load_dwordx4 v[4:7], v1, {srd(A)}, s40 offen
    buffer_load_dword v8, v25, {srd(A)}, s41 offen
    buffer_load_dwordx4 v[12:15], v1, {srd(B)}, s40 offen
    buffer_load_dwordx2 v[20:21], v2, {srd(Cc)}, s42 offen
    buffer_load_dword v16, v25, {srd(B)}, s41 offen
    buffer_load_ushort v22, v3, {srd(Cc)}, s43 offen
    {w3load}
    ds_write_b32 v25, v24 offset:{CNT1}
    {recsrd}
    s_mul_i32 s40, s{S_B}, {REC_STRIDE}
    s_add_u32 s41, s40, {80*128}
    s_add_u32 s42, s40, {160*128}
    s_add_u32 s43, s40, {240*128}
    s_mov_b32 s45, {-NB*4 & 0xffffffff}
    s_mov_b32 s46, 0xffff0000
    s_mov_b32 s47, {48<<13}
    s_mov_b32 s48, {CELL}
    v_mov_b32 v3, {INC}
    v_lshrrev_b32 v26, 3, v9           ; cell
    v_and_b32 v27, 0x70, v1            ; 16*k
    v_mul_u32_u24 v62, {CS}, v26
    v_add3_u32 v62, v62, v27, s48
    v_bfe_u32 v27, v9, 2, 1
    v_mul_u32_u24 v27, {0 if 'fullline' in X_ else 12*INC}, v27
    v_lshlrev_b32 v26, 2, v26
    s_waitcnt lgkmcnt(0)
    s_barrier
    @STAMP bar1
    s_waitcnt vmcnt(5)
    """)
    R = range(NE)
    for i in R: e(f'v_mul_u32_u24 v{28+i}, 42800, v{4+i}')
    for i in R: e(f'v_lshrrev_b32 v{44+i}, 21, v{28+i}')
    for i in R:
        e(f'v_lshlrev_b32 v{28+i}, 2, v{44+i}')
        e(f'ds_add_rtn_u32 v{36+i}, v{28+i}, v3 offset:{CNT1}')
    for i in R: e(f'v_lshl_add_u32 v{4+i}, v{4+i}, 2, 4')
    for i in R: e(f'v_mad_i32_i24 v{4+i}, v{44+i}, s45, v{4+i}')
    e('s_waitcnt vmcnt(0)')
    e('@STAMP allloaded')
    for i in R:
        a = 20 + i//2
        if i % 2 == 0:
            e(f'v_lshl_or_b32 v{12+i}, v{a}, 16, v{12+i}')
        else:
            e(f'v_and_or_b32 v{12+i}, v{a}, s46, v{12+i}')
    for i in R:
        e(f's_waitcnt lgkmcnt({NE-1-i+2*i})')
        e(f'v_min_u32 v{44+i}, s47, v{36+i}')
        e(f'v_bfe_u32 v{52+i}, v{44+i}, 13, 2')
        e(f'v_lshrrev_b32 v{44+i}, 13, v{44+i}')
        e(f'v_mad_u32_u24 v{44+i}, v{28+i}, {CS//16}, v{44+i}')
        e(f'v_lshl_add_u32 v{44+i}, v{44+i}, 2, s48')
        e(f'ds_write_b32 v{44+i}, v{12+i}')
        e(f'v_mad_i32_i24 v{52+i}, v{52+i}, -3, v{44+i}')
        e(f'ds_write_b8 v{52+i}, v{4+i} offset:12')
    e(f"""
    v_max3_u32 v2, v36, v37, v38
    v_max3_u32 v2, v2, v39, v40
    v_cmp_le_u32 s[50:51], s47, v2
    s_waitcnt lgkmcnt(0)
    s_barrier
    @STAMP bar2p
    """)
    for p in range(NP):
        e(f'ds_read_b32 v{48+p}, v26 offset:{CNT1 + p*320}')
        e(f'ds_read_b128 v[{64+4*p}:{67+4*p}], v62 offset:{p*80*CS}')
    for p in range(NP):
        if p == NP-1:
            e(f's_cmp_ge_u32 s{S_WV}, 6')
            e('s_cbranch_scc1 L_copied')
        e(f's_waitcnt lgkmcnt({2*(NP-1-p)})')
        e(f'v_cmp_lt_u32 vcc, v27, v{48+p}')
        e('s_and_b64 exec, exec, vcc')
        e(f's_cbranch_execz L_c{p}')
        e(f'buffer_store_dwordx4 v[{64+4*p}:{67+4*p}], v1, {srd(SRD_REC)}, s{40+p} offen sc1')
        e(f'L_c{p}:')
        e('s_mov_b64 exec, -1')
    e(f"""
L_copied:
    s_cmp_eq_u64 s[50:51], 0
    s_cbranch_scc0 L_overflow
    """)

def phase1_tail():
    NE = 5
    A, B, Cc = SRD_A, SRD_B, SRD_C
    w3load = f'buffer_load_dwordx2 v[{W3}:{W3+1}], v{OO}, {srd(SRD_OUT)}, s49 offen'
    recsrd = f"""s_add_u32 s{SRD_REC}, s{SRD_P}, {WS_REC}
    s_addc_u32 s{SRD_REC+1}, s{SRD_P+1}, 0"""
    e(f"""
L_p:
    s_load_dwordx2 s[{A}:{A+1}], s[0:1], 0
    s_add_u32 s40, s{S_X0}, {(NB+1)*128}
    s_min_u32 s{A+2}, s40, {NODES*128}
    s_movk_i32 s41, 4096
    s_movk_i32 s42, 8192
    s_movk_i32 s43, 12288
    s_add_u32 s44, s{S_X0}, 4096
    v_lshlrev_b32 v1, 4, v0
    s_waitcnt lgkmcnt(0)
    buffer_load_dwordx4 v[40:43], v1, {srd(A)}, s{S_X0} offen
    buffer_load_dwordx4 v[44:47], v1, {srd(A)}, s44 offen
    buffer_load_dwordx4 v[24:27], v1, {srd(SRD_OUT)}, 0 offen
    buffer_load_dwordx4 v[28:31], v1, {srd(SRD_OUT)}, s41 offen
    buffer_load_dwordx4 v[32:35], v1, {srd(SRD_OUT)}, s42 offen
    {w3load}
    buffer_load_dwordx4 v[36:39], v1, {srd(SRD_OUT)}, s43 offen
    {recsrd}
    v_lshrrev_b32 v2, 3, v0
    v_and_b32 v3, 0x70, v1
    v_mul_u32_u24 v4, 192, v2
    v_add_u32 v4, v4, v3
    v_mul_u32_u24 v5, 144, v2
    v_add_u32 v5, v5, v3
    v_add_u32 v5, {XS}, v5
    v_bfe_u32 v6, v0, 5, 1             ; h
    v_bfe_u32 v7, v0, 2, 2             ; r
    v_lshl_add_u32 v8, v6, 3, v7
    v_mul_u32_u24 v8, 192, v8          ; (8h + r)*192
    v_bfe_u32 v9, v0, 4, 1
    v_and_b32 v10, 3, v0               ; c
    v_lshl_add_u32 v11, v9, 2, v10     ; gamma
    s_lshr_b32 s45, s{S_WV}, 1         ; which
    s_and_b32 s46, s{S_WV}, 1
    s_sub_u32 s47, 4, s45
    v_lshlrev_b32 v11, s47, v11
    s_mul_i32 s47, s45, {64*192}
    v_add3_u32 v8, v8, v11, s47
    s_mul_i32 s47, s45, 56
    s_add_u32 s47, s47, 8
    v_add_u32 v12, s47, v8
    v_and_b32 v13, 31, v0
    v_mul_u32_u24 v14, 144, v13
    v_lshl_add_u32 v14, v6, 4, v14
    s_mul_i32 s47, s46, {32*144}
    s_add_u32 s47, s47, {XS}
    v_add_u32 v14, s47, v14
    s_mov_b32 s48, {NEG_LOG2E}
    s_waitcnt vmcnt(6)
    ds_write_b128 v5, v[40:43]
    s_waitcnt vmcnt(5)
    ds_write_b128 v5, v[44:47] offset:{32*144}
    """)
    for i in range(4):
        e(f's_waitcnt vmcnt({[4, 3, 2, 0][i]})')
        e(f'ds_write_b128 v4, v[{24+4*i}:{27+4*i}] offset:{W12 + 32*192*i}')
    e("""
    s_waitcnt lgkmcnt(0)
    s_barrier
    """)
    def step_reads(s_):
        e(f'ds_read_b128 v[{16+12*s_}:{19+12*s_}], v14 offset:{32*s_}')
        for t_ in range(2):
            for h in range(2):
                r = 20 + 12*s_ + 4*t_ + 2*h
                e(f'ds_read_b64_tr_b16 v[{r}:{r+1}], v{8 if t_ == 0 else 12} offset:{W12 + (16*s_ + 4*h)*192}')
    for s_ in range(3): step_reads(s_)
    for s_ in range(4):
        e(f's_waitcnt lgkmcnt({[10, 10, 5, 0][s_]})')
        for t_ in range(2):
            d = 64 + 16*t_
            e(f'v_mfma_f32_32x32x16_bf16 v[{d}:{d+15}], v[{16+12*s_}:{19+12*s_}], v[{20+12*s_+4*t_}:{23+12*s_+4*t_}], ' + ('0' if s_ == 0 else f'v[{d}:{d+15}]'))
        if s_ == 0: step_reads(3)
    e(f"""
    s_cmp_eq_u32 s45, 0
    s_cbranch_scc0 L_q
    s_add_u32 s40, s{S_X0}, {NB*128}
    s_min_u32 s{SRD_P+2}, s40, {NODES*128}
    s_lshl_b32 s46, s46, 12
    s_add_u32 s46, s46, s{S_X0}
    v_lshlrev_b32 v2, 6, v9
    v_lshl_add_u32 v2, v10, 4, v2
    v_lshl_add_u32 v2, v7, 2, v2
    v_lshl_add_u32 v2, v6, 9, v2       ; + 4h rows
    s_nop 3
    """)
    for v in range(16):
        e(f'v_mul_f32 v{64+v}, s48, v{64+v}')
        e(f'v_mul_f32 v{80+v}, s48, v{80+v}')
        e(f'v_cvt_pk_bf16_f32 v{64+v}, v{64+v}, v{80+v}')
        e(f'buffer_store_dword v{64+v}, v2, {srd(SRD_P)}, s46 offen offset:{(8*(v//4) + v%4)*128} sc1')
    e(f"""
    s_branch L_third
L_q:
    s_lshl_b32 s46, s46, 13
    v_lshlrev_b32 v2, 2, v13
    v_lshl_add_u32 v2, v6, 10, v2
    v_add_u32 v2, s46, v2
    s_nop 7
    """)
    for v in range(16):
        e(f'v_mul_f32 v{64+v}, s48, v{64+v}')
        e(f'v_mul_f32 v{80+v}, s48, v{80+v}')
        off = QS + (8*(v//4) + v%4)*256
        e(f'ds_write_b32 v2, v{64+v} offset:{off}')
        e(f'ds_write_b32 v2, v{80+v} offset:{off+128}')
    e(f"""
L_third:
    v_lshlrev_b32 v2, 2, v0
    v_mul_u32_u24 v3, {CS}, v0
    v_add_u32 v3, {CELL+128}, v3
    v_lshlrev_b32 v4, 6, v0
    s_mul_i32 s40, s{S_B}, {REC_STRIDE}
    s_add_u32 s40, s40, {T3}
    s_mov_b32 s41, {24*INC}
    s_waitcnt lgkmcnt(0)
    s_barrier
    ds_read_b32 v5, v2 offset:{CNT1}
    s_waitcnt lgkmcnt(0)
    v_cmp_lt_u32 vcc, s41, v5
    s_and_b64 exec, exec, vcc
    s_cbranch_execz L_third1
    ds_read_b128 v[16:19], v3
    ds_read_b128 v[20:23], v3 offset:16
    ds_read_b128 v[24:27], v3 offset:32
    ds_read_b128 v[28:31], v3 offset:48
    s_waitcnt lgkmcnt(0)
    buffer_store_dwordx4 v[16:19], v4, {srd(SRD_REC)}, s40 offen sc1
    buffer_store_dwordx4 v[20:23], v4, {srd(SRD_REC)}, s40 offen offset:16 sc1
    buffer_store_dwordx4 v[24:27], v4, {srd(SRD_REC)}, s40 offen offset:32 sc1
    buffer_store_dwordx4 v[28:31], v4, {srd(SRD_REC)}, s40 offen offset:48 sc1
L_third1:
    s_mov_b64 exec, -1
    s_branch L_common
L_aux:
    s_load_dwordx2 s[{A}:{A+1}], s[0:1], 40
    s_load_dwordx2 s[{B}:{B+1}], s[0:1], 56
    s_mov_b32 s{A+2}, 16384
    s_mov_b32 s{B+2}, 128
    v_subrev_u32 v9, 896, v0
    v_lshlrev_b32 v1, 4, v9
    v_lshrrev_b32 v2, 3, v9
    v_mul_u32_u24 v2, 144, v2
    v_and_b32 v3, 0x70, v1
    v_add_u32 v2, v2, v3
    v_add_u32 v2, {WUS}, v2
    v_and_b32 v60, 0x3f0, v1
    v_lshlrev_b32 v5, 2, v9
    s_movk_i32 s41, 4096
    s_movk_i32 s42, 8192
    s_movk_i32 s43, 12288
    s_waitcnt lgkmcnt(0)
    {recsrd}
    s_barrier
    {w3load}
    """)
    for i in range(8):
        e(f'buffer_load_dwordx4 v[{16+4*i}:{19+4*i}], v1, {srd(A)}, {["0", "s41", "s42", "s43"][i//2]} offen offset:{2048*(i%2)}')
    e(f"""
    s_barrier
    s_waitcnt vmcnt(0)
    """)
    for i in range(8):
        e(f'ds_write_b128 v2, v[{16+4*i}:{19+4*i}] offset:{16*144*i}')
    e(f"""
    s_cmp_eq_u32 s{S_WV}, 14
    s_cbranch_scc0 L_row
    s_mov_b32 s{S_SPIN}, 0
    s_mov_b32 exec_hi, 0
L_ipoll:
    buffer_load_dword v6, v5, {srd(B)}, 0 offen sc1
    s_add_u32 s{S_SPIN}, s{S_SPIN}, 1
    s_waitcnt vmcnt(0)
    v_cmp_ne_u32 vcc, 1, v6
    s_cbranch_vccz L_ipoll_done
    s_sleep 8
    s_cmp_lt_u32 s{S_SPIN}, {SPIN_MAX}
    s_cbranch_scc1 L_ipoll
L_ipoll_done:
    s_mov_b64 exec, -1
    s_branch L_common
L_row:
    ds_read_b128 v[52:55], v60 offset:{CNT1}
    s_waitcnt lgkmcnt(0)
    """)
    for i in range(4): e(f'v_lshl_add_u32 v{40+i}, v{52+i}, 1, v{52+i}')
    for i in range(4): e(f'v_lshrrev_b32 v{40+i}, 15, v{40+i}')
    e(f"""
    v_max3_u32 v6, v40, v41, v42
    v_max_u32 v6, v6, v43
    v_cmp_lt_u32 vcc, 36, v6
    s_cbranch_vccz L_row1
    """)
    ovf_scan()
    for i in range(4): e(f'v_lshl_or_b32 v{56+i}, v{40+i}, 16, v{56+i}')
    e(f"""
    s_mul_i32 s40, s{S_B}, {REC_STRIDE}
    s_add_u32 s40, s40, {TABF}
    buffer_store_dwordx4 v[56:59], v60, {srd(SRD_REC)}, s40 offen sc1
L_row1:
    """)
    for i in range(4): e(f'v_min_u32 v{40+i}, 37, v{40+i}')
    e(f"""
    v_lshl_or_b32 v40, v41, 8, v40
    v_lshl_or_b32 v42, v43, 8, v42
    v_lshl_or_b32 v40, v42, 16, v40
    v_add_u32 v52, 0x01010101, v40
    v_lshrrev_b32 v6, 2, v60
    ds_write_b32 v6, v52 offset:{GT+1024}
    ds_read_b128 v[52:55], v60 offset:{GT+1024}
    s_branch L_common
L_overflow:
    v_and_b32 v60, 0x3f0, v1
    ds_read_b128 v[52:55], v60 offset:{CNT1}
    s_waitcnt lgkmcnt(0)
    """)
    ovf_scan()
    e(f"""
    ds_write_b128 v60, v[56:59] offset:{GT}
    s_add_u32 s44, s40, {OVF - 192}
    """)
    for i in range(NE):
        e(f"""
        v_cmp_le_u32 vcc, s47, v{36+i}
        s_and_b64 exec, exec, vcc
        s_cbranch_execz L_o{i}
        ds_read_b32 v44, v{28+i} offset:{GT}
        v_lshrrev_b32 v45, 13, v{36+i}
        v_and_b32 v46, 3, v45
        s_waitcnt lgkmcnt(0)
        v_lshl_add_u32 v45, v44, 2, v45
        v_lshlrev_b32 v45, 2, v45
        v_mad_i32_i24 v46, v46, -3, v45
        buffer_store_dword v{12+i}, v45, {srd(SRD_REC)}, s44 offen sc1
        buffer_store_byte v{4+i}, v46, {srd(SRD_REC)}, s44 offen offset:12 sc1
L_o{i}:
        s_mov_b64 exec, -1""")
    e('s_branch L_common')

def k2():
    e(""".globl gather_scatter__mpnn_edge_mlp__graph_kernel
.p2align 8
.type gather_scatter__mpnn_edge_mlp__graph_kernel,@function
gather_scatter__mpnn_edge_mlp__graph_kernel:""")
    def mk(i): return f's[{S_MASK+2*i}:{S_MASK+2*i+1}]'
    phase1()
    PFPOS = int(os.environ.get('PFPOS', '0'))
    pf = f'buffer_load_dword v{E+15}, v12, s[{SRD_P}:{SRD_P+3}], 0 idxen'
    if PFPOS == 1:
        PFA = f"""s_lshr_b32 s6, s2, 3
        s_mul_i32 s6, s6, 25
        s_sub_u32 s7, 784, s6
        s_min_u32 s7, s7, 25
        s_bfm_b64 s[{S_TMP+2}:{S_TMP+3}], s7, 0
        s_mul_i32 s7, s{S_WV}, 784
        s_add_u32 s6, s6, s7
        v_add_u32 v12, s6, v46"""
        PF1 = f's_mov_b64 exec, s[{S_TMP+2}:{S_TMP+3}]\n{pf}'; PF2 = ''
    elif PFPOS == 2:
        PFA = 's_lshr_b32 s6, s2, 3\ns_mul_i32 s6, s6, 391\nv_add_u32 v12, s6, v0'
        PF1 = ''; PF2 = f's_cmp_gt_u32 s{S_WV}, 6\ns_cbranch_scc1 L_no_pf\n{pf}\nL_no_pf:'
    else:
        PFA = PF1 = PF2 = ''
    e(f"""
L_common:
    @STAMP issued
    s_load_dwordx2 s[{SRD_OUT}:{SRD_OUT+1}], s[0:1], 48
    s_mov_b32 s{SRD_OUT+2}, {NODES*128}
    s_add_u32 s{SRD_TAB}, s{SRD_P}, {WS_TAB}
    s_addc_u32 s{SRD_TAB+1}, s{SRD_P+1}, 0
    s_or_b32 s{SRD_P+1}, s{SRD_P+1}, {128<<16}
    s_mov_b32 s{SRD_P+2}, {NODES}
    s_mov_b32 s{S_RND}, 0
    s_mov_b32 s{S_SAFE}, 0
    s_mov_b32 s{S_PUB}, 15
    s_mov_b32 s{S_L2E}, {NEG_LOG2E}
    v_lshlrev_b32 v1, 4, v0            ; 16 t
    v_and_b32 v{LQ}, 0xf0, v1
    v_and_b32 v{LA}, 0x3f00, v1
    v_and_b32 v{CH16}, 0x30, v1
    v_mov_b32 v{DS}, 0
    v_mov_b32 v{DS+1}, 0
    v_mov_b32 v{ZERO}, 0
    v_lshrrev_b32 v32, 1, v0
    v_and_b32 v34, 12, v32             ; 4*gD
    v_xor_b32 v32, v32, v0
    v_and_b32 v32, 16, v32
    v_cmp_eq_u32 vcc, 0, v32
    v_and_b32 v33, 16, v1
    v_mov_b32 v41, 0x3f80
    v_lshlrev_b32 v33, v33, v41
    v_bfe_u32 v41, v0, 1, 3
    v_or_b32 v41, v41, v32
    v_cndmask_b32 v{W3}, 0, v{W3}, vcc
    v_cndmask_b32 v{W3+1}, 0, v{W3+1}, vcc
    """)
    for d in range(8):
        e(f'v_cmp_eq_u32 {mk(d)}, {d}, v41')
    for d in range(8):
        e(f'v_cndmask_b32 v{BS0+d}, 0, v33, {mk(d)}')
    e(f"""
    v_lshlrev_b32 v36, 16, v{W3}
    v_and_b32 v37, 0xffff0000, v{W3}
    v_lshlrev_b32 v38, 16, v{W3+1}
    v_and_b32 v39, 0xffff0000, v{W3+1}
    v_mul_f32 v36, s{S_L2E}, v36
    v_mul_f32 v37, s{S_L2E}, v37
    v_mul_f32 v38, s{S_L2E}, v38
    v_mul_f32 v39, s{S_L2E}, v39
    v_cvt_pk_bf16_f32 v{BX}, v36, v37
    v_cvt_pk_bf16_f32 v{BX+1}, v38, v39
    s_and_b32 s{S_TMP}, s{S_WV}, 3     ; mt
    s_lshr_b32 s{S_TMP+1}, s{S_WV}, 2  ; nt
    v_bfe_u32 v35, v0, 4, 2            ; kq
    v_bfe_u32 v{WA}, v0, 2, 2
    v_lshl_add_u32 v{WA}, v35, 3, v{WA}
    v_mul_u32_u24 v{WA}, 144, v{WA}
    v_lshrrev_b32 v36, 1, v{CH16}
    s_lshl_b32 s6, s{S_TMP}, 5
    s_add_u32 s6, s6, {WUS}
    v_add3_u32 v{WA}, v{WA}, v36, s6
    v_and_b32 v36, 0x30, v0            ; 16*kq
    v_mad_u32_u24 v{XA}, v{LQ}, 9, v36
    s_mul_i32 s6, s{S_TMP+1}, {16*144}
    s_add_u32 s6, s6, {XS}
    v_add_u32 v{XA}, s6, v{XA}
    s_mul_i32 s7, s{S_TMP+1}, 2176
    s_add_u32 s7, s7, {AGGB}
    v_mad_u32_u24 v{BR}, v36, 17, v{LQ}
    v_add_u32 v{BR}, s7, v{BR}         ; 272*kq + 16*(l&15)
    v_lshrrev_b32 v14, 5, v{LQ}
    v_mul_u32_u24 v{BW}, 272, v14
    v_and_b32 v14, 8, v{OO}
    s_lshl_b32 s6, s{S_TMP}, 6
    s_add_u32 s7, s7, s6
    v_add3_u32 v{BW}, v{BW}, v14, s7
    v_add_u32 v{BW}, v{BW}, v36        ; (j>>1)*272 + 16*(n&15) + 8*(j&1)
    v_lshlrev_b32 v{OO}, 3, v{LQ}
    v_lshl_add_u32 v{OO}, v35, 3, v{OO}
    v_bfe_u32 v14, v0, 2, 1
    v_and_b32 v15, 32, v0
    v_lshl_add_u32 v{QG32}, v14, 6, v15
    v_mov_b32 v{GD4}, v34
    s_mov_b32 s{S_SPIN}, 0
    s_waitcnt lgkmcnt(0)
    ds_write_b32 v{ZERO}, v{ZERO} offset:{FLAG}
L_round:
    ds_read_b128 v[4:7], v1 offset:{QS}
    v_mov_b32 v36, 0
    v_mov_b32 v37, 0
    v_mov_b32 v38, 0
    v_mov_b32 v39, 0
    v_and_b32 v33, 0xfc, v0
    ds_write_b32 v33, v36
    ds_write_b128 v1, v[36:39] offset:{PART}
    ds_write_b128 v1, v[36:39] offset:{PART+16384}
    v_lshrrev_b32 v2, 2, v0            ; g
    v_lshlrev_b32 v14, {8+TSH}, v2
    v_lshrrev_b32 v48, {7-TSH}, v{LQ}
    v_and_b32 v49, {(128>>TSH)-1}, v{LQ}
    v_lshl_add_u32 v48, v48, 7, v49
    v_mul_u32_u24 v2, {REC_STRIDE}, v2
    v_and_b32 v3, 3, v0
    v_mad_u32_u24 v13, v3, 3, 1
    s_lshl_b32 s6, s{S_B}, 7
    v_add3_u32 v35, v2, v{CH16}, s6
    s_lshl_b32 s6, s{S_B}, 6
    s_add_u32 s6, s6, {T3-128}
    v_add3_u32 v32, v2, v{CH16}, s6
    v_mov_b32 v34, 0x7ffffff0
    v_and_b32 v46, 63, v0
    {PFA}
    v_lshlrev_b32 v47, 2, v46
    v_lshrrev_b32 v57, 6, v{LA}        ; 4n
    v_and_b32 v58, 15, v0              ; j
    v_and_b32 v61, 12, v57             ; 4*qd
    v_mov_b32 v3, 1
    s_movk_i32 s{S_TMP}, 0xfc
    s_waitcnt lgkmcnt(3)
    """)
    for i in range(4):
        e(f'v_exp_f32 v{8+i}, v{4+i}')
    for i in range(4):
        e(f'v_add_f32 v{8+i}, 1.0, v{8+i}')
    for i in range(4):
        e(f'v_rcp_f32 v{8+i}, v{8+i}')
    for i in range(4):
        e(f'v_mul_f32 v{8+i}, v{4+i}, v{8+i}')
    e(f"""
    s_lshl_b32 s6, s{S_B}, {8+TSH}
    s_lshr_b32 s7, s{S_B}, {7-TSH}
    s_lshl_b32 s7, s7, 7
    s_and_b32 s{S_TMP+1}, s{S_B}, {(128>>TSH)-1}
    s_add_u32 s7, s7, s{S_TMP+1}
    s_cmp_eq_u32 s{S_WV}, s{S_PUB}
    s_waitcnt vmcnt(0) lgkmcnt(0)
    @STAMP drained
    s_barrier
    @STAMP bar1q
    s_cbranch_scc0 L_poll0
    s_mov_b64 exec, 0xffff
    buffer_store_dwordx4 v[52:55], v48, {srd(SRD_TAB)}, s6 offen sc1
    s_mov_b64 exec, -1
    s_mov_b32 s{S_PUB}, -1
    {'s_waitcnt vmcnt(0)' if 'pubwait' in X_ else ''}
L_poll0:
    s_barrier
    {'s_sleep ' + os.environ['SLP0'] if os.environ.get('SLP0') else ''}
L_poll:
    buffer_load_ubyte v15, v14, {srd(SRD_TAB)}, s7 offen sc1
    s_add_u32 s{S_SPIN}, s{S_SPIN}, 1
    s_waitcnt vmcnt(0)
    v_cmp_eq_u32 vcc, 0, v15
    s_and_b64 exec, exec, vcc
    s_cbranch_execz L_poll_done
    s_sleep {int(os.environ.get('SLP', '2'))}
    s_cmp_lt_u32 s{S_SPIN}, {SPIN_MAX}
    s_cbranch_scc1 L_poll
L_poll_done:
    s_mov_b64 exec, -1
    @STAMP tab
    s_cmp_lg_u32 s{S_RND}, 0
    s_cbranch_scc1 L_later
    v_sub_u32 v37, v15, v13
L_loads:
    v_cmp_lt_i32 {mk(0)}, 0, v37
    v_cmp_lt_i32 {mk(3)}, 12, v37
    v_cmp_lt_i32 {mk(6)}, 24, v37
    v_cndmask_b32 v38, v34, v35, {mk(0)}
    buffer_load_dwordx4 v[16:19], v38, {srd(SRD_REC)}, 0 offen {RLF}
    v_cndmask_b32 v39, v34, v35, {mk(3)}
    buffer_load_dwordx4 v[20:23], v39, {srd(SRD_REC)}, 0 offen offset:64 {RLF}
    v_cndmask_b32 v40, v34, v32, {mk(6)}
    buffer_load_dwordx4 v[24:27], v40, {srd(SRD_REC)}, 0 offen offset:128 {RLF}
    v_cmp_lt_i32 vcc, 36, v37
    v_cmp_lt_i32 {mk(1)}, 1, v37
    v_cmp_lt_i32 {mk(2)}, 2, v37
    v_cmp_lt_i32 {mk(4)}, 13, v37
    v_cmp_lt_i32 {mk(5)}, 14, v37
    v_cmp_lt_i32 {mk(7)}, 25, v37
    v_cmp_lt_i32 {mk(8)}, 26, v37
    s_mov_b64 exec, vcc
    ds_write_b32 v{ZERO}, v3 offset:240
    """)
    for k in range(3):
        if k == 2:
            e(f's_cmp_eq_u64 {mk(6)}, 0')
            e('s_cbranch_scc1 L_skipA')
        e(f's_waitcnt vmcnt({2-k})')
        if k == 0: e('@STAMP rec0')
        m = 19 + 4*k
        for i in range(3):
            e(f's_mov_b64 exec, {mk(3*k+i)}')
            e(f'v_and_b32_sdwa v{28+3*k+i}, v{m}, s{S_TMP} {SDW} src0_sel:BYTE_{i} src1_sel:DWORD')
            e(f'ds_add_rtn_u32 v{37+3*k+i}, v{28+3*k+i}, v3')
    e(f"""
L_skipA:
    {PF1}
    s_mov_b64 exec, -1
    s_mov_b32 s{S_TMP}, {RECS}
    s_waitcnt lgkmcnt(0)
    @STAMP atomics
    s_barrier
    @STAMP bar2
    ; ---- phase B
    {PF2}
    ds_read_b32 v48, v47
    ds_read_b32 v52, v57 offset:4
    s_waitcnt lgkmcnt(1)
    v_add_u32 v49, 7, v48
    v_lshrrev_b32 v49, 3, v49
    v_readlane_b32 s{S_MORE}, v48, 60
    s_nop 0
    v_add_u32_dpp v50, v49, v49 row_shr:1 row_mask:0xf bank_mask:0xf bound_ctrl:0
    """)
    for d in ('row_shr:2', 'row_shr:4', 'row_shr:8'):
        e('s_nop 1')
        e(f'v_add_u32_dpp v50, v50, v50 {d} row_mask:0xf bank_mask:0xf bound_ctrl:0')
    e(f"""
    s_nop 1
    v_add_u32_dpp v50, v50, v50 row_bcast:15 row_mask:0xa bank_mask:0xf
    s_nop 1
    v_add_u32_dpp v50, v50, v50 row_bcast:31 row_mask:0xc bank_mask:0xf
    v_sub_u32 v49, v50, v49            ; uoff
    v_readlane_b32 s{S_TOT}, v50, 50
    v_lshl_add_u32 v51, v49, 5, s{S_TMP}
    s_waitcnt lgkmcnt(0)
    ds_write_b32 v47, v51 offset:{BASE}
    ds_read_b32 v54, v57 offset:{BASE+4}
    """)
    for sl in range(6):
        e(f's_mov_b64 exec, {mk(sl)}')
        e(f'ds_read_b32 v{64+sl}, v{28+sl} offset:{BASE}')
    e(f"""
    s_mov_b64 exec, -1
    v_sub_u32 v15, 0, v52
    v_and_b32 v15, 7, v15              ; npad
    v_cvt_f32_u32 v53, v15
    s_add_u32 s6, s{S_TOT}, 3
    s_lshr_b32 s6, s6, 2               ; nT
    s_lshr_b32 s{S_QN}, s6, 4
    s_and_b32 s{S_RN}, s6, 15
    v_mul_f32 v8, v53, -v8
    v_mul_f32 v9, v53, -v9
    v_mul_f32 v10, v53, -v10
    v_mul_f32 v11, v53, -v11
    s_cmp_lt_u32 s{S_WV}, s{S_RN}
    s_addc_u32 s{S_NT}, s{S_QN}, 0
    s_min_u32 s6, s{S_WV}, s{S_RN}
    s_mul_i32 s7, s{S_WV}, s{S_QN}
    s_add_u32 s6, s6, s7
    s_lshl_b32 s7, s6, 4               ; ustart*4
    s_lshl_b32 s6, s6, 7               ; ustart*32
    s_add_u32 s6, s6, {RECS}
    s_cmp_eq_u32 s{S_RND}, 0
    s_cbranch_scc1 L_agg0
    ds_read_b128 v[4:7], v1 offset:{AGG}
    s_waitcnt lgkmcnt(0)
    v_pk_add_f32 v[8:9], v[8:9], v[4:5]
    v_pk_add_f32 v[10:11], v[10:11], v[6:7]
L_agg0:
    s_waitcnt lgkmcnt(0)
    """)
    recreg = [16, 17, 18, 20, 21, 22, 24, 25, 26]
    for sl in range(6):
        e(f's_mov_b64 exec, {mk(sl)}')
        e(f'v_lshl_add_u32 v{64+sl}, v{37+sl}, 2, v{64+sl}')
        e(f'ds_write_b32 v{64+sl}, v{recreg[sl]}')
    e(f"""
    s_cmp_eq_u64 {mk(6)}, 0
    s_cbranch_scc1 L_skipB
    """)
    for sl in range(6, 9):
        e(f's_mov_b64 exec, {mk(sl)}')
        e(f'ds_read_b32 v{64+sl}, v{28+sl} offset:{BASE}')
    e('s_waitcnt lgkmcnt(0)')
    for sl in range(6, 9):
        e(f's_mov_b64 exec, {mk(sl)}')
        e(f'v_lshl_add_u32 v{64+sl}, v{37+sl}, 2, v{64+sl}')
        e(f'ds_write_b32 v{64+sl}, v{recreg[sl]}')
    e(f"""
L_skipB:
    s_mov_b64 exec, -1
    v_mad_u32_u24 v{AR}, v{QG32}, s{S_NT}, v{GD4}
    v_mul_u32_u24 v{AN}, s{S_NT}, v61
    v_add_u32 v{AR}, s6, v{AR}
    v_add_u32 v{AN}, s7, v{AN}
    v_mov_b32 v55, {PADREC}
    s_cmp_ge_u32 s{S_WV}, 13
    s_cbranch_scc1 L_special
    ds_write_b128 v1, v[8:11] offset:{AGG}
    v_cmp_gt_u32 vcc, v15, v58
    v_add_u32 v57, v52, v58
    v_lshl_add_u32 v57, v57, 2, v54
    v_lshrrev_b32 v54, 3, v54
    v_lshl_add_u32 v54, v58, 2, v54
    v_lshlrev_b32 v58, 3, v58          ; 8j
    v_mov_b32 v59, v{LA}
    s_mov_b64 exec, vcc
    ds_write_b32 v57, v55
    s_mov_b32 exec_lo, 0x10001
    s_mov_b32 exec_hi, 0x10001
    v_or_b32 v59, 0x80000000, v59
    s_mov_b64 exec, -1
    v_cmp_gt_u32 vcc, v52, v58
    s_mov_b64 exec, vcc
    ds_write_b32 v54, v59 offset:{NTAB-RECS//8}
L_ntab:
    v_add_u32 v58, 128, v58
    v_cmp_gt_u32 vcc, v52, v58
    s_and_b64 exec, exec, vcc
    s_cbranch_execz L_tables_done
    v_add_u32 v54, 64, v54
    ds_write_b32 v54, v{LA} offset:{NTAB-RECS//8}
    s_branch L_ntab
L_special:
    s_cmp_eq_u32 s{S_WV}, 14
    s_cbranch_scc0 L_special2
    s_add_u32 s6, s{S_QN}, 1
    s_lshl_b32 s{S_TMP}, s{S_RN}, 2    ; 4 rn
    s_mul_i32 s7, s{S_TMP}, s6         ; thr
    v_cvt_f32_u32 v52, s6
    v_cvt_f32_u32 v53, s{S_QN}
    v_rcp_f32 v52, v52
    v_rcp_f32 v53, v53
    v_subrev_u32 v54, s7, v49
    v_cvt_f32_u32 v55, v49
    v_cvt_f32_u32 v54, v54
    v_add_f32 v55, 0.5, v55
    v_add_f32 v54, 0.5, v54
    v_mul_f32 v55, v55, v52
    v_mul_f32 v54, v54, v53
    v_cvt_u32_f32 v55, v55
    v_cvt_u32_f32 v54, v54
    v_cmp_gt_u32 vcc, s7, v49
    v_min_u32 v54, 64, v54
    v_add_u32 v54, s{S_TMP}, v54
    v_cndmask_b32 v54, v54, v55, vcc
    v_min_u32 v54, 64, v54
    v_add_lshl_u32 v54, v54, v46, 8    ; 256*(slot+1)
    ds_write_b32 v47, v54 offset:{ST}
    s_branch L_tables_done
L_special2:
    s_cmp_eq_u32 s{S_WV}, 15
    s_cbranch_scc0 L_tables_done
    s_lshl_b32 s6, s{S_TOT}, 5
    s_add_u32 s6, s6, {RECS}
    s_lshl_b32 s7, s{S_TOT}, 2
    v_add_u32 v57, s6, v47
    v_add_u32 v54, s7, v47
    v_mov_b32 v59, {0x80000000 + NB*256}
    s_mov_b64 exec, 0xffffff
    ds_write_b32 v57, v55
    s_mov_b64 exec, 7
    ds_write_b32 v54, v59 offset:{NTAB}
L_tables_done:
    s_mov_b64 exec, -1
    s_waitcnt lgkmcnt(0)
    s_barrier
    @STAMP bar3
    s_cmp_eq_u32 s{S_NT}, 0
    s_cbranch_scc1 L_skip_loop
    s_setprio {3 if PRIO else 0}
    ds_read_u16 v{IDX}, v{AR}
    ds_read_u16 v{N}, v{AR} offset:16
    ds_read_b32 v{X}, v{AN} offset:{NTAB}
    ds_read_u16 v{AV}, v{AR} offset:2
    ds_read_u16 v{N+1}, v{AR} offset:32
    ds_read_u16 v{N+2}, v{AR} offset:18
    s_mov_b64 s[{S_M}:{S_M+1}], 0
    s_waitcnt lgkmcnt(5)
    {ld(G0, 0)}
    {ld(G0+4, 64)}
    s_waitcnt lgkmcnt(3)
    v_mov_b32 v{IDX}, v{N}
    {ld(G1, 0)}
    {ld(G1+4, 64)}
    """)
    load_c()
    e(f"""
    ds_read_b32 v{X}, v{AN} offset:{NTAB+4}
    v_add_u32 v{Z}, v{Y}, v{LA}
    v_mov_b32 v{ACC}, 0
    v_mov_b32 v{ACC+1}, 0
    v_mov_b32 v{ACC+2}, 0
    v_mov_b32 v{ACC+3}, 0
    s_waitcnt lgkmcnt(5)
    {BUILD_AX}
    v_mov_b32 v{IDX}, v{N+1}
    v_mov_b32 v{AV}, v{N+2}
    s_waitcnt vmcnt(2) lgkmcnt(1)
    """)
    mf(T0, G0, BS0, C)
    mf(T0, G0+4, BS1, T0)
    mf8(T0)
    e(f"""
    {ld(G0, 0)}
    {ld(G0+4, 64)}
    {BUILD_AX}
    ds_read_u16 v{IDX}, v{AR} offset:48
    ds_read_u16 v{AV}, v{AR} offset:34
    s_nop 3
    s_waitcnt vmcnt(2) lgkmcnt(0)
    @STAMP pipeprologue
    s_cmp_lg_u32 s{S_SAFE}, 0
    s_cbranch_scc1 L_safe_loop
    """)
    main_loop(False)
    e(f"""
L_loop_done:
    @STAMP loopdone
    s_setprio 0
    v_lshrrev_b32 v13, 6, v{LA}        ; 4n
    v_add_u32 v1, v{LA}, v{LQ}         ; 16 t
    ds_read_b128 v[48:51], v{XA}
    ds_read_b128 v[52:55], v{XA} offset:64
    ds_read_b64_tr_b16 v[32:33], v{WA} offset:0
    ds_read_b64_tr_b16 v[34:35], v{WA} offset:576
    ds_read_b64_tr_b16 v[36:37], v{WA} offset:4608
    ds_read_b64_tr_b16 v[38:39], v{WA} offset:5184
    ds_read_b64_tr_b16 v[40:41], v{WA} offset:9216
    ds_read_b64_tr_b16 v[42:43], v{WA} offset:9792
    ds_read_b64_tr_b16 v[44:45], v{WA} offset:13824
    ds_read_b64_tr_b16 v[46:47], v{WA} offset:14400
    ds_read2_b32 v[10:11], v13 offset0:{(ST+4)//4} offset1:{(ST+8)//4}
    ds_read_b128 v[4:7], v1 offset:{AGG}
    v_add_f32 v{TMP}, v{DS}, v{DS+1}
    s_movk_i32 s6, 0x207
    s_and_b32 s{S_TMP}, s{S_WV}, 3     ; mt
    v_cmp_class_f32 vcc, v{TMP}, s6
    s_lshr_b32 s{S_TMP+1}, s{S_WV}, 2  ; nt
    v_mov_b32 v{TMP+2}, 1
    s_mov_b64 exec, vcc
    ds_write_b32 v{ZERO}, v{TMP+2} offset:{FLAG}
    s_mov_b64 exec, -1
    s_waitcnt lgkmcnt(0)
    v_mfma_f32_16x16x32_bf16 v[56:59], v[32:35], v[48:51], 0
    v_mfma_f32_16x16x32_bf16 v[56:59], v[36:39], v[52:55], v[56:59]
    v_sub_u32 v11, v11, v10            ; 256*count
    v_add_u32 v10, v{LQ}, v10
    s_movk_i32 s6, 256
    s_movk_i32 s7, 512
    v_cmp_lt_u32 s[{S_TMP+2}:{S_TMP+3}], s6, v11
    v_cmp_lt_u32 s[{S_TMP+4}:{S_TMP+5}], s7, v11
    s_cmp_eq_u32 s{S_WV}, 12
    s_cselect_b64 s[{S_TMP+6}:{S_TMP+7}], 0xffff, -1
    s_cmp_gt_u32 s{S_WV}, 12
    s_barrier
    @STAMP bar4
    ; ---- fold
    s_cbranch_scc1 L_fold_done
    s_mov_b64 exec, s[{S_TMP+6}:{S_TMP+7}]
    ds_read_b128 v[16:19], v10 offset:{PART-256}
    ds_read_b128 v[20:23], v10 offset:{PART}
    ds_read_b128 v[24:27], v10 offset:{PART+256}
    s_waitcnt lgkmcnt(2)
    v_pk_add_f32 v[4:5], v[4:5], v[16:17]
    v_pk_add_f32 v[6:7], v[6:7], v[18:19]
    s_and_b64 exec, exec, s[{S_TMP+2}:{S_TMP+3}]
    s_waitcnt lgkmcnt(1)
    v_pk_add_f32 v[4:5], v[4:5], v[20:21]
    v_pk_add_f32 v[6:7], v[6:7], v[22:23]
    s_and_b64 exec, exec, s[{S_TMP+4}:{S_TMP+5}]
    s_waitcnt lgkmcnt(0)
    v_pk_add_f32 v[4:5], v[4:5], v[24:25]
    v_pk_add_f32 v[6:7], v[6:7], v[26:27]
L_fold:
    s_add_u32 s7, s7, 256
    v_cmp_lt_u32 vcc, s7, v11
    s_and_b64 exec, exec, vcc
    s_cbranch_execz L_fold2
    ds_read_b128 v[16:19], v10 offset:{PART+512}
    v_add_u32 v10, 256, v10
    s_waitcnt lgkmcnt(0)
    v_pk_add_f32 v[4:5], v[4:5], v[16:17]
    v_pk_add_f32 v[6:7], v[6:7], v[18:19]
    s_branch L_fold
L_fold2:
    s_mov_b64 exec, s[{S_TMP+6}:{S_TMP+7}]
    s_cmp_eq_u32 s{S_MORE}, 0
    s_cbranch_scc1 L_fold4
    ds_write_b128 v1, v[4:7] offset:{AGG}
    s_branch L_fold_done
L_fold4:
    s_mov_b32 s6, {NEG_LN2}
    s_mov_b32 s7, {NEG_LN2}
    v_pk_mul_f32 v[4:5], v[4:5], s[6:7]
    v_pk_mul_f32 v[6:7], v[6:7], s[6:7]
    v_cvt_pk_bf16_f32 v4, v4, v5
    v_cvt_pk_bf16_f32 v5, v6, v7
    ds_write_b64 v{BW}, v[4:5]
L_fold_done:
    s_mov_b64 exec, -1
    s_lshl_b32 s6, s{S_TMP}, 5
    s_add_u32 s6, s6, s{S_X0}
    s_lshl_b32 s7, s{S_TMP+1}, 11
    s_add_u32 s6, s6, s7
    s_cmp_eq_u32 s{S_TMP+1}, 3
    s_cselect_b32 s{S_TMP+2}, 0x10001, -1
    s_cmp_eq_u32 s{S_MORE}, 0
    s_waitcnt lgkmcnt(0)
    s_barrier
    s_cbranch_scc1 L_final
    s_add_u32 s{S_RND}, s{S_RND}, 12
L_again:
    v_lshrrev_b32 v0, 4, v1
    s_waitcnt vmcnt(0)
    s_branch L_round
L_final:
    @STAMP bar5
    ds_read_b128 v[48:51], v{BR}
    ds_read_b128 v[52:55], v{BR} offset:1088
    s_movk_i32 s7, 0x207
    s_waitcnt lgkmcnt(1)
    v_mfma_f32_16x16x32_bf16 v[56:59], v[40:43], v[48:51], v[56:59]
    s_waitcnt lgkmcnt(0)
    v_mfma_f32_16x16x32_bf16 v[56:59], v[44:47], v[52:55], v[56:59]
    s_nop 5
    s_mov_b32 exec_lo, s{S_TMP+2}
    s_mov_b32 exec_hi, s{S_TMP+2}
    """)
    for i in range(4):
        e(f'v_mul_f32 v{4+i}, s{S_L2E}, v{56+i}')
    for i in range(4):
        e(f'v_exp_f32 v{4+i}, v{4+i}')
    e('v_cmp_class_f32 vcc, v56, s7')
    for i in range(4):
        e(f'v_add_f32 v{4+i}, 1.0, v{4+i}')
    for i in range(4):
        e(f'v_rcp_f32 v{4+i}, v{4+i}')
    for i in range(4):
        e(f'v_mul_f32 v{4+i}, v{56+i}, v{4+i}')
    e(f"""
    v_cvt_pk_bf16_f32 v4, v4, v5
    v_cvt_pk_bf16_f32 v5, v6, v7
    buffer_store_dwordx2 v[4:5], v{OO}, s[{SRD_OUT}:{SRD_OUT+3}], s6 offen
    s_cmp_lg_u32 s{S_SAFE}, 0
    s_cbranch_scc1 L_k2_end
    s_mov_b64 exec, vcc
    ds_write_b32 v{ZERO}, v{TMP+2} offset:{FLAG}
    s_mov_b64 exec, -1
    s_waitcnt lgkmcnt(0)
    s_barrier
    ds_read_b32 v2, v{ZERO} offset:{FLAG}
    s_waitcnt lgkmcnt(0)
    v_readfirstlane_b32 s6, v2
    s_cmp_eq_u32 s6, {'s6' if 'nosafe' in X_ else 0}
    s_cbranch_scc1 L_k2_end
    s_mov_b32 s{S_SAFE}, 1
    s_mov_b32 s{S_RND}, 0
    v_mov_b32 v{DS}, 0
    v_mov_b32 v{DS+1}, 0
    s_branch L_again
L_k2_end:
    @FLUSH 0
    s_endpgm
    """)
    phase1_tail()
    main_loop(True)
    e('L_skip_loop:')
    e('s_waitcnt vmcnt(0)')
    e('s_branch L_loop_done')
    e(f"""
L_later:
    v_cmp_eq_u32 vcc, 38, v15
    s_lshl_b32 s6, s{S_B}, 2
    s_add_u32 s6, s6, {TABF}
    v_cndmask_b32 v38, v34, v2, vcc
    buffer_load_dword v15, v38, {srd(SRD_REC)}, s6 offen sc1
    s_mul_i32 s7, s{S_RND}, 3
    s_sub_u32 s7, s7, 1
    v_add_u32 v13, s7, v13
    s_lshl_b32 s6, s{S_RND}, 4
    s_add_u32 s6, s6, {OVF - 192}
    v_add3_u32 v35, v2, v{CH16}, s6
    s_waitcnt vmcnt(0)
    v_sub_u32_sdwa v37, v15, v13 {SDW} src0_sel:WORD_1 src1_sel:DWORD
    v_and_b32 v15, 0xffff, v15
    v_lshl_add_u32 v35, v15, 4, v35
    v_mov_b32 v32, v35
    s_branch L_loads
    """)

HEADER = f"""; MPNN edge-MLP layer in one launch, one workgroup per CU.
;  phase 1: bucket a chunk of edges by destination range (LDS counting sort), P = -log2e * x @ W1 (bf16), Q = -log2e * x @ W2
;  phase 2: per bucket of {NB} nodes: sort by node, gather P rows, MFMA unpack (+a*w3+Q), silu sum, update GEMM
; @launch grid=(256,1,1) block=(1024,1,1) lds={K2_LDS}
.amdgcn_target "amdgcn-amd-amdhsa--gfx950"
.text"""

def main():
    k2()
    e('.section .rodata,"a"')
    e('.p2align 6')
    kd('gather_scatter__mpnn_edge_mlp__graph_kernel', 128, 80)
    path = sys.argv[1] if len(sys.argv) > 1 else 'gather_scatter__mpnn_edge_mlp__graph.s'
    open(path, 'w').write(HEADER + '\n' + '\n'.join(out) + '\n')

main()
```

```python
import sys, struct

NODES = 12500
EDGES = 800000
NB = 49
G = 250
CH = 3200
K1_BLOCK = 896
WS_P = 0
WS_Q = 0x200000
WS_TAB = 0x520000
WS_WUF = 0x560000
WS_REC = 0x600000
REC_STRIDE = 69632
T3 = 32768
TABF = 49152
OVF = 50176
CS = 208
INC = 10923

def f32(x):
    return '0x%08x' % struct.unpack('<I', struct.pack('<f', x))[0]
NEG_LOG2E = f32(-1.4426950408889634)
NEG_LN2 = f32(-0.6931471805599453)

out = []
def e(s=''):
    for line in s.split('\n'):
        line = line.strip()
        if not line:
            continue
        if line.startswith('@STAMP2'):
            if STAMP == 2: stamp(line[7:].strip())
            continue
        if line.startswith('@STAMP'):
            stamp(line[6:].strip()); continue
        if line.startswith('@INIT'):
            stamp_init(); continue
        if line.startswith('@FLUSH'):
            stamp('end'); stamp_rt(1); stamp_flush(int(line[6:])); continue
        if line.endswith(':') or line.startswith('.') or line.startswith(';'):
            out.append(line)
        else:
            out.append('    ' + line)

import os
STAMP = int(os.environ.get('STAMP', '0'))
nstamp = [0]
RTS = os.environ.get('RTS', '').split(',')
kidx_ = [0]
def stamp(name=''):
    if not STAMP: return
    if STAMP == 2:
        k = kidx_[0]
        for j in range(2):
            if len(RTS) > 2*k+j and RTS[2*k+j] == name:
                e(f"""s_waitcnt lgkmcnt(0)
                s_memrealtime s[98:99]
                s_waitcnt lgkmcnt(0)
                s_mov_b32 s{76+j}, s98""")
        return
    if STAMP == 4:
        if name not in ('entry', 'end', 'bar3', 'bar4', 'bar3rt', 'bar4rt', 'loopdone', 'pipeprologue'): return
        if name in ('bar3', 'bar4'): stamp(name + 'rt')
    i = nstamp[0]; nstamp[0] += 1
    e(f"""s_waitcnt lgkmcnt(0)
    {'s_memrealtime' if (STAMP == 3 or name.endswith('rt')) else 's_memtime'} s[98:99]
    s_waitcnt lgkmcnt(0)
    s_mov_b32 s{76+i}, s98""")
def stamp_rt(idx):
    if not STAMP: return
    e(f"""s_waitcnt lgkmcnt(0)
    s_memrealtime s[98:99]
    s_waitcnt lgkmcnt(0)
    s_mov_b32 s{74+idx}, s98""")
def stamp_flush(kidx):
    if not STAMP: return
    e(f"""s_mov_b64 exec, 1
    s_add_u32 s96, s96, {(32+4*kidx)<<20}
    s_addc_u32 s97, s97, 0
    s_mov_b32 s98, 0x400000
    s_mov_b32 s99, 0x20000
    s_lshl_b32 s100, s2, 4
    s_add_u32 s100, s100, s95
    s_lshl_b32 s100, s100, 7
    v_mov_b32 v2, 0""")
    for q in range(1 if STAMP == 2 else 5):
        for i in range(4):
            e(f'v_mov_b32 v{4+4*q+i}, s{74+4*q+i}')
        e(f'buffer_store_dwordx4 v[{4+4*q}:{7+4*q}], v2, s[96:99], s100 offen offset:{16*q}')
    kidx_[0] += 1
def stamp_init():
    if not STAMP: return
    nstamp[0] = 0
    e('s_memrealtime s[98:99]')
    e('s_load_dwordx2 s[96:97], s[0:1], 64')
    for i in range(75, 78 if STAMP == 2 else 94): e(f's_mov_b32 s{i}, 0')
    e('v_readfirstlane_b32 s95, v0')
    e('s_lshr_b32 s95, s95, 6')
    e('s_waitcnt lgkmcnt(0)')
    e('s_mov_b32 s74, s98')
    stamp('entry')

def vr(a, n=1):
    return f'v{a}' if n == 1 else f'v[{a}:{a+n-1}]'
def sr(a, n=1):
    return f's{a}' if n == 1 else f's[{a}:{a+n-1}]'

def scan(v):
    for d in ('row_shr:1', 'row_shr:2', 'row_shr:4', 'row_shr:8'):
        e('s_nop 1')
        e(f'v_add_u32_dpp v{v}, v{v}, v{v} {d} row_mask:0xf bank_mask:0xf bound_ctrl:0')
    e('s_nop 1')
    e(f'v_add_u32_dpp v{v}, v{v}, v{v} row_bcast:15 row_mask:0xa bank_mask:0xf')
    e('s_nop 1')
    e(f'v_add_u32_dpp v{v}, v{v}, v{v} row_bcast:31 row_mask:0xc bank_mask:0xf')

def kd(name, vgpr, sgpr):
    if STAMP: sgpr = 102
    e(f'''.amdhsa_kernel {name}
.amdhsa_next_free_vgpr {vgpr}
.amdhsa_next_free_sgpr {sgpr}
.amdhsa_accum_offset {(vgpr+3)//4*4}
.amdhsa_group_segment_fixed_size 0
.amdhsa_kernarg_size 72
.amdhsa_user_sgpr_count 2
.amdhsa_user_sgpr_kernarg_segment_ptr 1
.amdhsa_system_sgpr_workgroup_id_x 1
.amdhsa_float_denorm_mode_32 {0 if 'nodenorm' in os.environ.get('X','') else 3}
.end_amdhsa_kernel''')

SDW = 'dst_sel:DWORD dst_unused:UNUSED_PAD'
CNT, BASE, ST, FLAG = 0, 256, 512, 768
QS = 1024
NTAB = QS + 16384
AGG = NTAB + 5120
PART = AGG + 16384
RECS = PART + 32768
XS = RECS + 256*CS
WUS = XS + 64*144
AGGB = WUS + 128*144
K2_LDS = AGGB + 8704
CNT1 = NTAB
GT = NTAB + 1024
W12 = PART
CELL = RECS
PADREC = 0xffff
T0, T1, C, E, G0, G1, BS0, BS1, BX, AX, N, D, TMP, ACC, DS = 0, 16, 32, 48, 64, 72, 80, 84, 88, 90, 92, 96, 100, 104, 108
IDX, CH16, AV, ZERO, X, Y, Z, LQ, LA, AR, AN = 110, 111, 112, 113, 114, 115, 116, 117, 118, 119, 120
WA, XA, BR, BW, OO, QG32, GD4 = 121, 122, 123, 124, 125, 126, 127
S_B, S_WV, S_X0 = 3, 4, 5
SRD_P, SRD_TAB, SRD_REC, SRD_OUT, SRD_A, SRD_B, SRD_C = 8, 12, 16, 20, 24, 28, 32
S_MASK = 36
S_RND, S_SAFE, S_TOT, S_NT, S_QN, S_RN, S_MORE, S_SPIN = 54, 55, 56, 57, 58, 59, 60, 61
S_M = 62
S_TMP = 64
S_L2E = 72
S_PUB = 73
SPIN_MAX = 400000

X_ = os.environ.get('X', '').split(',')
PRIO = [int(x) for x in os.environ.get('PRIO', '3,1').split(',') if x]
def mf(T, a, b, c):
    if 'nomfma' in X_: return
    e(f'v_mfma_f32_32x32x16_bf16 v[{T}:{T+15}], v[{a}:{a+3}], v[{b}:{b+3}], v[{c}:{c+15}]')
def mf8(T):
    if 'nomfma' in X_: return
    e(f'v_mfma_f32_32x32x8_bf16 v[{T}:{T+15}], v[{AX}:{AX+1}], v[{BX}:{BX+1}], v[{T}:{T+15}]')
BUILD_AX = f'v_lshlrev_b64 v[{AX}:{AX+1}], v{CH16}, v[{AV}:{AV+1}]'
def ld(g, off):
    if 'nogather' in X_: return 's_nop 0\ns_nop 0'
    return f'buffer_load_dwordx4 v[{g}:{g+3}], v[{IDX}:{IDX+1}], s[{SRD_P}:{SRD_P+3}], 0 idxen offen' + (f' offset:{off}' if off else '')
def load_c():
    e(f'v_add_u32_sdwa v{Y}, v{X}, v{LQ} {SDW} src0_sel:WORD_0 src1_sel:DWORD')
    for i in range(4):
        e(f'ds_read_b128 v[{C+4*i}:{C+4*i+3}], v{Y} offset:{QS}')
def exps(T, a, b):
    if 'noexp' in X_: return
    for i in range(a, b):
        e(f'v_exp_f32 v{E+i}, v{T+i}')
def p2(r):
    return f'v[{r}:{r+1}]'
def pk_phase(T, first, safe):
    if 'nopk' in X_: return
    if safe:
        for i in range(8):
            e(f'v_pk_add_f32 {p2(E+2*i)}, {p2(E+2*i)}, 1.0 op_sel_hi:[1,0]')
        for i in range(16):
            e(f'v_rcp_f32 v{E+i}, v{E+i}')
        for gd in range(4):
            for s in range(2):
                if first and gd == 0:
                    e(f'v_pk_mul_f32 {p2(N+2*s)}, {p2(T+2*s)}, {p2(E+2*s)}')
                else:
                    e(f'v_pk_fma_f32 {p2(N+2*s)}, {p2(T+4*gd+2*s)}, {p2(E+4*gd+2*s)}, {p2(N+2*s)}')
        return
    for gd in range(4):
        if first and gd == 0:
            for s in range(2):
                e(f'v_pk_add_f32 {p2(D+2*s)}, {p2(E+2*s)}, 1.0 op_sel_hi:[1,0]')
            continue
        for s in range(2):
            ns = (T+2*s) if (first and gd == 1) else (N+2*s)
            e(f'v_pk_fma_f32 {p2(TMP+2*s)}, {p2(ns)}, {p2(E+4*gd+2*s)}, {p2(ns)}')
        for s in range(2):
            e(f'v_pk_fma_f32 {p2(N+2*s)}, {p2(T+4*gd+2*s)}, {p2(D+2*s)}, {p2(TMP+2*s)}')
        for s in range(2):
            e(f'v_pk_fma_f32 {p2(D+2*s)}, {p2(D+2*s)}, {p2(E+4*gd+2*s)}, {p2(D+2*s)}')

def capture(fn, *a):
    n0 = len(out)
    fn(*a)
    r = [x.strip() for x in out[n0:]]
    del out[n0:]
    return r

def weave(main, fillers, start=0, step=2):
    fillers = list(fillers)
    for i, m in enumerate(main):
        e(m)
        if i >= start and (i - start) % step == 0 and fillers:
            e(fillers.pop(0))
    for f in fillers:
        e(f)

NCOVER = int(os.environ.get('NCOVER', '12'))
WSTEP = int(os.environ.get('WSTEP', '2'))
def msection(Tn, Gn, Tc, extra):
    mf(Tn, Gn, BS0, C)
    exps(Tc, 0, 3)
    mf(Tn, Gn+4, BS1, Tn)
    exps(Tc, 3, 6)
    mf8(Tn)
    exps(Tc, 6, 8)
    for x in extra: e(x)
    exps(Tc, 8, NCOVER)

def main_loop(safe):
    L = 'L_safe' if safe else 'L_fast'
    M = f's[{S_M}:{S_M+1}]'
    e('.p2align 6')
    e(f'{L}_loop:')
    msection(T1, G1, T0, [BUILD_AX, f'v_cmp_gt_i32 vcc, 0, v{X}', f'v_add_u32 v{AN}, 4, v{AN}'])
    e(ld(G1, 0))
    flush = f"""s_mov_b64 exec, {M}
    s_cbranch_execz {L}_nf
    ds_write_b128 v{Z}, v[{ACC}:{ACC+3}] offset:{PART}
    v_add_u32_e64 v{Z}, v{Y}, v{LA}
    ds_read_b128 v[{ACC}:{ACC+3}], v{Z} offset:{PART}
{L}_nf:
    s_mov_b64 exec, vcc
    s_cbranch_execz {L}_nc
    """ + '\n'.join(capture(load_c)) + f"""
{L}_nc:
    s_mov_b64 exec, -1
    s_mov_b64 {M}, vcc"""
    weave(capture(exps, T0, NCOVER, 16), [ld(G1+4, 64), flush], 1, 2)
    fl = [f'ds_read_u16 v{IDX}, v{AR} offset:64', f'ds_read_u16 v{AV}, v{AR} offset:50', f'ds_read_b32 v{X}, v{AN} offset:{NTAB+4}']
    weave(capture(pk_phase, T0, True, safe), fl, 1, WSTEP)
    e(f's_sub_u32 s{S_NT}, s{S_NT}, 1')
    e('s_waitcnt vmcnt(2) lgkmcnt(1)')
    msection(T0, G0, T1, [BUILD_AX])
    e(ld(G0, 0))
    weave(capture(exps, T1, NCOVER, 16), [ld(G0+4, 64)], 1, 2)
    fl = [f'ds_read_u16 v{IDX}, v{AR} offset:80', f'ds_read_u16 v{AV}, v{AR} offset:66']
    if 'iter' in X_ and not safe:
        fl += [('s_memrealtime' if 'iterrt' in X_ else 's_memtime') + ' s[98:99]', f's_mov_b32 m0, s{S_NT}\ns_nop 0']
    if PRIO and not safe:
        fl += [f's_cmp_eq_u32 s{S_NT}, {PRIO[0]}\ns_cbranch_scc0 {L}_p1\ns_setprio 2\n{L}_p1:\ns_cmp_eq_u32 s{S_NT}, {PRIO[1]}\ns_cbranch_scc0 {L}_p2\ns_setprio 1\n{L}_p2:']
    weave(capture(pk_phase, T1, False, safe), fl, 1, WSTEP)
    if not safe:
        for i in range(4):
            e(f'v_rcp_f32 v{TMP+i}, v{D+i}')
        e(f'v_pk_fma_f32 {p2(DS)}, {p2(D)}, {p2(D+2)}, {p2(DS)}')
    e(f'v_add_u32_e64 v{AR}, 32, v{AR}')
    e(f's_cmp_lg_u32 s{S_NT}, 0')
    e('s_waitcnt vmcnt(2) lgkmcnt(0)')
    if 'iter' in X_ and not safe:
        e('s_movreld_b32 s84, s98\ns_nop 0')
    for s in range(2):
        if safe:
            e(f'v_pk_add_f32 {p2(ACC+2*s)}, {p2(N+2*s)}, {p2(ACC+2*s)}')
        else:
            e(f'v_pk_fma_f32 {p2(ACC+2*s)}, {p2(N+2*s)}, {p2(TMP+2*s)}, {p2(ACC+2*s)}')
    e(f's_cbranch_scc1 {L}_loop')
    e(f'ds_write_b128 v{Z}, v[{ACC}:{ACC+3}] offset:{PART}')

RLF = os.environ.get('RLF', 'sc1')
def srd(r): return f's[{r}:{r+3}]'
def scan64(dst, src):
    e(f"""
    s_nop 1
    v_add_u32_dpp v{dst}, v{src}, v{src} row_shr:1 row_mask:0xf bank_mask:0xf bound_ctrl:0
    """)
    for d in ('row_shr:2', 'row_shr:4', 'row_shr:8'):
        e('s_nop 1')
        e(f'v_add_u32_dpp v{dst}, v{dst}, v{dst} {d} row_mask:0xf bank_mask:0xf bound_ctrl:0')
    e(f"""
    s_nop 1
    v_add_u32_dpp v{dst}, v{dst}, v{dst} row_bcast:15 row_mask:0xa bank_mask:0xf
    s_nop 1
    v_add_u32_dpp v{dst}, v{dst}, v{dst} row_bcast:31 row_mask:0xc bank_mask:0xf
    """)

def ovf_scan():
    for i in range(4): e(f'v_add_u32 v{44+i}, {2*INC}, v{52+i}')
    for i in range(4): e(f'v_lshrrev_b32 v{44+i}, 15, v{44+i}')
    for i in range(4): e(f'v_sub_u32 v{44+i}, v{44+i}, 12 clamp')
    e("""
    v_add_u32 v48, v44, v45
    v_add_u32 v49, v48, v46
    v_add_u32 v50, v49, v47
    """)
    scan64(61, 50)
    e("""
    v_sub_u32 v56, v61, v50
    v_add_u32 v57, v56, v44
    v_add_u32 v58, v56, v48
    v_add_u32 v59, v56, v49
    """)

TSH = int(os.environ.get('TSH', '0'))
W3 = QG32
def phase1():
    NE, NP = 5, 4
    A, B, Cc = SRD_A, SRD_B, SRD_C
    w3load = f'buffer_load_dwordx2 v[{W3}:{W3+1}], v{OO}, {srd(SRD_OUT)}, s49 offen'
    recsrd = f"""s_add_u32 s{SRD_REC}, s{SRD_P}, {WS_REC}
    s_addc_u32 s{SRD_REC+1}, s{SRD_P+1}, 0"""
    e(f"""
    @INIT
    s_cmp_ge_u32 s2, 256
    s_cbranch_scc1 L_k2_end
    v_readfirstlane_b32 s{S_WV}, v0
    s_load_dwordx2 s[{SRD_P}:{SRD_P+1}], s[0:1], 64
    s_load_dwordx2 s[{SRD_OUT}:{SRD_OUT+1}], s[0:1], 32
    s_and_b32 s{S_B}, s2, 7
    s_lshl_b32 s{S_B}, s{S_B}, 5
    s_lshr_b32 s{S_TMP}, s2, 3
    s_add_u32 s{S_B}, s{S_B}, s{S_TMP}
    s_sub_u32 s{S_B}, 255, s{S_B}
    s_mul_i32 s{S_X0}, s{S_B}, {NB*128}
    s_lshr_b32 s{S_WV}, s{S_WV}, 6
    s_mov_b32 s{A+3}, 0x20000
    s_mov_b32 s{B+3}, 0x20000
    s_mov_b32 s{Cc+3}, 0x20000
    s_mov_b32 s{SRD_P+3}, 0x20000
    s_mov_b32 s{SRD_TAB+2}, {(256*256)<<TSH}
    s_mov_b32 s{SRD_TAB+3}, 0x20000
    s_mov_b32 s{SRD_REC+2}, {G*REC_STRIDE}
    s_mov_b32 s{SRD_REC+3}, 0x20000
    s_mov_b32 s{SRD_OUT+2}, {129*128}
    s_mov_b32 s{SRD_OUT+3}, 0x20000
    s_movk_i32 s49, 16384
    v_and_b32 v{OO}, 15, v0
    v_lshlrev_b32 v{OO}, 3, v{OO}
    s_cmp_lt_u32 s{S_WV}, 4
    s_cbranch_scc1 L_p
    s_cmp_ge_u32 s{S_WV}, 14
    s_cbranch_scc1 L_aux
    v_subrev_u32 v9, 256, v0
    v_lshlrev_b32 v1, 4, v9
    v_lshlrev_b32 v25, 2, v9
    v_mov_b32 v24, 0
    s_cmp_lt_u32 s{S_B}, {G}
    s_cbranch_scc1 L_edge
    s_load_dwordx2 s[{B}:{B+1}], s[0:1], 56
    s_mov_b32 s{B+2}, 128
    s_sub_u32 s41, 255, s{S_B}
    s_lshl_b32 s40, s41, {14+TSH}
    s_add_u32 s42, s40, {8192<<TSH}
    v_lshrrev_b32 v10, {7-TSH}, v1
    v_and_b32 v11, {(128>>TSH)-1}, v1
    v_lshl_add_u32 v10, v10, 7, v11
    s_lshl_b32 s41, s41, 3
    s_add_u32 s41, s41, s{S_WV}
    s_sub_u32 s41, s41, 4
    s_lshl_b32 s41, s41, 2
    v_mov_b32 v4, 0
    v_mov_b32 v5, 0
    v_mov_b32 v6, 0
    v_mov_b32 v7, 0
    v_mov_b32 v8, 1
    s_waitcnt lgkmcnt(0)
    s_add_u32 s{SRD_TAB}, s{SRD_P}, {WS_TAB}
    s_addc_u32 s{SRD_TAB+1}, s{SRD_P+1}, 0
    s_cmp_ge_u32 s{S_WV}, 12
    s_cbranch_scc1 L_clear1
    buffer_store_dwordx4 v[4:7], v10, {srd(SRD_TAB)}, s40 offen sc1
    buffer_store_dwordx4 v[4:7], v10, {srd(SRD_TAB)}, s42 offen sc1
    s_waitcnt vmcnt(0)
    @STAMP2 clrdrained
    s_mov_b64 exec, 1
    buffer_store_dword v8, v4, {srd(B)}, s41 offen sc1
    s_mov_b64 exec, -1
L_clear1:
    {w3load}
    ds_write_b32 v25, v24 offset:{CNT1}
    {recsrd}
    s_waitcnt lgkmcnt(0)
    s_barrier
    s_barrier
    s_waitcnt vmcnt(0)
    s_branch L_common
L_edge:
    s_load_dwordx2 s[{A}:{A+1}], s[0:1], 24
    s_load_dwordx2 s[{B}:{B+1}], s[0:1], 16
    s_load_dwordx2 s[{Cc}:{Cc+1}], s[0:1], 8
    s_mov_b32 s{A+2}, {EDGES*4}
    s_mov_b32 s{B+2}, {EDGES*4}
    s_mov_b32 s{Cc+2}, {EDGES*2}
    s_mul_i32 s40, s{S_B}, {CH*4}
    s_add_u32 s41, s40, {2560*4}
    s_mul_i32 s42, s{S_B}, {CH*2}
    s_add_u32 s43, s42, {2560*2}
    v_lshlrev_b32 v2, 3, v9
    v_lshlrev_b32 v3, 1, v9
    s_waitcnt lgkmcnt(0)
    buffer_load_dwordx4 v[4:7], v1, {srd(A)}, s40 offen
    buffer_load_dword v8, v25, {srd(A)}, s41 offen
    buffer_load_dwordx4 v[12:15], v1, {srd(B)}, s40 offen
    buffer_load_dwordx2 v[20:21], v2, {srd(Cc)}, s42 offen
    buffer_load_dword v16, v25, {srd(B)}, s41 offen
    buffer_load_ushort v22, v3, {srd(Cc)}, s43 offen
    {w3load}
    ds_write_b32 v25, v24 offset:{CNT1}
    {recsrd}
    s_mul_i32 s40, s{S_B}, {REC_STRIDE}
    s_add_u32 s41, s40, {80*128}
    s_add_u32 s42, s40, {160*128}
    s_add_u32 s43, s40, {240*128}
    s_mov_b32 s45, {-NB*4 & 0xffffffff}
    s_mov_b32 s46, 0xffff0000
    s_mov_b32 s47, {48<<13}
    s_mov_b32 s48, {CELL}
    v_mov_b32 v3, {INC}
    v_lshrrev_b32 v26, 3, v9           ; cell
    v_and_b32 v27, 0x70, v1            ; 16*k
    v_mul_u32_u24 v62, {CS}, v26
    v_add3_u32 v62, v62, v27, s48
    v_bfe_u32 v27, v9, 2, 1
    v_mul_u32_u24 v27, {0 if 'fullline' in X_ else 12*INC}, v27
    v_lshlrev_b32 v26, 2, v26
    s_waitcnt lgkmcnt(0)
    s_barrier
    @STAMP bar1
    s_waitcnt vmcnt(5)
    """)
    R = range(NE)
    for i in R: e(f'v_mul_u32_u24 v{28+i}, 42800, v{4+i}')
    for i in R: e(f'v_lshrrev_b32 v{44+i}, 21, v{28+i}')
    for i in R:
        e(f'v_lshlrev_b32 v{28+i}, 2, v{44+i}')
        e(f'ds_add_rtn_u32 v{36+i}, v{28+i}, v3 offset:{CNT1}')
    for i in R: e(f'v_lshl_add_u32 v{4+i}, v{4+i}, 2, 4')
    for i in R: e(f'v_mad_i32_i24 v{4+i}, v{44+i}, s45, v{4+i}')
    e('s_waitcnt vmcnt(0)')
    e('@STAMP allloaded')
    for i in R:
        a = 20 + i//2
        if i % 2 == 0:
            e(f'v_lshl_or_b32 v{12+i}, v{a}, 16, v{12+i}')
        else:
            e(f'v_and_or_b32 v{12+i}, v{a}, s46, v{12+i}')
    for i in R:
        e(f's_waitcnt lgkmcnt({NE-1-i+2*i})')
        e(f'v_min_u32 v{44+i}, s47, v{36+i}')
        e(f'v_bfe_u32 v{52+i}, v{44+i}, 13, 2')
        e(f'v_lshrrev_b32 v{44+i}, 13, v{44+i}')
        e(f'v_mad_u32_u24 v{44+i}, v{28+i}, {CS//16}, v{44+i}')
        e(f'v_lshl_add_u32 v{44+i}, v{44+i}, 2, s48')
        e(f'ds_write_b32 v{44+i}, v{12+i}')
        e(f'v_mad_i32_i24 v{52+i}, v{52+i}, -3, v{44+i}')
        e(f'ds_write_b8 v{52+i}, v{4+i} offset:12')
    e(f"""
    v_max3_u32 v2, v36, v37, v38
    v_max3_u32 v2, v2, v39, v40
    v_cmp_le_u32 s[50:51], s47, v2
    s_waitcnt lgkmcnt(0)
    s_barrier
    @STAMP bar2p
    """)
    for p in range(NP):
        e(f'ds_read_b32 v{48+p}, v26 offset:{CNT1 + p*320}')
        e(f'ds_read_b128 v[{64+4*p}:{67+4*p}], v62 offset:{p*80*CS}')
    for p in range(NP):
        if p == NP-1:
            e(f's_cmp_ge_u32 s{S_WV}, 6')
            e('s_cbranch_scc1 L_copied')
        e(f's_waitcnt lgkmcnt({2*(NP-1-p)})')
        e(f'v_cmp_lt_u32 vcc, v27, v{48+p}')
        e('s_and_b64 exec, exec, vcc')
        e(f's_cbranch_execz L_c{p}')
        e(f'buffer_store_dwordx4 v[{64+4*p}:{67+4*p}], v1, {srd(SRD_REC)}, s{40+p} offen sc1')
        e(f'L_c{p}:')
        e('s_mov_b64 exec, -1')
    e(f"""
L_copied:
    s_cmp_eq_u64 s[50:51], 0
    s_cbranch_scc0 L_overflow
    """)

def phase1_tail():
    NE = 5
    A, B, Cc = SRD_A, SRD_B, SRD_C
    w3load = f'buffer_load_dwordx2 v[{W3}:{W3+1}], v{OO}, {srd(SRD_OUT)}, s49 offen'
    recsrd = f"""s_add_u32 s{SRD_REC}, s{SRD_P}, {WS_REC}
    s_addc_u32 s{SRD_REC+1}, s{SRD_P+1}, 0"""
    e(f"""
L_p:
    s_load_dwordx2 s[{A}:{A+1}], s[0:1], 0
    s_add_u32 s40, s{S_X0}, {(NB+1)*128}
    s_min_u32 s{A+2}, s40, {NODES*128}
    s_movk_i32 s41, 4096
    s_movk_i32 s42, 8192
    s_movk_i32 s43, 12288
    s_add_u32 s44, s{S_X0}, 4096
    v_lshlrev_b32 v1, 4, v0
    s_waitcnt lgkmcnt(0)
    buffer_load_dwordx4 v[40:43], v1, {srd(A)}, s{S_X0} offen
    buffer_load_dwordx4 v[44:47], v1, {srd(A)}, s44 offen
    buffer_load_dwordx4 v[24:27], v1, {srd(SRD_OUT)}, 0 offen
    buffer_load_dwordx4 v[28:31], v1, {srd(SRD_OUT)}, s41 offen
    buffer_load_dwordx4 v[32:35], v1, {srd(SRD_OUT)}, s42 offen
    {w3load}
    buffer_load_dwordx4 v[36:39], v1, {srd(SRD_OUT)}, s43 offen
    {recsrd}
    v_lshrrev_b32 v2, 3, v0
    v_and_b32 v3, 0x70, v1
    v_mul_u32_u24 v4, 192, v2
    v_add_u32 v4, v4, v3
    v_mul_u32_u24 v5, 144, v2
    v_add_u32 v5, v5, v3
    v_add_u32 v5, {XS}, v5
    v_bfe_u32 v6, v0, 5, 1             ; h
    v_bfe_u32 v7, v0, 2, 2             ; r
    v_lshl_add_u32 v8, v6, 3, v7
    v_mul_u32_u24 v8, 192, v8          ; (8h + r)*192
    v_bfe_u32 v9, v0, 4, 1
    v_and_b32 v10, 3, v0               ; c
    v_lshl_add_u32 v11, v9, 2, v10     ; gamma
    s_lshr_b32 s45, s{S_WV}, 1         ; which
    s_and_b32 s46, s{S_WV}, 1
    s_sub_u32 s47, 4, s45
    v_lshlrev_b32 v11, s47, v11
    s_mul_i32 s47, s45, {64*192}
    v_add3_u32 v8, v8, v11, s47
    s_mul_i32 s47, s45, 56
    s_add_u32 s47, s47, 8
    v_add_u32 v12, s47, v8
    v_and_b32 v13, 31, v0
    v_mul_u32_u24 v14, 144, v13
    v_lshl_add_u32 v14, v6, 4, v14
    s_mul_i32 s47, s46, {32*144}
    s_add_u32 s47, s47, {XS}
    v_add_u32 v14, s47, v14
    s_mov_b32 s48, {NEG_LOG2E}
    s_waitcnt vmcnt(6)
    ds_write_b128 v5, v[40:43]
    s_waitcnt vmcnt(5)
    ds_write_b128 v5, v[44:47] offset:{32*144}
    """)
    for i in range(4):
        e(f's_waitcnt vmcnt({[4, 3, 2, 0][i]})')
        e(f'ds_write_b128 v4, v[{24+4*i}:{27+4*i}] offset:{W12 + 32*192*i}')
    e("""
    s_waitcnt lgkmcnt(0)
    s_barrier
    """)
    def step_reads(s_):
        e(f'ds_read_b128 v[{16+12*s_}:{19+12*s_}], v14 offset:{32*s_}')
        for t_ in range(2):
            for h in range(2):
                r = 20 + 12*s_ + 4*t_ + 2*h
                e(f'ds_read_b64_tr_b16 v[{r}:{r+1}], v{8 if t_ == 0 else 12} offset:{W12 + (16*s_ + 4*h)*192}')
    for s_ in range(3): step_reads(s_)
    for s_ in range(4):
        e(f's_waitcnt lgkmcnt({[10, 10, 5, 0][s_]})')
        for t_ in range(2):
            d = 64 + 16*t_
            e(f'v_mfma_f32_32x32x16_bf16 v[{d}:{d+15}], v[{16+12*s_}:{19+12*s_}], v[{20+12*s_+4*t_}:{23+12*s_+4*t_}], ' + ('0' if s_ == 0 else f'v[{d}:{d+15}]'))
        if s_ == 0: step_reads(3)
    e(f"""
    s_cmp_eq_u32 s45, 0
    s_cbranch_scc0 L_q
    s_add_u32 s40, s{S_X0}, {NB*128}
    s_min_u32 s{SRD_P+2}, s40, {NODES*128}
    s_lshl_b32 s46, s46, 12
    s_add_u32 s46, s46, s{S_X0}
    v_lshlrev_b32 v2, 6, v9
    v_lshl_add_u32 v2, v10, 4, v2
    v_lshl_add_u32 v2, v7, 2, v2
    v_lshl_add_u32 v2, v6, 9, v2       ; + 4h rows
    s_nop 3
    """)
    for v in range(16):
        e(f'v_mul_f32 v{64+v}, s48, v{64+v}')
        e(f'v_mul_f32 v{80+v}, s48, v{80+v}')
        e(f'v_cvt_pk_bf16_f32 v{64+v}, v{64+v}, v{80+v}')
        e(f'buffer_store_dword v{64+v}, v2, {srd(SRD_P)}, s46 offen offset:{(8*(v//4) + v%4)*128} sc1')
    e(f"""
    s_branch L_third
L_q:
    s_lshl_b32 s46, s46, 13
    v_lshlrev_b32 v2, 2, v13
    v_lshl_add_u32 v2, v6, 10, v2
    v_add_u32 v2, s46, v2
    s_nop 7
    """)
    for v in range(16):
        e(f'v_mul_f32 v{64+v}, s48, v{64+v}')
        e(f'v_mul_f32 v{80+v}, s48, v{80+v}')
        off = QS + (8*(v//4) + v%4)*256
        e(f'ds_write_b32 v2, v{64+v} offset:{off}')
        e(f'ds_write_b32 v2, v{80+v} offset:{off+128}')
    e(f"""
L_third:
    v_lshlrev_b32 v2, 2, v0
    v_mul_u32_u24 v3, {CS}, v0
    v_add_u32 v3, {CELL+128}, v3
    v_lshlrev_b32 v4, 6, v0
    s_mul_i32 s40, s{S_B}, {REC_STRIDE}
    s_add_u32 s40, s40, {T3}
    s_mov_b32 s41, {24*INC}
    s_waitcnt lgkmcnt(0)
    s_barrier
    ds_read_b32 v5, v2 offset:{CNT1}
    s_waitcnt lgkmcnt(0)
    v_cmp_lt_u32 vcc, s41, v5
    s_and_b64 exec, exec, vcc
    s_cbranch_execz L_third1
    ds_read_b128 v[16:19], v3
    ds_read_b128 v[20:23], v3 offset:16
    ds_read_b128 v[24:27], v3 offset:32
    ds_read_b128 v[28:31], v3 offset:48
    s_waitcnt lgkmcnt(0)
    buffer_store_dwordx4 v[16:19], v4, {srd(SRD_REC)}, s40 offen sc1
    buffer_store_dwordx4 v[20:23], v4, {srd(SRD_REC)}, s40 offen offset:16 sc1
    buffer_store_dwordx4 v[24:27], v4, {srd(SRD_REC)}, s40 offen offset:32 sc1
    buffer_store_dwordx4 v[28:31], v4, {srd(SRD_REC)}, s40 offen offset:48 sc1
L_third1:
    s_mov_b64 exec, -1
    s_branch L_common
L_aux:
    s_load_dwordx2 s[{A}:{A+1}], s[0:1], 40
    s_load_dwordx2 s[{B}:{B+1}], s[0:1], 56
    s_mov_b32 s{A+2}, 16384
    s_mov_b32 s{B+2}, 128
    v_subrev_u32 v9, 896, v0
    v_lshlrev_b32 v1, 4, v9
    v_lshrrev_b32 v2, 3, v9
    v_mul_u32_u24 v2, 144, v2
    v_and_b32 v3, 0x70, v1
    v_add_u32 v2, v2, v3
    v_add_u32 v2, {WUS}, v2
    v_and_b32 v60, 0x3f0, v1
    v_lshlrev_b32 v53, 2, v9
    s_movk_i32 s41, 4096
    s_movk_i32 s42, 8192
    s_movk_i32 s43, 12288
    s_setprio 3
    s_waitcnt lgkmcnt(0)
    {recsrd}
    s_barrier
    {w3load}
    """)
    for i in range(8):
        e(f'buffer_load_dwordx4 v[{16+4*i}:{19+4*i}], v1, {srd(A)}, {["0", "s41", "s42", "s43"][i//2]} offen offset:{2048*(i%2)}')
    e(f"""
    s_barrier
    buffer_load_dword v52, v53, {srd(B)}, 0 offen sc1
    s_waitcnt vmcnt(1)
    """)
    for i in range(8):
        e(f'ds_write_b128 v2, v[{16+4*i}:{19+4*i}] offset:{16*144*i}')
    e(f"""
    s_cmp_eq_u32 s{S_WV}, 14
    s_cbranch_scc1 L_common
L_row:
    s_waitcnt vmcnt(0)
    ds_read_b128 v[52:55], v60 offset:{CNT1}
    s_waitcnt lgkmcnt(0)
    """)
    for i in range(4): e(f'v_lshl_add_u32 v{40+i}, v{52+i}, 1, v{52+i}')
    for i in range(4): e(f'v_lshrrev_b32 v{40+i}, 15, v{40+i}')
    e(f"""
    v_max3_u32 v6, v40, v41, v42
    v_max_u32 v6, v6, v43
    v_cmp_lt_u32 vcc, 36, v6
    s_cbranch_vccz L_row1
    """)
    ovf_scan()
    for i in range(4): e(f'v_lshl_or_b32 v{56+i}, v{40+i}, 16, v{56+i}')
    e(f"""
    s_mul_i32 s40, s{S_B}, {REC_STRIDE}
    s_add_u32 s40, s40, {TABF}
    buffer_store_dwordx4 v[56:59], v60, {srd(SRD_REC)}, s40 offen sc1
L_row1:
    """)
    for i in range(4): e(f'v_min_u32 v{40+i}, 37, v{40+i}')
    e(f"""
    v_lshl_or_b32 v40, v41, 8, v40
    v_lshl_or_b32 v42, v43, 8, v42
    v_lshl_or_b32 v40, v42, 16, v40
    v_add_u32 v52, 0x01010101, v40
    v_lshrrev_b32 v6, 2, v60
    ds_write_b32 v6, v52 offset:{GT+1024}
    ds_read_b128 v[52:55], v60 offset:{GT+1024}
    s_branch L_common
L_overflow:
    v_and_b32 v60, 0x3f0, v1
    ds_read_b128 v[52:55], v60 offset:{CNT1}
    s_waitcnt lgkmcnt(0)
    """)
    ovf_scan()
    e(f"""
    ds_write_b128 v60, v[56:59] offset:{GT}
    s_add_u32 s44, s40, {OVF - 192}
    """)
    for i in range(NE):
        e(f"""
        v_cmp_le_u32 vcc, s47, v{36+i}
        s_and_b64 exec, exec, vcc
        s_cbranch_execz L_o{i}
        ds_read_b32 v44, v{28+i} offset:{GT}
        v_lshrrev_b32 v45, 13, v{36+i}
        v_and_b32 v46, 3, v45
        s_waitcnt lgkmcnt(0)
        v_lshl_add_u32 v45, v44, 2, v45
        v_lshlrev_b32 v45, 2, v45
        v_mad_i32_i24 v46, v46, -3, v45
        buffer_store_dword v{12+i}, v45, {srd(SRD_REC)}, s44 offen sc1
        buffer_store_byte v{4+i}, v46, {srd(SRD_REC)}, s44 offen offset:12 sc1
L_o{i}:
        s_mov_b64 exec, -1""")
    e('s_branch L_common')

def k2():
    e(""".globl gather_scatter__mpnn_edge_mlp__graph_kernel
.p2align 8
.type gather_scatter__mpnn_edge_mlp__graph_kernel,@function
gather_scatter__mpnn_edge_mlp__graph_kernel:""")
    def mk(i): return f's[{S_MASK+2*i}:{S_MASK+2*i+1}]'
    phase1()
    PFPOS = int(os.environ.get('PFPOS', '0'))
    pf = f'buffer_load_dword v{E+15}, v12, s[{SRD_P}:{SRD_P+3}], 0 idxen'
    if PFPOS == 1:
        PFA = f"""s_lshr_b32 s6, s2, 3
        s_mul_i32 s6, s6, 25
        s_sub_u32 s7, 784, s6
        s_min_u32 s7, s7, 25
        s_bfm_b64 s[{S_TMP+2}:{S_TMP+3}], s7, 0
        s_mul_i32 s7, s{S_WV}, 784
        s_add_u32 s6, s6, s7
        v_add_u32 v12, s6, v46"""
        PF1 = f's_mov_b64 exec, s[{S_TMP+2}:{S_TMP+3}]\n{pf}'; PF2 = ''
    elif PFPOS == 2:
        PFA = 's_lshr_b32 s6, s2, 3\ns_mul_i32 s6, s6, 391\nv_add_u32 v12, s6, v0'
        PF1 = ''; PF2 = f's_cmp_gt_u32 s{S_WV}, 6\ns_cbranch_scc1 L_no_pf\n{pf}\nL_no_pf:'
    else:
        PFA = PF1 = PF2 = ''
    e(f"""
L_common:
    @STAMP issued
    s_load_dwordx2 s[{SRD_OUT}:{SRD_OUT+1}], s[0:1], 48
    s_load_dwordx2 s[{SRD_B}:{SRD_B+1}], s[0:1], 56
    s_mov_b32 s{SRD_B+2}, 128
    s_mov_b32 s{SRD_OUT+2}, {NODES*128}
    s_add_u32 s{SRD_TAB}, s{SRD_P}, {WS_TAB}
    s_addc_u32 s{SRD_TAB+1}, s{SRD_P+1}, 0
    s_or_b32 s{SRD_P+1}, s{SRD_P+1}, {128<<16}
    s_mov_b32 s{SRD_P+2}, {NODES}
    s_mov_b32 s{S_RND}, 0
    s_mov_b32 s{S_SAFE}, 0
    s_mov_b32 s{S_PUB}, 15
    s_mov_b32 s{S_L2E}, {NEG_LOG2E}
    v_lshlrev_b32 v1, 4, v0            ; 16 t
    v_and_b32 v{LQ}, 0xf0, v1
    v_and_b32 v{LA}, 0x3f00, v1
    v_and_b32 v{CH16}, 0x30, v1
    v_mov_b32 v{DS}, 0
    v_mov_b32 v{DS+1}, 0
    v_mov_b32 v{ZERO}, 0
    v_lshrrev_b32 v32, 1, v0
    v_and_b32 v34, 12, v32             ; 4*gD
    v_xor_b32 v32, v32, v0
    v_and_b32 v32, 16, v32
    v_cmp_eq_u32 vcc, 0, v32
    v_and_b32 v33, 16, v1
    v_mov_b32 v41, 0x3f80
    v_lshlrev_b32 v33, v33, v41
    v_bfe_u32 v41, v0, 1, 3
    v_or_b32 v41, v41, v32
    v_cndmask_b32 v{W3}, 0, v{W3}, vcc
    v_cndmask_b32 v{W3+1}, 0, v{W3+1}, vcc
    """)
    for d in range(8):
        e(f'v_cmp_eq_u32 {mk(d)}, {d}, v41')
    for d in range(8):
        e(f'v_cndmask_b32 v{BS0+d}, 0, v33, {mk(d)}')
    e(f"""
    v_lshlrev_b32 v36, 16, v{W3}
    v_and_b32 v37, 0xffff0000, v{W3}
    v_lshlrev_b32 v38, 16, v{W3+1}
    v_and_b32 v39, 0xffff0000, v{W3+1}
    v_mul_f32 v36, s{S_L2E}, v36
    v_mul_f32 v37, s{S_L2E}, v37
    v_mul_f32 v38, s{S_L2E}, v38
    v_mul_f32 v39, s{S_L2E}, v39
    v_cvt_pk_bf16_f32 v{BX}, v36, v37
    v_cvt_pk_bf16_f32 v{BX+1}, v38, v39
    s_and_b32 s{S_TMP}, s{S_WV}, 3     ; mt
    s_lshr_b32 s{S_TMP+1}, s{S_WV}, 2  ; nt
    v_bfe_u32 v35, v0, 4, 2            ; kq
    v_bfe_u32 v{WA}, v0, 2, 2
    v_lshl_add_u32 v{WA}, v35, 3, v{WA}
    v_mul_u32_u24 v{WA}, 144, v{WA}
    v_lshrrev_b32 v36, 1, v{CH16}
    s_lshl_b32 s6, s{S_TMP}, 5
    s_add_u32 s6, s6, {WUS}
    v_add3_u32 v{WA}, v{WA}, v36, s6
    v_and_b32 v36, 0x30, v0            ; 16*kq
    v_mad_u32_u24 v{XA}, v{LQ}, 9, v36
    s_mul_i32 s6, s{S_TMP+1}, {16*144}
    s_add_u32 s6, s6, {XS}
    v_add_u32 v{XA}, s6, v{XA}
    s_mul_i32 s7, s{S_TMP+1}, 2176
    s_add_u32 s7, s7, {AGGB}
    v_mad_u32_u24 v{BR}, v36, 17, v{LQ}
    v_add_u32 v{BR}, s7, v{BR}         ; 272*kq + 16*(l&15)
    v_lshrrev_b32 v14, 5, v{LQ}
    v_mul_u32_u24 v{BW}, 272, v14
    v_and_b32 v14, 8, v{OO}
    s_lshl_b32 s6, s{S_TMP}, 6
    s_add_u32 s7, s7, s6
    v_add3_u32 v{BW}, v{BW}, v14, s7
    v_add_u32 v{BW}, v{BW}, v36        ; (j>>1)*272 + 16*(n&15) + 8*(j&1)
    v_lshlrev_b32 v{OO}, 3, v{LQ}
    v_lshl_add_u32 v{OO}, v35, 3, v{OO}
    v_bfe_u32 v14, v0, 2, 1
    v_and_b32 v15, 32, v0
    v_lshl_add_u32 v{QG32}, v14, 6, v15
    v_mov_b32 v{GD4}, v34
    s_mov_b32 s{S_SPIN}, 0
    s_waitcnt lgkmcnt(0)
    ds_write_b32 v{ZERO}, v{ZERO} offset:{FLAG}
L_round:
    ds_read_b128 v[4:7], v1 offset:{QS}
    v_mov_b32 v36, 0
    v_mov_b32 v37, 0
    v_mov_b32 v38, 0
    v_mov_b32 v39, 0
    v_and_b32 v33, 0xfc, v0
    ds_write_b32 v33, v36
    ds_write_b128 v1, v[36:39] offset:{PART}
    ds_write_b128 v1, v[36:39] offset:{PART+16384}
    v_lshrrev_b32 v2, 2, v0            ; g
    v_lshlrev_b32 v14, {8+TSH}, v2
    v_lshrrev_b32 v48, {7-TSH}, v{LQ}
    v_and_b32 v49, {(128>>TSH)-1}, v{LQ}
    v_lshl_add_u32 v48, v48, 7, v49
    v_mul_u32_u24 v2, {REC_STRIDE}, v2
    v_and_b32 v3, 3, v0
    v_mad_u32_u24 v13, v3, 3, 1
    s_lshl_b32 s6, s{S_B}, 7
    v_add3_u32 v35, v2, v{CH16}, s6
    s_lshl_b32 s6, s{S_B}, 6
    s_add_u32 s6, s6, {T3-128}
    v_add3_u32 v32, v2, v{CH16}, s6
    v_mov_b32 v34, 0x7ffffff0
    v_and_b32 v46, 63, v0
    {PFA}
    v_lshlrev_b32 v47, 2, v46
    v_lshrrev_b32 v57, 6, v{LA}        ; 4n
    v_and_b32 v58, 15, v0              ; j
    v_and_b32 v61, 12, v57             ; 4*qd
    v_mov_b32 v3, 1
    s_movk_i32 s{S_TMP}, 0xfc
    s_waitcnt lgkmcnt(3)
    """)
    for i in range(4):
        e(f'v_exp_f32 v{8+i}, v{4+i}')
    for i in range(4):
        e(f'v_add_f32 v{8+i}, 1.0, v{8+i}')
    for i in range(4):
        e(f'v_rcp_f32 v{8+i}, v{8+i}')
    for i in range(4):
        e(f'v_mul_f32 v{8+i}, v{4+i}, v{8+i}')
    e(f"""
    s_lshl_b32 s6, s{S_B}, {8+TSH}
    s_lshr_b32 s7, s{S_B}, {7-TSH}
    s_lshl_b32 s7, s7, 7
    s_and_b32 s{S_TMP+1}, s{S_B}, {(128>>TSH)-1}
    s_add_u32 s7, s7, s{S_TMP+1}
    s_add_u32 s{S_TMP+1}, s{S_WV}, 1
    s_cmp_eq_u32 s{S_TMP+1}, s{S_PUB}
    s_waitcnt vmcnt(0) lgkmcnt(0)
    s_cbranch_scc1 L_icheck
L_iok:
    s_cmp_eq_u32 s{S_WV}, s{S_PUB}
    s_mov_b32 s{S_PUB}, -1
    @STAMP drained
    s_barrier
    @STAMP bar1q
    s_cbranch_scc0 L_poll0
    s_mov_b64 exec, 0xffff
    buffer_store_dwordx4 v[52:55], v48, {srd(SRD_TAB)}, s6 offen sc1
    s_mov_b64 exec, -1
    s_waitcnt vmcnt(0)
L_poll0:
    s_setprio 0
    s_barrier
    {'s_sleep ' + os.environ['SLP0'] if os.environ.get('SLP0') else ''}
L_poll:
    buffer_load_ubyte v15, v14, {srd(SRD_TAB)}, s7 offen sc1
    s_add_u32 s{S_SPIN}, s{S_SPIN}, 1
    s_waitcnt vmcnt(0)
    v_cmp_eq_u32 vcc, 0, v15
    s_and_b64 exec, exec, vcc
    s_cbranch_execz L_poll_done
    s_sleep {int(os.environ.get('SLP', '2'))}
    s_cmp_lt_u32 s{S_SPIN}, {SPIN_MAX}
    s_cbranch_scc1 L_poll
L_poll_done:
    s_mov_b64 exec, -1
    @STAMP tab
    s_cmp_lg_u32 s{S_RND}, 0
    s_cbranch_scc1 L_later
    v_sub_u32 v37, v15, v13
L_loads:
    v_cmp_lt_i32 {mk(0)}, 0, v37
    v_cmp_lt_i32 {mk(3)}, 12, v37
    v_cmp_lt_i32 {mk(6)}, 24, v37
    v_cndmask_b32 v38, v34, v35, {mk(0)}
    buffer_load_dwordx4 v[16:19], v38, {srd(SRD_REC)}, 0 offen {RLF}
    v_cndmask_b32 v39, v34, v35, {mk(3)}
    buffer_load_dwordx4 v[20:23], v39, {srd(SRD_REC)}, 0 offen offset:64 {RLF}
    v_cndmask_b32 v40, v34, v32, {mk(6)}
    buffer_load_dwordx4 v[24:27], v40, {srd(SRD_REC)}, 0 offen offset:128 {RLF}
    v_cmp_lt_i32 vcc, 36, v37
    v_cmp_lt_i32 {mk(1)}, 1, v37
    v_cmp_lt_i32 {mk(2)}, 2, v37
    v_cmp_lt_i32 {mk(4)}, 13, v37
    v_cmp_lt_i32 {mk(5)}, 14, v37
    v_cmp_lt_i32 {mk(7)}, 25, v37
    v_cmp_lt_i32 {mk(8)}, 26, v37
    s_mov_b64 exec, vcc
    ds_write_b32 v{ZERO}, v3 offset:240
    """)
    for k in range(3):
        if k == 2:
            e(f's_cmp_eq_u64 {mk(6)}, 0')
            e('s_cbranch_scc1 L_skipA')
        e(f's_waitcnt vmcnt({2-k})')
        if k == 0: e('@STAMP rec0')
        m = 19 + 4*k
        for i in range(3):
            e(f's_mov_b64 exec, {mk(3*k+i)}')
            e(f'v_and_b32_sdwa v{28+3*k+i}, v{m}, s{S_TMP} {SDW} src0_sel:BYTE_{i} src1_sel:DWORD')
            e(f'ds_add_rtn_u32 v{37+3*k+i}, v{28+3*k+i}, v3')
    e(f"""
L_skipA:
    {PF1}
    s_mov_b64 exec, -1
    s_mov_b32 s{S_TMP}, {RECS}
    s_waitcnt lgkmcnt(0)
    @STAMP atomics
    s_barrier
    @STAMP bar2
    ; ---- phase B
    {PF2}
    ds_read_b32 v48, v47
    ds_read_b32 v52, v57 offset:4
    s_waitcnt lgkmcnt(1)
    v_add_u32 v49, 7, v48
    v_lshrrev_b32 v49, 3, v49
    v_readlane_b32 s{S_MORE}, v48, 60
    s_nop 0
    v_add_u32_dpp v50, v49, v49 row_shr:1 row_mask:0xf bank_mask:0xf bound_ctrl:0
    """)
    for d in ('row_shr:2', 'row_shr:4', 'row_shr:8'):
        e('s_nop 1')
        e(f'v_add_u32_dpp v50, v50, v50 {d} row_mask:0xf bank_mask:0xf bound_ctrl:0')
    e(f"""
    s_nop 1
    v_add_u32_dpp v50, v50, v50 row_bcast:15 row_mask:0xa bank_mask:0xf
    s_nop 1
    v_add_u32_dpp v50, v50, v50 row_bcast:31 row_mask:0xc bank_mask:0xf
    v_sub_u32 v49, v50, v49            ; uoff
    v_readlane_b32 s{S_TOT}, v50, 50
    v_lshl_add_u32 v51, v49, 5, s{S_TMP}
    s_waitcnt lgkmcnt(0)
    ds_write_b32 v47, v51 offset:{BASE}
    ds_read_b32 v54, v57 offset:{BASE+4}
    """)
    for sl in range(6):
        e(f's_mov_b64 exec, {mk(sl)}')
        e(f'ds_read_b32 v{64+sl}, v{28+sl} offset:{BASE}')
    e(f"""
    s_mov_b64 exec, -1
    v_sub_u32 v15, 0, v52
    v_and_b32 v15, 7, v15              ; npad
    v_cvt_f32_u32 v53, v15
    s_add_u32 s6, s{S_TOT}, 3
    s_lshr_b32 s6, s6, 2               ; nT
    s_lshr_b32 s{S_QN}, s6, 4
    s_and_b32 s{S_RN}, s6, 15
    v_mul_f32 v8, v53, -v8
    v_mul_f32 v9, v53, -v9
    v_mul_f32 v10, v53, -v10
    v_mul_f32 v11, v53, -v11
    s_cmp_lt_u32 s{S_WV}, s{S_RN}
    s_addc_u32 s{S_NT}, s{S_QN}, 0
    s_min_u32 s6, s{S_WV}, s{S_RN}
    s_mul_i32 s7, s{S_WV}, s{S_QN}
    s_add_u32 s6, s6, s7
    s_lshl_b32 s7, s6, 4               ; ustart*4
    s_lshl_b32 s6, s6, 7               ; ustart*32
    s_add_u32 s6, s6, {RECS}
    s_cmp_eq_u32 s{S_RND}, 0
    s_cbranch_scc1 L_agg0
    ds_read_b128 v[4:7], v1 offset:{AGG}
    s_waitcnt lgkmcnt(0)
    v_pk_add_f32 v[8:9], v[8:9], v[4:5]
    v_pk_add_f32 v[10:11], v[10:11], v[6:7]
L_agg0:
    s_waitcnt lgkmcnt(0)
    """)
    recreg = [16, 17, 18, 20, 21, 22, 24, 25, 26]
    for sl in range(6):
        e(f's_mov_b64 exec, {mk(sl)}')
        e(f'v_lshl_add_u32 v{64+sl}, v{37+sl}, 2, v{64+sl}')
        e(f'ds_write_b32 v{64+sl}, v{recreg[sl]}')
    e(f"""
    s_cmp_eq_u64 {mk(6)}, 0
    s_cbranch_scc1 L_skipB
    """)
    for sl in range(6, 9):
        e(f's_mov_b64 exec, {mk(sl)}')
        e(f'ds_read_b32 v{64+sl}, v{28+sl} offset:{BASE}')
    e('s_waitcnt lgkmcnt(0)')
    for sl in range(6, 9):
        e(f's_mov_b64 exec, {mk(sl)}')
        e(f'v_lshl_add_u32 v{64+sl}, v{37+sl}, 2, v{64+sl}')
        e(f'ds_write_b32 v{64+sl}, v{recreg[sl]}')
    e(f"""
L_skipB:
    s_mov_b64 exec, -1
    v_mad_u32_u24 v{AR}, v{QG32}, s{S_NT}, v{GD4}
    v_mul_u32_u24 v{AN}, s{S_NT}, v61
    v_add_u32 v{AR}, s6, v{AR}
    v_add_u32 v{AN}, s7, v{AN}
    v_mov_b32 v55, {PADREC}
    s_cmp_ge_u32 s{S_WV}, 13
    s_cbranch_scc1 L_special
    ds_write_b128 v1, v[8:11] offset:{AGG}
    v_cmp_gt_u32 vcc, v15, v58
    v_add_u32 v57, v52, v58
    v_lshl_add_u32 v57, v57, 2, v54
    v_lshrrev_b32 v54, 3, v54
    v_lshl_add_u32 v54, v58, 2, v54
    v_lshlrev_b32 v58, 3, v58          ; 8j
    v_mov_b32 v59, v{LA}
    s_mov_b64 exec, vcc
    ds_write_b32 v57, v55
    s_mov_b32 exec_lo, 0x10001
    s_mov_b32 exec_hi, 0x10001
    v_or_b32 v59, 0x80000000, v59
    s_mov_b64 exec, -1
    v_cmp_gt_u32 vcc, v52, v58
    s_mov_b64 exec, vcc
    ds_write_b32 v54, v59 offset:{NTAB-RECS//8}
L_ntab:
    v_add_u32 v58, 128, v58
    v_cmp_gt_u32 vcc, v52, v58
    s_and_b64 exec, exec, vcc
    s_cbranch_execz L_tables_done
    v_add_u32 v54, 64, v54
    ds_write_b32 v54, v{LA} offset:{NTAB-RECS//8}
    s_branch L_ntab
L_special:
    s_cmp_eq_u32 s{S_WV}, 14
    s_cbranch_scc0 L_special2
    s_add_u32 s6, s{S_QN}, 1
    s_lshl_b32 s{S_TMP}, s{S_RN}, 2    ; 4 rn
    s_mul_i32 s7, s{S_TMP}, s6         ; thr
    v_cvt_f32_u32 v52, s6
    v_cvt_f32_u32 v53, s{S_QN}
    v_rcp_f32 v52, v52
    v_rcp_f32 v53, v53
    v_subrev_u32 v54, s7, v49
    v_cvt_f32_u32 v55, v49
    v_cvt_f32_u32 v54, v54
    v_add_f32 v55, 0.5, v55
    v_add_f32 v54, 0.5, v54
    v_mul_f32 v55, v55, v52
    v_mul_f32 v54, v54, v53
    v_cvt_u32_f32 v55, v55
    v_cvt_u32_f32 v54, v54
    v_cmp_gt_u32 vcc, s7, v49
    v_min_u32 v54, 64, v54
    v_add_u32 v54, s{S_TMP}, v54
    v_cndmask_b32 v54, v54, v55, vcc
    v_min_u32 v54, 64, v54
    v_add_lshl_u32 v54, v54, v46, 8    ; 256*(slot+1)
    ds_write_b32 v47, v54 offset:{ST}
    s_branch L_tables_done
L_special2:
    s_cmp_eq_u32 s{S_WV}, 15
    s_cbranch_scc0 L_tables_done
    s_lshl_b32 s6, s{S_TOT}, 5
    s_add_u32 s6, s6, {RECS}
    s_lshl_b32 s7, s{S_TOT}, 2
    v_add_u32 v57, s6, v47
    v_add_u32 v54, s7, v47
    v_mov_b32 v59, {0x80000000 + NB*256}
    s_mov_b64 exec, 0xffffff
    ds_write_b32 v57, v55
    s_mov_b64 exec, 7
    ds_write_b32 v54, v59 offset:{NTAB}
L_tables_done:
    s_mov_b64 exec, -1
    s_waitcnt lgkmcnt(0)
    s_barrier
    @STAMP bar3
    s_cmp_eq_u32 s{S_NT}, 0
    s_cbranch_scc1 L_skip_loop
    s_setprio {3 if PRIO else 0}
    ds_read_u16 v{IDX}, v{AR}
    ds_read_u16 v{N}, v{AR} offset:16
    ds_read_b32 v{X}, v{AN} offset:{NTAB}
    ds_read_u16 v{AV}, v{AR} offset:2
    ds_read_u16 v{N+1}, v{AR} offset:32
    ds_read_u16 v{N+2}, v{AR} offset:18
    s_mov_b64 s[{S_M}:{S_M+1}], 0
    s_waitcnt lgkmcnt(5)
    {ld(G0, 0)}
    {ld(G0+4, 64)}
    s_waitcnt lgkmcnt(3)
    v_mov_b32 v{IDX}, v{N}
    {ld(G1, 0)}
    {ld(G1+4, 64)}
    """)
    load_c()
    e(f"""
    ds_read_b32 v{X}, v{AN} offset:{NTAB+4}
    v_add_u32 v{Z}, v{Y}, v{LA}
    v_mov_b32 v{ACC}, 0
    v_mov_b32 v{ACC+1}, 0
    v_mov_b32 v{ACC+2}, 0
    v_mov_b32 v{ACC+3}, 0
    s_waitcnt lgkmcnt(5)
    {BUILD_AX}
    v_mov_b32 v{IDX}, v{N+1}
    v_mov_b32 v{AV}, v{N+2}
    s_waitcnt vmcnt(2) lgkmcnt(1)
    """)
    mf(T0, G0, BS0, C)
    mf(T0, G0+4, BS1, T0)
    mf8(T0)
    e(f"""
    {ld(G0, 0)}
    {ld(G0+4, 64)}
    {BUILD_AX}
    ds_read_u16 v{IDX}, v{AR} offset:48
    ds_read_u16 v{AV}, v{AR} offset:34
    s_nop 3
    s_waitcnt vmcnt(2) lgkmcnt(0)
    @STAMP pipeprologue
    s_cmp_lg_u32 s{S_SAFE}, 0
    s_cbranch_scc1 L_safe_loop
    """)
    main_loop(False)
    e(f"""
L_loop_done:
    @STAMP loopdone
    s_setprio 0
    v_lshrrev_b32 v13, 6, v{LA}        ; 4n
    v_add_u32 v1, v{LA}, v{LQ}         ; 16 t
    ds_read_b128 v[48:51], v{XA}
    ds_read_b128 v[52:55], v{XA} offset:64
    ds_read_b64_tr_b16 v[32:33], v{WA} offset:0
    ds_read_b64_tr_b16 v[34:35], v{WA} offset:576
    ds_read_b64_tr_b16 v[36:37], v{WA} offset:4608
    ds_read_b64_tr_b16 v[38:39], v{WA} offset:5184
    ds_read_b64_tr_b16 v[40:41], v{WA} offset:9216
    ds_read_b64_tr_b16 v[42:43], v{WA} offset:9792
    ds_read_b64_tr_b16 v[44:45], v{WA} offset:13824
    ds_read_b64_tr_b16 v[46:47], v{WA} offset:14400
    ds_read2_b32 v[10:11], v13 offset0:{(ST+4)//4} offset1:{(ST+8)//4}
    ds_read_b128 v[4:7], v1 offset:{AGG}
    v_add_f32 v{TMP}, v{DS}, v{DS+1}
    s_movk_i32 s6, 0x207
    s_and_b32 s{S_TMP}, s{S_WV}, 3     ; mt
    v_cmp_class_f32 vcc, v{TMP}, s6
    s_lshr_b32 s{S_TMP+1}, s{S_WV}, 2  ; nt
    v_mov_b32 v{TMP+2}, 1
    s_mov_b64 exec, vcc
    ds_write_b32 v{ZERO}, v{TMP+2} offset:{FLAG}
    s_mov_b64 exec, -1
    s_waitcnt lgkmcnt(0)
    v_mfma_f32_16x16x32_bf16 v[56:59], v[32:35], v[48:51], 0
    v_mfma_f32_16x16x32_bf16 v[56:59], v[36:39], v[52:55], v[56:59]
    v_sub_u32 v11, v11, v10            ; 256*count
    v_add_u32 v10, v{LQ}, v10
    s_movk_i32 s6, 256
    s_movk_i32 s7, 512
    v_cmp_lt_u32 s[{S_TMP+2}:{S_TMP+3}], s6, v11
    v_cmp_lt_u32 s[{S_TMP+4}:{S_TMP+5}], s7, v11
    s_cmp_eq_u32 s{S_WV}, 12
    s_cselect_b64 s[{S_TMP+6}:{S_TMP+7}], 0xffff, -1
    s_cmp_gt_u32 s{S_WV}, 12
    s_barrier
    @STAMP bar4
    ; ---- fold
    s_cbranch_scc1 L_fold_done
    s_mov_b64 exec, s[{S_TMP+6}:{S_TMP+7}]
    ds_read_b128 v[16:19], v10 offset:{PART-256}
    ds_read_b128 v[20:23], v10 offset:{PART}
    ds_read_b128 v[24:27], v10 offset:{PART+256}
    s_waitcnt lgkmcnt(2)
    v_pk_add_f32 v[4:5], v[4:5], v[16:17]
    v_pk_add_f32 v[6:7], v[6:7], v[18:19]
    s_and_b64 exec, exec, s[{S_TMP+2}:{S_TMP+3}]
    s_waitcnt lgkmcnt(1)
    v_pk_add_f32 v[4:5], v[4:5], v[20:21]
    v_pk_add_f32 v[6:7], v[6:7], v[22:23]
    s_and_b64 exec, exec, s[{S_TMP+4}:{S_TMP+5}]
    s_waitcnt lgkmcnt(0)
    v_pk_add_f32 v[4:5], v[4:5], v[24:25]
    v_pk_add_f32 v[6:7], v[6:7], v[26:27]
L_fold:
    s_add_u32 s7, s7, 256
    v_cmp_lt_u32 vcc, s7, v11
    s_and_b64 exec, exec, vcc
    s_cbranch_execz L_fold2
    ds_read_b128 v[16:19], v10 offset:{PART+512}
    v_add_u32 v10, 256, v10
    s_waitcnt lgkmcnt(0)
    v_pk_add_f32 v[4:5], v[4:5], v[16:17]
    v_pk_add_f32 v[6:7], v[6:7], v[18:19]
    s_branch L_fold
L_fold2:
    s_mov_b64 exec, s[{S_TMP+6}:{S_TMP+7}]
    s_cmp_eq_u32 s{S_MORE}, 0
    s_cbranch_scc1 L_fold4
    ds_write_b128 v1, v[4:7] offset:{AGG}
    s_branch L_fold_done
L_fold4:
    s_mov_b32 s6, {NEG_LN2}
    s_mov_b32 s7, {NEG_LN2}
    v_pk_mul_f32 v[4:5], v[4:5], s[6:7]
    v_pk_mul_f32 v[6:7], v[6:7], s[6:7]
    v_cvt_pk_bf16_f32 v4, v4, v5
    v_cvt_pk_bf16_f32 v5, v6, v7
    ds_write_b64 v{BW}, v[4:5]
L_fold_done:
    s_mov_b64 exec, -1
    s_lshl_b32 s6, s{S_TMP}, 5
    s_add_u32 s6, s6, s{S_X0}
    s_lshl_b32 s7, s{S_TMP+1}, 11
    s_add_u32 s6, s6, s7
    s_cmp_eq_u32 s{S_TMP+1}, 3
    s_cselect_b32 s{S_TMP+2}, 0x10001, -1
    s_cmp_eq_u32 s{S_MORE}, 0
    s_waitcnt lgkmcnt(0)
    s_barrier
    s_cbranch_scc1 L_final
    s_add_u32 s{S_RND}, s{S_RND}, 12
L_again:
    v_lshrrev_b32 v0, 4, v1
    s_waitcnt vmcnt(0)
    s_branch L_round
L_final:
    @STAMP bar5
    ds_read_b128 v[48:51], v{BR}
    ds_read_b128 v[52:55], v{BR} offset:1088
    s_movk_i32 s7, 0x207
    s_waitcnt lgkmcnt(1)
    v_mfma_f32_16x16x32_bf16 v[56:59], v[40:43], v[48:51], v[56:59]
    s_waitcnt lgkmcnt(0)
    v_mfma_f32_16x16x32_bf16 v[56:59], v[44:47], v[52:55], v[56:59]
    s_nop 5
    s_mov_b32 exec_lo, s{S_TMP+2}
    s_mov_b32 exec_hi, s{S_TMP+2}
    """)
    for i in range(4):
        e(f'v_mul_f32 v{4+i}, s{S_L2E}, v{56+i}')
    for i in range(4):
        e(f'v_exp_f32 v{4+i}, v{4+i}')
    e('v_cmp_class_f32 vcc, v56, s7')
    for i in range(4):
        e(f'v_add_f32 v{4+i}, 1.0, v{4+i}')
    for i in range(4):
        e(f'v_rcp_f32 v{4+i}, v{4+i}')
    for i in range(4):
        e(f'v_mul_f32 v{4+i}, v{56+i}, v{4+i}')
    e(f"""
    v_cvt_pk_bf16_f32 v4, v4, v5
    v_cvt_pk_bf16_f32 v5, v6, v7
    buffer_store_dwordx2 v[4:5], v{OO}, s[{SRD_OUT}:{SRD_OUT+3}], s6 offen
    s_cmp_lg_u32 s{S_SAFE}, 0
    s_cbranch_scc1 L_k2_end
    s_mov_b64 exec, vcc
    ds_write_b32 v{ZERO}, v{TMP+2} offset:{FLAG}
    s_mov_b64 exec, -1
    s_waitcnt lgkmcnt(0)
    s_barrier
    ds_read_b32 v2, v{ZERO} offset:{FLAG}
    s_waitcnt lgkmcnt(0)
    v_readfirstlane_b32 s6, v2
    s_cmp_eq_u32 s6, {'s6' if 'nosafe' in X_ else 0}
    s_cbranch_scc1 L_k2_end
    s_mov_b32 s{S_SAFE}, 1
    s_mov_b32 s{S_RND}, 0
    v_mov_b32 v{DS}, 0
    v_mov_b32 v{DS+1}, 0
    s_branch L_again
L_k2_end:
    @FLUSH 0
    s_endpgm
    """)
    phase1_tail()
    main_loop(True)
    e('L_skip_loop:')
    e('s_waitcnt vmcnt(0)')
    e('s_branch L_loop_done')
    e(f"""
L_icheck:
    s_mov_b32 exec_hi, 0
L_ipoll:
    v_cmp_ne_u32 vcc, 1, v52
    s_cbranch_vccz L_ipoll_done
    s_add_u32 s{S_SPIN}, s{S_SPIN}, 1
    s_cmp_lt_u32 s{S_SPIN}, {SPIN_MAX}
    s_cbranch_scc0 L_ipoll_done
    buffer_load_dword v52, v47, {srd(SRD_B)}, 0 offen sc1
    s_waitcnt vmcnt(0)
    s_branch L_ipoll
L_ipoll_done:
    s_mov_b64 exec, -1
    s_branch L_iok
L_later:
    v_cmp_eq_u32 vcc, 38, v15
    s_lshl_b32 s6, s{S_B}, 2
    s_add_u32 s6, s6, {TABF}
    v_cndmask_b32 v38, v34, v2, vcc
    buffer_load_dword v15, v38, {srd(SRD_REC)}, s6 offen sc1
    s_mul_i32 s7, s{S_RND}, 3
    s_sub_u32 s7, s7, 1
    v_add_u32 v13, s7, v13
    s_lshl_b32 s6, s{S_RND}, 4
    s_add_u32 s6, s6, {OVF - 192}
    v_add3_u32 v35, v2, v{CH16}, s6
    s_waitcnt vmcnt(0)
    v_sub_u32_sdwa v37, v15, v13 {SDW} src0_sel:WORD_1 src1_sel:DWORD
    v_and_b32 v15, 0xffff, v15
    v_lshl_add_u32 v35, v15, 4, v35
    v_mov_b32 v32, v35
    s_branch L_loads
    """)

HEADER = f"""; MPNN edge-MLP layer in one launch, one workgroup per CU.
;  phase 1: bucket a chunk of edges by destination range (LDS counting sort), P = -log2e * x @ W1 (bf16), Q = -log2e * x @ W2
;  phase 2: per bucket of {NB} nodes: sort by node, gather P rows, MFMA unpack (+a*w3+Q), silu sum, update GEMM
; @launch grid=(256,1,1) block=(1024,1,1) lds={K2_LDS}
.amdgcn_target "amdgcn-amd-amdhsa--gfx950"
.text"""

def main():
    k2()
    e('.section .rodata,"a"')
    e('.p2align 6')
    kd('gather_scatter__mpnn_edge_mlp__graph_kernel', 128, 80)
    path = sys.argv[1] if len(sys.argv) > 1 else 'gather_scatter__mpnn_edge_mlp__graph.s'
    open(path, 'w').write(HEADER + '\n' + '\n'.join(out) + '\n')

main()
```

```python
import sys, struct

NODES = 12500
EDGES = 800000
NB = 49
G = 250
CH = 3200
K1_BLOCK = 896
WS_P = 0
WS_Q = 0x200000
WS_TAB = 0x520000
WS_WUF = 0x560000
WS_REC = 0x600000
REC_STRIDE = 69632
T3 = 32768
TABF = 49152
OVF = 50176
CS = 208
INC = 10923

def f32(x):
    return '0x%08x' % struct.unpack('<I', struct.pack('<f', x))[0]
NEG_LOG2E = f32(-1.4426950408889634)
NEG_LN2 = f32(-0.6931471805599453)

out = []
def e(s=''):
    for line in s.split('\n'):
        line = line.strip()
        if not line:
            continue
        if line.startswith('@STAMP2'):
            if STAMP == 2: stamp(line[7:].strip())
            continue
        if line.startswith('@STAMP'):
            stamp(line[6:].strip()); continue
        if line.startswith('@INIT'):
            stamp_init(); continue
        if line.startswith('@FLUSH'):
            stamp('end'); stamp_rt(1); stamp_flush(int(line[6:])); continue
        if line.endswith(':') or line.startswith('.') or line.startswith(';'):
            out.append(line)
        else:
            out.append('    ' + line)

import os
STAMP = int(os.environ.get('STAMP', '0'))
nstamp = [0]
RTS = os.environ.get('RTS', '').split(',')
kidx_ = [0]
def stamp(name=''):
    if not STAMP: return
    if STAMP == 2:
        k = kidx_[0]
        for j in range(2):
            if len(RTS) > 2*k+j and RTS[2*k+j] == name:
                e(f"""s_waitcnt lgkmcnt(0)
                s_memrealtime s[98:99]
                s_waitcnt lgkmcnt(0)
                s_mov_b32 s{76+j}, s98""")
        return
    if STAMP == 4:
        if name not in ('entry', 'end', 'bar3', 'bar4', 'bar3rt', 'bar4rt', 'loopdone', 'pipeprologue'): return
        if name in ('bar3', 'bar4'): stamp(name + 'rt')
    i = nstamp[0]; nstamp[0] += 1
    e(f"""s_waitcnt lgkmcnt(0)
    {'s_memrealtime' if (STAMP == 3 or name.endswith('rt')) else 's_memtime'} s[98:99]
    s_waitcnt lgkmcnt(0)
    s_mov_b32 s{76+i}, s98""")
def stamp_rt(idx):
    if not STAMP: return
    e(f"""s_waitcnt lgkmcnt(0)
    s_memrealtime s[98:99]
    s_waitcnt lgkmcnt(0)
    s_mov_b32 s{74+idx}, s98""")
def stamp_flush(kidx):
    if not STAMP: return
    e(f"""s_mov_b64 exec, 1
    s_add_u32 s96, s96, {(32+4*kidx)<<20}
    s_addc_u32 s97, s97, 0
    s_mov_b32 s98, 0x400000
    s_mov_b32 s99, 0x20000
    s_lshl_b32 s100, s2, 4
    s_add_u32 s100, s100, s95
    s_lshl_b32 s100, s100, 7
    v_mov_b32 v2, 0""")
    for q in range(1 if STAMP == 2 else 5):
        for i in range(4):
            e(f'v_mov_b32 v{4+4*q+i}, s{74+4*q+i}')
        e(f'buffer_store_dwordx4 v[{4+4*q}:{7+4*q}], v2, s[96:99], s100 offen offset:{16*q}')
    kidx_[0] += 1
def stamp_init():
    if not STAMP: return
    nstamp[0] = 0
    e('s_memrealtime s[98:99]')
    e('s_load_dwordx2 s[96:97], s[0:1], 64')
    for i in range(75, 78 if STAMP == 2 else 94): e(f's_mov_b32 s{i}, 0')
    e('v_readfirstlane_b32 s95, v0')
    e('s_lshr_b32 s95, s95, 6')
    e('s_waitcnt lgkmcnt(0)')
    e('s_mov_b32 s74, s98')
    stamp('entry')

def vr(a, n=1):
    return f'v{a}' if n == 1 else f'v[{a}:{a+n-1}]'
def sr(a, n=1):
    return f's{a}' if n == 1 else f's[{a}:{a+n-1}]'

def scan(v):
    for d in ('row_shr:1', 'row_shr:2', 'row_shr:4', 'row_shr:8'):
        e('s_nop 1')
        e(f'v_add_u32_dpp v{v}, v{v}, v{v} {d} row_mask:0xf bank_mask:0xf bound_ctrl:0')
    e('s_nop 1')
    e(f'v_add_u32_dpp v{v}, v{v}, v{v} row_bcast:15 row_mask:0xa bank_mask:0xf')
    e('s_nop 1')
    e(f'v_add_u32_dpp v{v}, v{v}, v{v} row_bcast:31 row_mask:0xc bank_mask:0xf')

def kd(name, vgpr, sgpr):
    if STAMP: sgpr = 102
    e(f'''.amdhsa_kernel {name}
.amdhsa_next_free_vgpr {vgpr}
.amdhsa_next_free_sgpr {sgpr}
.amdhsa_accum_offset {(vgpr+3)//4*4}
.amdhsa_group_segment_fixed_size 0
.amdhsa_kernarg_size 72
.amdhsa_user_sgpr_count 2
.amdhsa_user_sgpr_kernarg_segment_ptr 1
.amdhsa_system_sgpr_workgroup_id_x 1
.amdhsa_float_denorm_mode_32 {0 if 'nodenorm' in os.environ.get('X','') else 3}
.end_amdhsa_kernel''')

SDW = 'dst_sel:DWORD dst_unused:UNUSED_PAD'
CNT, BASE, ST, FLAG = 0, 256, 512, 768
QS = 1024
NTAB = QS + 16384
AGG = NTAB + 5120
PART = AGG + 16384
RECS = PART + 32768
XS = RECS + 256*CS
WUS = XS + 64*144
AGGB = WUS + 128*144
K2_LDS = AGGB + 8704
CNT1 = NTAB
GT = NTAB + 1024
W12 = PART
CELL = RECS
PADREC = 0xffff
T0, T1, C, E, G0, G1, BS0, BS1, BX, AX, N, D, TMP, ACC, DS = 0, 16, 32, 48, 64, 72, 80, 84, 88, 90, 92, 96, 100, 104, 108
IDX, CH16, AV, ZERO, X, Y, Z, LQ, LA, AR, AN = 110, 111, 112, 113, 114, 115, 116, 117, 118, 119, 120
WA, XA, BR, BW, OO, QG32, GD4 = 121, 122, 123, 124, 125, 126, 127
S_B, S_WV, S_X0 = 3, 4, 5
SRD_P, SRD_TAB, SRD_REC, SRD_OUT, SRD_A, SRD_B, SRD_C = 8, 12, 16, 20, 24, 28, 32
S_MASK = 36
S_RND, S_SAFE, S_TOT, S_NT, S_QN, S_RN, S_MORE, S_SPIN = 54, 55, 56, 57, 58, 59, 60, 61
S_M = 62
S_TMP = 64
S_L2E = 72
S_PUB = 73
SPIN_MAX = 400000

X_ = os.environ.get('X', '').split(',')
PRIO = [int(x) for x in os.environ.get('PRIO', '3,1').split(',') if x]
def mf(T, a, b, c):
    if 'nomfma' in X_: return
    e(f'v_mfma_f32_32x32x16_bf16 v[{T}:{T+15}], v[{a}:{a+3}], v[{b}:{b+3}], v[{c}:{c+15}]')
def mf8(T):
    if 'nomfma' in X_: return
    e(f'v_mfma_f32_32x32x8_bf16 v[{T}:{T+15}], v[{AX}:{AX+1}], v[{BX}:{BX+1}], v[{T}:{T+15}]')
BUILD_AX = f'v_lshlrev_b64 v[{AX}:{AX+1}], v{CH16}, v[{AV}:{AV+1}]'
def ld(g, off):
    if 'nogather' in X_: return 's_nop 0\ns_nop 0'
    return f'buffer_load_dwordx4 v[{g}:{g+3}], v[{IDX}:{IDX+1}], s[{SRD_P}:{SRD_P+3}], 0 idxen offen' + (f' offset:{off}' if off else '')
def load_c():
    e(f'v_add_u32_sdwa v{Y}, v{X}, v{LQ} {SDW} src0_sel:WORD_0 src1_sel:DWORD')
    for i in range(4):
        e(f'ds_read_b128 v[{C+4*i}:{C+4*i+3}], v{Y} offset:{QS}')
def exps(T, a, b):
    if 'noexp' in X_: return
    for i in range(a, b):
        e(f'v_exp_f32 v{E+i}, v{T+i}')
def p2(r):
    return f'v[{r}:{r+1}]'
def pk_phase(T, first, safe):
    if 'nopk' in X_: return
    if safe:
        for i in range(8):
            e(f'v_pk_add_f32 {p2(E+2*i)}, {p2(E+2*i)}, 1.0 op_sel_hi:[1,0]')
        for i in range(16):
            e(f'v_rcp_f32 v{E+i}, v{E+i}')
        for gd in range(4):
            for s in range(2):
                if first and gd == 0:
                    e(f'v_pk_mul_f32 {p2(N+2*s)}, {p2(T+2*s)}, {p2(E+2*s)}')
                else:
                    e(f'v_pk_fma_f32 {p2(N+2*s)}, {p2(T+4*gd+2*s)}, {p2(E+4*gd+2*s)}, {p2(N+2*s)}')
        return
    for gd in range(4):
        if first and gd == 0:
            for s in range(2):
                e(f'v_pk_add_f32 {p2(D+2*s)}, {p2(E+2*s)}, 1.0 op_sel_hi:[1,0]')
            continue
        for s in range(2):
            ns = (T+2*s) if (first and gd == 1) else (N+2*s)
            e(f'v_pk_fma_f32 {p2(TMP+2*s)}, {p2(ns)}, {p2(E+4*gd+2*s)}, {p2(ns)}')
        for s in range(2):
            e(f'v_pk_fma_f32 {p2(N+2*s)}, {p2(T+4*gd+2*s)}, {p2(D+2*s)}, {p2(TMP+2*s)}')
        for s in range(2):
            e(f'v_pk_fma_f32 {p2(D+2*s)}, {p2(D+2*s)}, {p2(E+4*gd+2*s)}, {p2(D+2*s)}')

def capture(fn, *a):
    n0 = len(out)
    fn(*a)
    r = [x.strip() for x in out[n0:]]
    del out[n0:]
    return r

def weave(main, fillers, start=0, step=2):
    fillers = list(fillers)
    for i, m in enumerate(main):
        e(m)
        if i >= start and (i - start) % step == 0 and fillers:
            e(fillers.pop(0))
    for f in fillers:
        e(f)

NCOVER = int(os.environ.get('NCOVER', '12'))
WSTEP = int(os.environ.get('WSTEP', '2'))
def msection(Tn, Gn, Tc, extra):
    mf(Tn, Gn, BS0, C)
    exps(Tc, 0, 3)
    mf(Tn, Gn+4, BS1, Tn)
    exps(Tc, 3, 6)
    mf8(Tn)
    exps(Tc, 6, 8)
    for x in extra: e(x)
    exps(Tc, 8, NCOVER)

def main_loop(safe):
    L = 'L_safe' if safe else 'L_fast'
    M = f's[{S_M}:{S_M+1}]'
    e('.p2align 6')
    e(f'{L}_loop:')
    msection(T1, G1, T0, [BUILD_AX, f'v_cmp_gt_i32 vcc, 0, v{X}', f'v_add_u32 v{AN}, 4, v{AN}'])
    e(ld(G1, 0))
    flush = f"""s_mov_b64 exec, {M}
    s_cbranch_execz {L}_nf
    ds_write_b128 v{Z}, v[{ACC}:{ACC+3}] offset:{PART}
    v_add_u32_e64 v{Z}, v{Y}, v{LA}
    ds_read_b128 v[{ACC}:{ACC+3}], v{Z} offset:{PART}
{L}_nf:
    s_mov_b64 exec, vcc
    s_cbranch_execz {L}_nc
    """ + '\n'.join(capture(load_c)) + f"""
{L}_nc:
    s_mov_b64 exec, -1
    s_mov_b64 {M}, vcc"""
    weave(capture(exps, T0, NCOVER, 16), [ld(G1+4, 64), flush], 1, 2)
    fl = [f'ds_read_u16 v{IDX}, v{AR} offset:64', f'ds_read_u16 v{AV}, v{AR} offset:50', f'ds_read_b32 v{X}, v{AN} offset:{NTAB+4}']
    weave(capture(pk_phase, T0, True, safe), fl, 1, WSTEP)
    e(f's_sub_u32 s{S_NT}, s{S_NT}, 1')
    e('s_waitcnt vmcnt(2) lgkmcnt(1)')
    msection(T0, G0, T1, [BUILD_AX])
    e(ld(G0, 0))
    weave(capture(exps, T1, NCOVER, 16), [ld(G0+4, 64)], 1, 2)
    fl = [f'ds_read_u16 v{IDX}, v{AR} offset:80', f'ds_read_u16 v{AV}, v{AR} offset:66']
    if 'iter' in X_ and not safe:
        fl += [('s_memrealtime' if 'iterrt' in X_ else 's_memtime') + ' s[98:99]', f's_mov_b32 m0, s{S_NT}\ns_nop 0']
    if PRIO and not safe:
        fl += [f's_cmp_eq_u32 s{S_NT}, {PRIO[0]}\ns_cbranch_scc0 {L}_p1\ns_setprio 2\n{L}_p1:\ns_cmp_eq_u32 s{S_NT}, {PRIO[1]}\ns_cbranch_scc0 {L}_p2\ns_setprio 1\n{L}_p2:']
    weave(capture(pk_phase, T1, False, safe), fl, 1, WSTEP)
    if not safe:
        for i in range(4):
            e(f'v_rcp_f32 v{TMP+i}, v{D+i}')
        e(f'v_pk_fma_f32 {p2(DS)}, {p2(D)}, {p2(D+2)}, {p2(DS)}')
    e(f'v_add_u32_e64 v{AR}, 32, v{AR}')
    e(f's_cmp_lg_u32 s{S_NT}, 0')
    e('s_waitcnt vmcnt(2) lgkmcnt(0)')
    if 'iter' in X_ and not safe:
        e('s_movreld_b32 s84, s98\ns_nop 0')
    for s in range(2):
        if safe:
            e(f'v_pk_add_f32 {p2(ACC+2*s)}, {p2(N+2*s)}, {p2(ACC+2*s)}')
        else:
            e(f'v_pk_fma_f32 {p2(ACC+2*s)}, {p2(N+2*s)}, {p2(TMP+2*s)}, {p2(ACC+2*s)}')
    e(f's_cbranch_scc1 {L}_loop')
    e(f'ds_write_b128 v{Z}, v[{ACC}:{ACC+3}] offset:{PART}')

RLF = os.environ.get('RLF', 'sc1')
def srd(r): return f's[{r}:{r+3}]'
def scan64(dst, src):
    e(f"""
    s_nop 1
    v_add_u32_dpp v{dst}, v{src}, v{src} row_shr:1 row_mask:0xf bank_mask:0xf bound_ctrl:0
    """)
    for d in ('row_shr:2', 'row_shr:4', 'row_shr:8'):
        e('s_nop 1')
        e(f'v_add_u32_dpp v{dst}, v{dst}, v{dst} {d} row_mask:0xf bank_mask:0xf bound_ctrl:0')
    e(f"""
    s_nop 1
    v_add_u32_dpp v{dst}, v{dst}, v{dst} row_bcast:15 row_mask:0xa bank_mask:0xf
    s_nop 1
    v_add_u32_dpp v{dst}, v{dst}, v{dst} row_bcast:31 row_mask:0xc bank_mask:0xf
    """)

def ovf_scan():
    for i in range(4): e(f'v_add_u32 v{44+i}, {2*INC}, v{52+i}')
    for i in range(4): e(f'v_lshrrev_b32 v{44+i}, 15, v{44+i}')
    for i in range(4): e(f'v_sub_u32 v{44+i}, v{44+i}, 12 clamp')
    e("""
    v_add_u32 v48, v44, v45
    v_add_u32 v49, v48, v46
    v_add_u32 v50, v49, v47
    """)
    scan64(61, 50)
    e("""
    v_sub_u32 v56, v61, v50
    v_add_u32 v57, v56, v44
    v_add_u32 v58, v56, v48
    v_add_u32 v59, v56, v49
    """)

TSH = int(os.environ.get('TSH', '0'))
W3 = QG32
def phase1():
    NE, NP = 5, 4
    A, B, Cc = SRD_A, SRD_B, SRD_C
    w3load = f'buffer_load_dwordx2 v[{W3}:{W3+1}], v{OO}, {srd(SRD_OUT)}, s49 offen'
    recsrd = f"""s_add_u32 s{SRD_REC}, s{SRD_P}, {WS_REC}
    s_addc_u32 s{SRD_REC+1}, s{SRD_P+1}, 0"""
    e(f"""
    @INIT
    s_cmp_ge_u32 s2, 256
    s_cbranch_scc1 L_k2_end
    v_readfirstlane_b32 s{S_WV}, v0
    s_load_dwordx2 s[{SRD_P}:{SRD_P+1}], s[0:1], 64
    s_load_dwordx2 s[{SRD_OUT}:{SRD_OUT+1}], s[0:1], 32
    s_and_b32 s{S_B}, s2, 7
    s_lshl_b32 s{S_B}, s{S_B}, 5
    s_lshr_b32 s{S_TMP}, s2, 3
    s_add_u32 s{S_B}, s{S_B}, s{S_TMP}
    s_sub_u32 s{S_B}, 255, s{S_B}
    s_mul_i32 s{S_X0}, s{S_B}, {NB*128}
    s_lshr_b32 s{S_WV}, s{S_WV}, 6
    s_mov_b32 s{A+3}, 0x20000
    s_mov_b32 s{B+3}, 0x20000
    s_mov_b32 s{Cc+3}, 0x20000
    s_mov_b32 s{SRD_P+3}, 0x20000
    s_mov_b32 s{SRD_TAB+2}, {(256*256)<<TSH}
    s_mov_b32 s{SRD_TAB+3}, 0x20000
    s_mov_b32 s{SRD_REC+2}, {G*REC_STRIDE}
    s_mov_b32 s{SRD_REC+3}, 0x20000
    s_mov_b32 s{SRD_OUT+2}, {129*128}
    s_mov_b32 s{SRD_OUT+3}, 0x20000
    s_movk_i32 s49, 16384
    v_and_b32 v{OO}, 15, v0
    v_lshlrev_b32 v{OO}, 3, v{OO}
    s_cmp_lt_u32 s{S_WV}, 4
    s_cbranch_scc1 L_p
    s_cmp_ge_u32 s{S_WV}, 14
    s_cbranch_scc1 L_aux
    v_subrev_u32 v9, 256, v0
    v_lshlrev_b32 v1, 4, v9
    v_lshlrev_b32 v25, 2, v9
    v_mov_b32 v24, 0
    s_cmp_lt_u32 s{S_B}, {G}
    s_cbranch_scc1 L_edge
    s_load_dwordx2 s[{B}:{B+1}], s[0:1], 56
    s_mov_b32 s{B+2}, 128
    s_sub_u32 s41, 255, s{S_B}
    s_lshl_b32 s40, s41, {14+TSH}
    s_add_u32 s42, s40, {8192<<TSH}
    v_lshrrev_b32 v10, {7-TSH}, v1
    v_and_b32 v11, {(128>>TSH)-1}, v1
    v_lshl_add_u32 v10, v10, 7, v11
    s_lshl_b32 s41, s41, 3
    s_add_u32 s41, s41, s{S_WV}
    s_sub_u32 s41, s41, 4
    s_lshl_b32 s41, s41, 2
    v_mov_b32 v4, 0
    v_mov_b32 v5, 0
    v_mov_b32 v6, 0
    v_mov_b32 v7, 0
    v_mov_b32 v8, 1
    s_waitcnt lgkmcnt(0)
    s_add_u32 s{SRD_TAB}, s{SRD_P}, {WS_TAB}
    s_addc_u32 s{SRD_TAB+1}, s{SRD_P+1}, 0
    s_cmp_ge_u32 s{S_WV}, 12
    s_cbranch_scc1 L_clear1
    buffer_store_dwordx4 v[4:7], v10, {srd(SRD_TAB)}, s40 offen sc1
    buffer_store_dwordx4 v[4:7], v10, {srd(SRD_TAB)}, s42 offen sc1
    s_waitcnt vmcnt(0)
    @STAMP2 clrdrained
    s_mov_b64 exec, 1
    buffer_store_dword v8, v4, {srd(B)}, s41 offen sc1
    s_mov_b64 exec, -1
L_clear1:
    {w3load}
    ds_write_b32 v25, v24 offset:{CNT1}
    {recsrd}
    s_waitcnt lgkmcnt(0)
    s_barrier
    s_barrier
    s_waitcnt vmcnt(0)
    s_branch L_common
L_edge:
    s_load_dwordx2 s[{A}:{A+1}], s[0:1], 24
    s_load_dwordx2 s[{B}:{B+1}], s[0:1], 16
    s_load_dwordx2 s[{Cc}:{Cc+1}], s[0:1], 8
    s_mov_b32 s{A+2}, {EDGES*4}
    s_mov_b32 s{B+2}, {EDGES*4}
    s_mov_b32 s{Cc+2}, {EDGES*2}
    s_mul_i32 s40, s{S_B}, {CH*4}
    s_add_u32 s41, s40, {2560*4}
    s_mul_i32 s42, s{S_B}, {CH*2}
    s_add_u32 s43, s42, {2560*2}
    v_lshlrev_b32 v2, 3, v9
    v_lshlrev_b32 v3, 1, v9
    s_waitcnt lgkmcnt(0)
    buffer_load_dwordx4 v[4:7], v1, {srd(A)}, s40 offen
    buffer_load_dword v8, v25, {srd(A)}, s41 offen
    buffer_load_dwordx4 v[12:15], v1, {srd(B)}, s40 offen
    buffer_load_dwordx2 v[20:21], v2, {srd(Cc)}, s42 offen
    buffer_load_dword v16, v25, {srd(B)}, s41 offen
    buffer_load_ushort v22, v3, {srd(Cc)}, s43 offen
    {w3load}
    ds_write_b32 v25, v24 offset:{CNT1}
    {recsrd}
    s_mul_i32 s40, s{S_B}, {REC_STRIDE}
    s_add_u32 s41, s40, {80*128}
    s_add_u32 s42, s40, {160*128}
    s_add_u32 s43, s40, {240*128}
    s_mov_b32 s45, {-NB*4 & 0xffffffff}
    s_mov_b32 s46, 0xffff0000
    s_mov_b32 s47, {48<<13}
    s_mov_b32 s48, {CELL}
    v_mov_b32 v3, {INC}
    v_lshrrev_b32 v26, 3, v9           ; cell
    v_and_b32 v27, 0x70, v1            ; 16*k
    v_mul_u32_u24 v62, {CS}, v26
    v_add3_u32 v62, v62, v27, s48
    v_bfe_u32 v27, v9, 2, 1
    v_mul_u32_u24 v27, {0 if 'fullline' in X_ else 12*INC}, v27
    v_lshlrev_b32 v26, 2, v26
    s_waitcnt lgkmcnt(0)
    s_barrier
    @STAMP bar1
    s_waitcnt vmcnt(5)
    """)
    R = range(NE)
    for i in R: e(f'v_mul_u32_u24 v{28+i}, 42800, v{4+i}')
    for i in R: e(f'v_lshrrev_b32 v{44+i}, 21, v{28+i}')
    for i in R:
        e(f'v_lshlrev_b32 v{28+i}, 2, v{44+i}')
        e(f'ds_add_rtn_u32 v{36+i}, v{28+i}, v3 offset:{CNT1}')
    for i in R: e(f'v_lshl_add_u32 v{4+i}, v{4+i}, 2, 4')
    for i in R: e(f'v_mad_i32_i24 v{4+i}, v{44+i}, s45, v{4+i}')
    e('s_waitcnt vmcnt(0)')
    e('@STAMP allloaded')
    for i in R:
        a = 20 + i//2
        if i % 2 == 0:
            e(f'v_lshl_or_b32 v{12+i}, v{a}, 16, v{12+i}')
        else:
            e(f'v_and_or_b32 v{12+i}, v{a}, s46, v{12+i}')
    for i in R:
        e(f's_waitcnt lgkmcnt({NE-1-i+2*i})')
        e(f'v_min_u32 v{44+i}, s47, v{36+i}')
        e(f'v_bfe_u32 v{52+i}, v{44+i}, 13, 2')
        e(f'v_lshrrev_b32 v{44+i}, 13, v{44+i}')
        e(f'v_mad_u32_u24 v{44+i}, v{28+i}, {CS//16}, v{44+i}')
        e(f'v_lshl_add_u32 v{44+i}, v{44+i}, 2, s48')
        e(f'ds_write_b32 v{44+i}, v{12+i}')
        e(f'v_mad_i32_i24 v{52+i}, v{52+i}, -3, v{44+i}')
        e(f'ds_write_b8 v{52+i}, v{4+i} offset:12')
    e(f"""
    v_max3_u32 v2, v36, v37, v38
    v_max3_u32 v2, v2, v39, v40
    v_cmp_le_u32 s[50:51], s47, v2
    s_waitcnt lgkmcnt(0)
    s_barrier
    @STAMP bar2p
    """)
    for p in range(NP):
        e(f'ds_read_b32 v{48+p}, v26 offset:{CNT1 + p*320}')
        e(f'ds_read_b128 v[{64+4*p}:{67+4*p}], v62 offset:{p*80*CS}')
    for p in range(NP):
        if p == NP-1:
            e(f's_cmp_ge_u32 s{S_WV}, 6')
            e('s_cbranch_scc1 L_copied')
        e(f's_waitcnt lgkmcnt({2*(NP-1-p)})')
        e(f'v_cmp_lt_u32 vcc, v27, v{48+p}')
        e('s_and_b64 exec, exec, vcc')
        e(f's_cbranch_execz L_c{p}')
        e(f'buffer_store_dwordx4 v[{64+4*p}:{67+4*p}], v1, {srd(SRD_REC)}, s{40+p} offen sc1')
        e(f'L_c{p}:')
        e('s_mov_b64 exec, -1')
    e(f"""
L_copied:
    s_cmp_eq_u64 s[50:51], 0
    s_cbranch_scc0 L_overflow
    """)

def phase1_tail():
    NE = 5
    A, B, Cc = SRD_A, SRD_B, SRD_C
    w3load = f'buffer_load_dwordx2 v[{W3}:{W3+1}], v{OO}, {srd(SRD_OUT)}, s49 offen'
    recsrd = f"""s_add_u32 s{SRD_REC}, s{SRD_P}, {WS_REC}
    s_addc_u32 s{SRD_REC+1}, s{SRD_P+1}, 0"""
    e(f"""
L_p:
    s_load_dwordx2 s[{A}:{A+1}], s[0:1], 0
    s_add_u32 s40, s{S_X0}, {(NB+1)*128}
    s_min_u32 s{A+2}, s40, {NODES*128}
    s_movk_i32 s41, 4096
    s_movk_i32 s42, 8192
    s_movk_i32 s43, 12288
    s_add_u32 s44, s{S_X0}, 4096
    v_lshlrev_b32 v1, 4, v0
    s_waitcnt lgkmcnt(0)
    buffer_load_dwordx4 v[40:43], v1, {srd(A)}, s{S_X0} offen
    buffer_load_dwordx4 v[44:47], v1, {srd(A)}, s44 offen
    buffer_load_dwordx4 v[24:27], v1, {srd(SRD_OUT)}, 0 offen
    buffer_load_dwordx4 v[28:31], v1, {srd(SRD_OUT)}, s41 offen
    buffer_load_dwordx4 v[32:35], v1, {srd(SRD_OUT)}, s42 offen
    {w3load}
    buffer_load_dwordx4 v[36:39], v1, {srd(SRD_OUT)}, s43 offen
    {recsrd}
    v_lshrrev_b32 v2, 3, v0
    v_and_b32 v3, 0x70, v1
    v_mul_u32_u24 v4, 192, v2
    v_add_u32 v4, v4, v3
    v_mul_u32_u24 v5, 144, v2
    v_add_u32 v5, v5, v3
    v_add_u32 v5, {XS}, v5
    v_bfe_u32 v6, v0, 5, 1             ; h
    v_bfe_u32 v7, v0, 2, 2             ; r
    v_lshl_add_u32 v8, v6, 3, v7
    v_mul_u32_u24 v8, 192, v8          ; (8h + r)*192
    v_bfe_u32 v9, v0, 4, 1
    v_and_b32 v10, 3, v0               ; c
    v_lshl_add_u32 v11, v9, 2, v10     ; gamma
    s_lshr_b32 s45, s{S_WV}, 1         ; which
    s_and_b32 s46, s{S_WV}, 1
    s_sub_u32 s47, 4, s45
    v_lshlrev_b32 v11, s47, v11
    s_mul_i32 s47, s45, {64*192}
    v_add3_u32 v8, v8, v11, s47
    s_mul_i32 s47, s45, 56
    s_add_u32 s47, s47, 8
    v_add_u32 v12, s47, v8
    v_and_b32 v13, 31, v0
    v_mul_u32_u24 v14, 144, v13
    v_lshl_add_u32 v14, v6, 4, v14
    s_mul_i32 s47, s46, {32*144}
    s_add_u32 s47, s47, {XS}
    v_add_u32 v14, s47, v14
    s_mov_b32 s48, {NEG_LOG2E}
    s_waitcnt vmcnt(6)
    ds_write_b128 v5, v[40:43]
    s_waitcnt vmcnt(5)
    ds_write_b128 v5, v[44:47] offset:{32*144}
    """)
    for i in range(4):
        e(f's_waitcnt vmcnt({[4, 3, 2, 0][i]})')
        e(f'ds_write_b128 v4, v[{24+4*i}:{27+4*i}] offset:{W12 + 32*192*i}')
    e("""
    s_waitcnt lgkmcnt(0)
    s_barrier
    """)
    def step_reads(s_):
        e(f'ds_read_b128 v[{16+12*s_}:{19+12*s_}], v14 offset:{32*s_}')
        for t_ in range(2):
            for h in range(2):
                r = 20 + 12*s_ + 4*t_ + 2*h
                e(f'ds_read_b64_tr_b16 v[{r}:{r+1}], v{8 if t_ == 0 else 12} offset:{W12 + (16*s_ + 4*h)*192}')
    for s_ in range(3): step_reads(s_)
    for s_ in range(4):
        e(f's_waitcnt lgkmcnt({[10, 10, 5, 0][s_]})')
        for t_ in range(2):
            d = 64 + 16*t_
            e(f'v_mfma_f32_32x32x16_bf16 v[{d}:{d+15}], v[{16+12*s_}:{19+12*s_}], v[{20+12*s_+4*t_}:{23+12*s_+4*t_}], ' + ('0' if s_ == 0 else f'v[{d}:{d+15}]'))
        if s_ == 0: step_reads(3)
    e(f"""
    s_cmp_eq_u32 s45, 0
    s_cbranch_scc0 L_q
    s_add_u32 s40, s{S_X0}, {NB*128}
    s_min_u32 s{SRD_P+2}, s40, {NODES*128}
    s_lshl_b32 s46, s46, 12
    s_add_u32 s46, s46, s{S_X0}
    v_lshlrev_b32 v2, 6, v9
    v_lshl_add_u32 v2, v10, 4, v2
    v_lshl_add_u32 v2, v7, 2, v2
    v_lshl_add_u32 v2, v6, 9, v2       ; + 4h rows
    s_nop 3
    """)
    for v in range(16):
        e(f'v_mul_f32 v{64+v}, s48, v{64+v}')
        e(f'v_mul_f32 v{80+v}, s48, v{80+v}')
        e(f'v_cvt_pk_bf16_f32 v{64+v}, v{64+v}, v{80+v}')
        e(f'buffer_store_dword v{64+v}, v2, {srd(SRD_P)}, s46 offen offset:{(8*(v//4) + v%4)*128} sc1')
    e(f"""
    s_branch L_third
L_q:
    s_lshl_b32 s46, s46, 13
    v_lshlrev_b32 v2, 2, v13
    v_lshl_add_u32 v2, v6, 10, v2
    v_add_u32 v2, s46, v2
    s_nop 7
    """)
    for v in range(16):
        e(f'v_mul_f32 v{64+v}, s48, v{64+v}')
        e(f'v_mul_f32 v{80+v}, s48, v{80+v}')
        off = QS + (8*(v//4) + v%4)*256
        e(f'ds_write_b32 v2, v{64+v} offset:{off}')
        e(f'ds_write_b32 v2, v{80+v} offset:{off+128}')
    e(f"""
L_third:
    v_lshlrev_b32 v2, 2, v0
    v_mul_u32_u24 v3, {CS}, v0
    v_add_u32 v3, {CELL+128}, v3
    v_lshlrev_b32 v4, 6, v0
    s_mul_i32 s40, s{S_B}, {REC_STRIDE}
    s_add_u32 s40, s40, {T3}
    s_mov_b32 s41, {24*INC}
    s_waitcnt lgkmcnt(0)
    s_barrier
    ds_read_b32 v5, v2 offset:{CNT1}
    s_waitcnt lgkmcnt(0)
    v_cmp_lt_u32 vcc, s41, v5
    s_and_b64 exec, exec, vcc
    s_cbranch_execz L_third1
    ds_read_b128 v[16:19], v3
    ds_read_b128 v[20:23], v3 offset:16
    ds_read_b128 v[24:27], v3 offset:32
    ds_read_b128 v[28:31], v3 offset:48
    s_waitcnt lgkmcnt(0)
    buffer_store_dwordx4 v[16:19], v4, {srd(SRD_REC)}, s40 offen sc1
    buffer_store_dwordx4 v[20:23], v4, {srd(SRD_REC)}, s40 offen offset:16 sc1
    buffer_store_dwordx4 v[24:27], v4, {srd(SRD_REC)}, s40 offen offset:32 sc1
    buffer_store_dwordx4 v[28:31], v4, {srd(SRD_REC)}, s40 offen offset:48 sc1
L_third1:
    s_mov_b64 exec, -1
    s_branch L_common
L_aux:
    s_load_dwordx2 s[{A}:{A+1}], s[0:1], 40
    s_load_dwordx2 s[{B}:{B+1}], s[0:1], 56
    s_mov_b32 s{A+2}, 16384
    s_mov_b32 s{B+2}, 128
    v_subrev_u32 v9, 896, v0
    v_lshlrev_b32 v1, 4, v9
    v_lshrrev_b32 v2, 3, v9
    v_mul_u32_u24 v2, 144, v2
    v_and_b32 v3, 0x70, v1
    v_add_u32 v2, v2, v3
    v_add_u32 v2, {WUS}, v2
    v_and_b32 v60, 0x3f0, v1
    v_lshlrev_b32 v53, 2, v9
    s_movk_i32 s41, 4096
    s_movk_i32 s42, 8192
    s_movk_i32 s43, 12288
    s_setprio 3
    s_waitcnt lgkmcnt(0)
    {recsrd}
    s_barrier
    {w3load}
    """)
    for i in range(8):
        e(f'buffer_load_dwordx4 v[{16+4*i}:{19+4*i}], v1, {srd(A)}, {["0", "s41", "s42", "s43"][i//2]} offen offset:{2048*(i%2)}')
    e(f"""
    s_barrier
    buffer_load_dword v52, v53, {srd(B)}, 0 offen sc1
    s_waitcnt vmcnt(1)
    """)
    for i in range(8):
        e(f'ds_write_b128 v2, v[{16+4*i}:{19+4*i}] offset:{16*144*i}')
    e(f"""
    s_cmp_eq_u32 s{S_WV}, 14
    s_cbranch_scc1 L_common
L_row:
    s_waitcnt vmcnt(0)
    ds_read_b128 v[52:55], v60 offset:{CNT1}
    s_waitcnt lgkmcnt(0)
    """)
    for i in range(4): e(f'v_lshl_add_u32 v{40+i}, v{52+i}, 1, v{52+i}')
    for i in range(4): e(f'v_lshrrev_b32 v{40+i}, 15, v{40+i}')
    e(f"""
    v_max3_u32 v6, v40, v41, v42
    v_max_u32 v6, v6, v43
    v_cmp_lt_u32 vcc, 36, v6
    s_cbranch_vccz L_row1
    """)
    ovf_scan()
    for i in range(4): e(f'v_lshl_or_b32 v{56+i}, v{40+i}, 16, v{56+i}')
    e(f"""
    s_mul_i32 s40, s{S_B}, {REC_STRIDE}
    s_add_u32 s40, s40, {TABF}
    buffer_store_dwordx4 v[56:59], v60, {srd(SRD_REC)}, s40 offen sc1
L_row1:
    """)
    for i in range(4): e(f'v_min_u32 v{40+i}, 37, v{40+i}')
    e(f"""
    v_lshl_or_b32 v40, v41, 8, v40
    v_lshl_or_b32 v42, v43, 8, v42
    v_lshl_or_b32 v40, v42, 16, v40
    v_add_u32 v52, 0x01010101, v40
    v_lshrrev_b32 v6, 2, v60
    ds_write_b32 v6, v52 offset:{GT+1024}
    ds_read_b128 v[52:55], v60 offset:{GT+1024}
    s_branch L_common
L_overflow:
    v_and_b32 v60, 0x3f0, v1
    ds_read_b128 v[52:55], v60 offset:{CNT1}
    s_waitcnt lgkmcnt(0)
    """)
    ovf_scan()
    e(f"""
    ds_write_b128 v60, v[56:59] offset:{GT}
    s_add_u32 s44, s40, {OVF - 192}
    """)
    for i in range(NE):
        e(f"""
        v_cmp_le_u32 vcc, s47, v{36+i}
        s_and_b64 exec, exec, vcc
        s_cbranch_execz L_o{i}
        ds_read_b32 v44, v{28+i} offset:{GT}
        v_lshrrev_b32 v45, 13, v{36+i}
        v_and_b32 v46, 3, v45
        s_waitcnt lgkmcnt(0)
        v_lshl_add_u32 v45, v44, 2, v45
        v_lshlrev_b32 v45, 2, v45
        v_mad_i32_i24 v46, v46, -3, v45
        buffer_store_dword v{12+i}, v45, {srd(SRD_REC)}, s44 offen sc1
        buffer_store_byte v{4+i}, v46, {srd(SRD_REC)}, s44 offen offset:12 sc1
L_o{i}:
        s_mov_b64 exec, -1""")
    e('s_branch L_common')

def k2():
    e(""".globl gather_scatter__mpnn_edge_mlp__graph_kernel
.p2align 8
.type gather_scatter__mpnn_edge_mlp__graph_kernel,@function
gather_scatter__mpnn_edge_mlp__graph_kernel:""")
    def mk(i): return f's[{S_MASK+2*i}:{S_MASK+2*i+1}]'
    phase1()
    SENT = ''
    if 'sent' in X_ or 'sentb' in X_:
        SENT = f'''s_mov_b64 exec, 1
L_sent:
        buffer_load_ubyte v15, v14, {srd(SRD_TAB)}, s7 offen sc1
        s_add_u32 s{S_SPIN}, s{S_SPIN}, 1
        s_waitcnt vmcnt(0)
        v_cmp_eq_u32 vcc, 0, v15
        s_cbranch_vccz L_sent_done
        s_sleep 2
        s_cmp_lt_u32 s{S_SPIN}, {SPIN_MAX}
        s_cbranch_scc1 L_sent
L_sent_done:
        s_mov_b64 exec, -1
        {'s_barrier' if 'sentb' in X_ else ''}'''
    PFPOS = int(os.environ.get('PFPOS', '0'))
    pf = f'buffer_load_dword v{E+15}, v12, s[{SRD_P}:{SRD_P+3}], 0 idxen'
    if PFPOS == 1:
        PFA = f"""s_lshr_b32 s6, s2, 3
        s_mul_i32 s6, s6, 25
        s_sub_u32 s7, 784, s6
        s_min_u32 s7, s7, 25
        s_bfm_b64 s[{S_TMP+2}:{S_TMP+3}], s7, 0
        s_mul_i32 s7, s{S_WV}, 784
        s_add_u32 s6, s6, s7
        v_add_u32 v12, s6, v46"""
        PF1 = f's_mov_b64 exec, s[{S_TMP+2}:{S_TMP+3}]\n{pf}'; PF2 = ''
    elif PFPOS == 2:
        PFA = 's_lshr_b32 s6, s2, 3\ns_mul_i32 s6, s6, 391\nv_add_u32 v12, s6, v0'
        PF1 = ''; PF2 = f's_cmp_gt_u32 s{S_WV}, 6\ns_cbranch_scc1 L_no_pf\n{pf}\nL_no_pf:'
    else:
        PFA = PF1 = PF2 = ''
    e(f"""
L_common:
    @STAMP issued
    s_load_dwordx2 s[{SRD_OUT}:{SRD_OUT+1}], s[0:1], 48
    s_load_dwordx2 s[{SRD_B}:{SRD_B+1}], s[0:1], 56
    s_mov_b32 s{SRD_B+2}, 128
    s_mov_b32 s{SRD_OUT+2}, {NODES*128}
    s_add_u32 s{SRD_TAB}, s{SRD_P}, {WS_TAB}
    s_addc_u32 s{SRD_TAB+1}, s{SRD_P+1}, 0
    s_or_b32 s{SRD_P+1}, s{SRD_P+1}, {128<<16}
    s_mov_b32 s{SRD_P+2}, {NODES}
    s_mov_b32 s{S_RND}, 0
    s_mov_b32 s{S_SAFE}, 0
    s_mov_b32 s{S_PUB}, 15
    s_mov_b32 s{S_L2E}, {NEG_LOG2E}
    v_lshlrev_b32 v1, 4, v0            ; 16 t
    v_and_b32 v{LQ}, 0xf0, v1
    v_and_b32 v{LA}, 0x3f00, v1
    v_and_b32 v{CH16}, 0x30, v1
    v_mov_b32 v{DS}, 0
    v_mov_b32 v{DS+1}, 0
    v_mov_b32 v{ZERO}, 0
    v_lshrrev_b32 v32, 1, v0
    v_and_b32 v34, 12, v32             ; 4*gD
    v_xor_b32 v32, v32, v0
    v_and_b32 v32, 16, v32
    v_cmp_eq_u32 vcc, 0, v32
    v_and_b32 v33, 16, v1
    v_mov_b32 v41, 0x3f80
    v_lshlrev_b32 v33, v33, v41
    v_bfe_u32 v41, v0, 1, 3
    v_or_b32 v41, v41, v32
    v_cndmask_b32 v{W3}, 0, v{W3}, vcc
    v_cndmask_b32 v{W3+1}, 0, v{W3+1}, vcc
    """)
    for d in range(8):
        e(f'v_cmp_eq_u32 {mk(d)}, {d}, v41')
    for d in range(8):
        e(f'v_cndmask_b32 v{BS0+d}, 0, v33, {mk(d)}')
    e(f"""
    v_lshlrev_b32 v36, 16, v{W3}
    v_and_b32 v37, 0xffff0000, v{W3}
    v_lshlrev_b32 v38, 16, v{W3+1}
    v_and_b32 v39, 0xffff0000, v{W3+1}
    v_mul_f32 v36, s{S_L2E}, v36
    v_mul_f32 v37, s{S_L2E}, v37
    v_mul_f32 v38, s{S_L2E}, v38
    v_mul_f32 v39, s{S_L2E}, v39
    v_cvt_pk_bf16_f32 v{BX}, v36, v37
    v_cvt_pk_bf16_f32 v{BX+1}, v38, v39
    s_and_b32 s{S_TMP}, s{S_WV}, 3     ; mt
    s_lshr_b32 s{S_TMP+1}, s{S_WV}, 2  ; nt
    v_bfe_u32 v35, v0, 4, 2            ; kq
    v_bfe_u32 v{WA}, v0, 2, 2
    v_lshl_add_u32 v{WA}, v35, 3, v{WA}
    v_mul_u32_u24 v{WA}, 144, v{WA}
    v_lshrrev_b32 v36, 1, v{CH16}
    s_lshl_b32 s6, s{S_TMP}, 5
    s_add_u32 s6, s6, {WUS}
    v_add3_u32 v{WA}, v{WA}, v36, s6
    v_and_b32 v36, 0x30, v0            ; 16*kq
    v_mad_u32_u24 v{XA}, v{LQ}, 9, v36
    s_mul_i32 s6, s{S_TMP+1}, {16*144}
    s_add_u32 s6, s6, {XS}
    v_add_u32 v{XA}, s6, v{XA}
    s_mul_i32 s7, s{S_TMP+1}, 2176
    s_add_u32 s7, s7, {AGGB}
    v_mad_u32_u24 v{BR}, v36, 17, v{LQ}
    v_add_u32 v{BR}, s7, v{BR}         ; 272*kq + 16*(l&15)
    v_lshrrev_b32 v14, 5, v{LQ}
    v_mul_u32_u24 v{BW}, 272, v14
    v_and_b32 v14, 8, v{OO}
    s_lshl_b32 s6, s{S_TMP}, 6
    s_add_u32 s7, s7, s6
    v_add3_u32 v{BW}, v{BW}, v14, s7
    v_add_u32 v{BW}, v{BW}, v36        ; (j>>1)*272 + 16*(n&15) + 8*(j&1)
    v_lshlrev_b32 v{OO}, 3, v{LQ}
    v_lshl_add_u32 v{OO}, v35, 3, v{OO}
    v_bfe_u32 v14, v0, 2, 1
    v_and_b32 v15, 32, v0
    v_lshl_add_u32 v{QG32}, v14, 6, v15
    v_mov_b32 v{GD4}, v34
    s_mov_b32 s{S_SPIN}, 0
    s_waitcnt lgkmcnt(0)
    ds_write_b32 v{ZERO}, v{ZERO} offset:{FLAG}
L_round:
    ds_read_b128 v[4:7], v1 offset:{QS}
    v_mov_b32 v36, 0
    v_mov_b32 v37, 0
    v_mov_b32 v38, 0
    v_mov_b32 v39, 0
    v_and_b32 v33, 0xfc, v0
    ds_write_b32 v33, v36
    ds_write_b128 v1, v[36:39] offset:{PART}
    ds_write_b128 v1, v[36:39] offset:{PART+16384}
    v_lshrrev_b32 v2, 2, v0            ; g
    v_lshlrev_b32 v14, {8+TSH}, v2
    v_lshrrev_b32 v48, {7-TSH}, v{LQ}
    v_and_b32 v49, {(128>>TSH)-1}, v{LQ}
    v_lshl_add_u32 v48, v48, 7, v49
    v_mul_u32_u24 v2, {REC_STRIDE}, v2
    v_and_b32 v3, 3, v0
    v_mad_u32_u24 v13, v3, 3, 1
    s_lshl_b32 s6, s{S_B}, 7
    v_add3_u32 v35, v2, v{CH16}, s6
    s_lshl_b32 s6, s{S_B}, 6
    s_add_u32 s6, s6, {T3-128}
    v_add3_u32 v32, v2, v{CH16}, s6
    v_mov_b32 v34, 0x7ffffff0
    v_and_b32 v46, 63, v0
    {PFA}
    v_lshlrev_b32 v47, 2, v46
    v_lshrrev_b32 v57, 6, v{LA}        ; 4n
    v_and_b32 v58, 15, v0              ; j
    v_and_b32 v61, 12, v57             ; 4*qd
    v_mov_b32 v3, 1
    s_movk_i32 s{S_TMP}, 0xfc
    s_waitcnt lgkmcnt(3)
    """)
    for i in range(4):
        e(f'v_exp_f32 v{8+i}, v{4+i}')
    for i in range(4):
        e(f'v_add_f32 v{8+i}, 1.0, v{8+i}')
    for i in range(4):
        e(f'v_rcp_f32 v{8+i}, v{8+i}')
    for i in range(4):
        e(f'v_mul_f32 v{8+i}, v{4+i}, v{8+i}')
    e(f"""
    s_lshl_b32 s6, s{S_B}, {8+TSH}
    s_lshr_b32 s7, s{S_B}, {7-TSH}
    s_lshl_b32 s7, s7, 7
    s_and_b32 s{S_TMP+1}, s{S_B}, {(128>>TSH)-1}
    s_add_u32 s7, s7, s{S_TMP+1}
    s_add_u32 s{S_TMP+1}, s{S_WV}, 1
    s_cmp_eq_u32 s{S_TMP+1}, s{S_PUB}
    s_waitcnt vmcnt(0) lgkmcnt(0)
    s_cbranch_scc1 L_icheck
L_iok:
    s_cmp_eq_u32 s{S_WV}, s{S_PUB}
    s_mov_b32 s{S_PUB}, -1
    @STAMP drained
    s_barrier
    @STAMP bar1q
    s_cbranch_scc0 L_poll0
    s_mov_b64 exec, 0xffff
    buffer_store_dwordx4 v[52:55], v48, {srd(SRD_TAB)}, s6 offen sc1
    s_mov_b64 exec, -1
    s_waitcnt vmcnt(0)
L_poll0:
    s_setprio 0
    s_barrier
    {'s_sleep ' + os.environ['SLP0'] if os.environ.get('SLP0') else ''}
    {SENT}
L_poll:
    buffer_load_ubyte v15, v14, {srd(SRD_TAB)}, s7 offen sc1
    s_add_u32 s{S_SPIN}, s{S_SPIN}, 1
    s_waitcnt vmcnt(0)
    v_cmp_eq_u32 vcc, 0, v15
    s_and_b64 exec, exec, vcc
    s_cbranch_execz L_poll_done
    s_sleep {int(os.environ.get('SLP', '2'))}
    s_cmp_lt_u32 s{S_SPIN}, {SPIN_MAX}
    s_cbranch_scc1 L_poll
L_poll_done:
    s_mov_b64 exec, -1
    {'s_barrier' if 'allfirst' in X_ else ''}
    @STAMP tab
    s_cmp_lg_u32 s{S_RND}, 0
    s_cbranch_scc1 L_later
    v_sub_u32 v37, v15, v13
L_loads:
    v_cmp_lt_i32 {mk(0)}, 0, v37
    v_cmp_lt_i32 {mk(3)}, 12, v37
    v_cmp_lt_i32 {mk(6)}, 24, v37
    v_cndmask_b32 v38, v34, v35, {mk(0)}
    buffer_load_dwordx4 v[16:19], v38, {srd(SRD_REC)}, 0 offen {RLF}
    v_cndmask_b32 v39, v34, v35, {mk(3)}
    buffer_load_dwordx4 v[20:23], v39, {srd(SRD_REC)}, 0 offen offset:64 {RLF}
    v_cndmask_b32 v40, v34, v32, {mk(6)}
    buffer_load_dwordx4 v[24:27], v40, {srd(SRD_REC)}, 0 offen offset:128 {RLF}
    v_cmp_lt_i32 vcc, 36, v37
    v_cmp_lt_i32 {mk(1)}, 1, v37
    v_cmp_lt_i32 {mk(2)}, 2, v37
    v_cmp_lt_i32 {mk(4)}, 13, v37
    v_cmp_lt_i32 {mk(5)}, 14, v37
    v_cmp_lt_i32 {mk(7)}, 25, v37
    v_cmp_lt_i32 {mk(8)}, 26, v37
    s_mov_b64 exec, vcc
    ds_write_b32 v{ZERO}, v3 offset:240
    """)
    for k in range(3):
        if k == 2:
            e(f's_cmp_eq_u64 {mk(6)}, 0')
            e('s_cbranch_scc1 L_skipA')
        e(f's_waitcnt vmcnt({2-k})')
        if k == 0: e('@STAMP rec0')
        m = 19 + 4*k
        for i in range(3):
            e(f's_mov_b64 exec, {mk(3*k+i)}')
            e(f'v_and_b32_sdwa v{28+3*k+i}, v{m}, s{S_TMP} {SDW} src0_sel:BYTE_{i} src1_sel:DWORD')
            e(f'ds_add_rtn_u32 v{37+3*k+i}, v{28+3*k+i}, v3')
    e(f"""
L_skipA:
    {PF1}
    s_mov_b64 exec, -1
    s_mov_b32 s{S_TMP}, {RECS}
    s_waitcnt lgkmcnt(0)
    @STAMP atomics
    s_barrier
    @STAMP bar2
    ; ---- phase B
    {PF2}
    ds_read_b32 v48, v47
    ds_read_b32 v52, v57 offset:4
    s_waitcnt lgkmcnt(1)
    v_add_u32 v49, 7, v48
    v_lshrrev_b32 v49, 3, v49
    v_readlane_b32 s{S_MORE}, v48, 60
    s_nop 0
    v_add_u32_dpp v50, v49, v49 row_shr:1 row_mask:0xf bank_mask:0xf bound_ctrl:0
    """)
    for d in ('row_shr:2', 'row_shr:4', 'row_shr:8'):
        e('s_nop 1')
        e(f'v_add_u32_dpp v50, v50, v50 {d} row_mask:0xf bank_mask:0xf bound_ctrl:0')
    e(f"""
    s_nop 1
    v_add_u32_dpp v50, v50, v50 row_bcast:15 row_mask:0xa bank_mask:0xf
    s_nop 1
    v_add_u32_dpp v50, v50, v50 row_bcast:31 row_mask:0xc bank_mask:0xf
    v_sub_u32 v49, v50, v49            ; uoff
    v_readlane_b32 s{S_TOT}, v50, 50
    v_lshl_add_u32 v51, v49, 5, s{S_TMP}
    s_waitcnt lgkmcnt(0)
    ds_write_b32 v47, v51 offset:{BASE}
    ds_read_b32 v54, v57 offset:{BASE+4}
    """)
    for sl in range(6):
        e(f's_mov_b64 exec, {mk(sl)}')
        e(f'ds_read_b32 v{64+sl}, v{28+sl} offset:{BASE}')
    e(f"""
    s_mov_b64 exec, -1
    v_sub_u32 v15, 0, v52
    v_and_b32 v15, 7, v15              ; npad
    v_cvt_f32_u32 v53, v15
    s_add_u32 s6, s{S_TOT}, 3
    s_lshr_b32 s6, s6, 2               ; nT
    s_lshr_b32 s{S_QN}, s6, 4
    s_and_b32 s{S_RN}, s6, 15
    v_mul_f32 v8, v53, -v8
    v_mul_f32 v9, v53, -v9
    v_mul_f32 v10, v53, -v10
    v_mul_f32 v11, v53, -v11
    s_cmp_lt_u32 s{S_WV}, s{S_RN}
    s_addc_u32 s{S_NT}, s{S_QN}, 0
    s_min_u32 s6, s{S_WV}, s{S_RN}
    s_mul_i32 s7, s{S_WV}, s{S_QN}
    s_add_u32 s6, s6, s7
    s_lshl_b32 s7, s6, 4               ; ustart*4
    s_lshl_b32 s6, s6, 7               ; ustart*32
    s_add_u32 s6, s6, {RECS}
    s_cmp_eq_u32 s{S_RND}, 0
    s_cbranch_scc1 L_agg0
    ds_read_b128 v[4:7], v1 offset:{AGG}
    s_waitcnt lgkmcnt(0)
    v_pk_add_f32 v[8:9], v[8:9], v[4:5]
    v_pk_add_f32 v[10:11], v[10:11], v[6:7]
L_agg0:
    s_waitcnt lgkmcnt(0)
    """)
    recreg = [16, 17, 18, 20, 21, 22, 24, 25, 26]
    for sl in range(6):
        e(f's_mov_b64 exec, {mk(sl)}')
        e(f'v_lshl_add_u32 v{64+sl}, v{37+sl}, 2, v{64+sl}')
        e(f'ds_write_b32 v{64+sl}, v{recreg[sl]}')
    e(f"""
    s_cmp_eq_u64 {mk(6)}, 0
    s_cbranch_scc1 L_skipB
    """)
    for sl in range(6, 9):
        e(f's_mov_b64 exec, {mk(sl)}')
        e(f'ds_read_b32 v{64+sl}, v{28+sl} offset:{BASE}')
    e('s_waitcnt lgkmcnt(0)')
    for sl in range(6, 9):
        e(f's_mov_b64 exec, {mk(sl)}')
        e(f'v_lshl_add_u32 v{64+sl}, v{37+sl}, 2, v{64+sl}')
        e(f'ds_write_b32 v{64+sl}, v{recreg[sl]}')
    e(f"""
L_skipB:
    s_mov_b64 exec, -1
    v_mad_u32_u24 v{AR}, v{QG32}, s{S_NT}, v{GD4}
    v_mul_u32_u24 v{AN}, s{S_NT}, v61
    v_add_u32 v{AR}, s6, v{AR}
    v_add_u32 v{AN}, s7, v{AN}
    v_mov_b32 v55, {PADREC}
    s_cmp_ge_u32 s{S_WV}, 13
    s_cbranch_scc1 L_special
    ds_write_b128 v1, v[8:11] offset:{AGG}
    v_cmp_gt_u32 vcc, v15, v58
    v_add_u32 v57, v52, v58
    v_lshl_add_u32 v57, v57, 2, v54
    v_lshrrev_b32 v54, 3, v54
    v_lshl_add_u32 v54, v58, 2, v54
    v_lshlrev_b32 v58, 3, v58          ; 8j
    v_mov_b32 v59, v{LA}
    s_mov_b64 exec, vcc
    ds_write_b32 v57, v55
    s_mov_b32 exec_lo, 0x10001
    s_mov_b32 exec_hi, 0x10001
    v_or_b32 v59, 0x80000000, v59
    s_mov_b64 exec, -1
    v_cmp_gt_u32 vcc, v52, v58
    s_mov_b64 exec, vcc
    ds_write_b32 v54, v59 offset:{NTAB-RECS//8}
L_ntab:
    v_add_u32 v58, 128, v58
    v_cmp_gt_u32 vcc, v52, v58
    s_and_b64 exec, exec, vcc
    s_cbranch_execz L_tables_done
    v_add_u32 v54, 64, v54
    ds_write_b32 v54, v{LA} offset:{NTAB-RECS//8}
    s_branch L_ntab
L_special:
    s_cmp_eq_u32 s{S_WV}, 14
    s_cbranch_scc0 L_special2
    s_add_u32 s6, s{S_QN}, 1
    s_lshl_b32 s{S_TMP}, s{S_RN}, 2    ; 4 rn
    s_mul_i32 s7, s{S_TMP}, s6         ; thr
    v_cvt_f32_u32 v52, s6
    v_cvt_f32_u32 v53, s{S_QN}
    v_rcp_f32 v52, v52
    v_rcp_f32 v53, v53
    v_subrev_u32 v54, s7, v49
    v_cvt_f32_u32 v55, v49
    v_cvt_f32_u32 v54, v54
    v_add_f32 v55, 0.5, v55
    v_add_f32 v54, 0.5, v54
    v_mul_f32 v55, v55, v52
    v_mul_f32 v54, v54, v53
    v_cvt_u32_f32 v55, v55
    v_cvt_u32_f32 v54, v54
    v_cmp_gt_u32 vcc, s7, v49
    v_min_u32 v54, 64, v54
    v_add_u32 v54, s{S_TMP}, v54
    v_cndmask_b32 v54, v54, v55, vcc
    v_min_u32 v54, 64, v54
    v_add_lshl_u32 v54, v54, v46, 8    ; 256*(slot+1)
    ds_write_b32 v47, v54 offset:{ST}
    s_branch L_tables_done
L_special2:
    s_cmp_eq_u32 s{S_WV}, 15
    s_cbranch_scc0 L_tables_done
    s_lshl_b32 s6, s{S_TOT}, 5
    s_add_u32 s6, s6, {RECS}
    s_lshl_b32 s7, s{S_TOT}, 2
    v_add_u32 v57, s6, v47
    v_add_u32 v54, s7, v47
    v_mov_b32 v59, {0x80000000 + NB*256}
    s_mov_b64 exec, 0xffffff
    ds_write_b32 v57, v55
    s_mov_b64 exec, 7
    ds_write_b32 v54, v59 offset:{NTAB}
L_tables_done:
    s_mov_b64 exec, -1
    s_waitcnt lgkmcnt(0)
    s_barrier
    @STAMP bar3
    s_cmp_eq_u32 s{S_NT}, 0
    s_cbranch_scc1 L_skip_loop
    s_setprio {3 if PRIO else 0}
    ds_read_u16 v{IDX}, v{AR}
    ds_read_u16 v{N}, v{AR} offset:16
    ds_read_b32 v{X}, v{AN} offset:{NTAB}
    ds_read_u16 v{AV}, v{AR} offset:2
    ds_read_u16 v{N+1}, v{AR} offset:32
    ds_read_u16 v{N+2}, v{AR} offset:18
    s_mov_b64 s[{S_M}:{S_M+1}], 0
    s_waitcnt lgkmcnt(5)
    {ld(G0, 0)}
    {ld(G0+4, 64)}
    s_waitcnt lgkmcnt(3)
    v_mov_b32 v{IDX}, v{N}
    {ld(G1, 0)}
    {ld(G1+4, 64)}
    """)
    load_c()
    e(f"""
    ds_read_b32 v{X}, v{AN} offset:{NTAB+4}
    v_add_u32 v{Z}, v{Y}, v{LA}
    v_mov_b32 v{ACC}, 0
    v_mov_b32 v{ACC+1}, 0
    v_mov_b32 v{ACC+2}, 0
    v_mov_b32 v{ACC+3}, 0
    s_waitcnt lgkmcnt(5)
    {BUILD_AX}
    v_mov_b32 v{IDX}, v{N+1}
    v_mov_b32 v{AV}, v{N+2}
    s_waitcnt vmcnt(2) lgkmcnt(1)
    """)
    mf(T0, G0, BS0, C)
    mf(T0, G0+4, BS1, T0)
    mf8(T0)
    e(f"""
    {ld(G0, 0)}
    {ld(G0+4, 64)}
    {BUILD_AX}
    ds_read_u16 v{IDX}, v{AR} offset:48
    ds_read_u16 v{AV}, v{AR} offset:34
    s_nop 3
    s_waitcnt vmcnt(2) lgkmcnt(0)
    @STAMP pipeprologue
    s_cmp_lg_u32 s{S_SAFE}, 0
    s_cbranch_scc1 L_safe_loop
    """)
    main_loop(False)
    e(f"""
L_loop_done:
    @STAMP loopdone
    s_setprio 0
    v_lshrrev_b32 v13, 6, v{LA}        ; 4n
    v_add_u32 v1, v{LA}, v{LQ}         ; 16 t
    ds_read_b128 v[48:51], v{XA}
    ds_read_b128 v[52:55], v{XA} offset:64
    ds_read_b64_tr_b16 v[32:33], v{WA} offset:0
    ds_read_b64_tr_b16 v[34:35], v{WA} offset:576
    ds_read_b64_tr_b16 v[36:37], v{WA} offset:4608
    ds_read_b64_tr_b16 v[38:39], v{WA} offset:5184
    ds_read_b64_tr_b16 v[40:41], v{WA} offset:9216
    ds_read_b64_tr_b16 v[42:43], v{WA} offset:9792
    ds_read_b64_tr_b16 v[44:45], v{WA} offset:13824
    ds_read_b64_tr_b16 v[46:47], v{WA} offset:14400
    ds_read2_b32 v[10:11], v13 offset0:{(ST+4)//4} offset1:{(ST+8)//4}
    ds_read_b128 v[4:7], v1 offset:{AGG}
    v_add_f32 v{TMP}, v{DS}, v{DS+1}
    s_movk_i32 s6, 0x207
    s_and_b32 s{S_TMP}, s{S_WV}, 3     ; mt
    v_cmp_class_f32 vcc, v{TMP}, s6
    s_lshr_b32 s{S_TMP+1}, s{S_WV}, 2  ; nt
    v_mov_b32 v{TMP+2}, 1
    s_mov_b64 exec, vcc
    ds_write_b32 v{ZERO}, v{TMP+2} offset:{FLAG}
    s_mov_b64 exec, -1
    s_waitcnt lgkmcnt(0)
    v_mfma_f32_16x16x32_bf16 v[56:59], v[32:35], v[48:51], 0
    v_mfma_f32_16x16x32_bf16 v[56:59], v[36:39], v[52:55], v[56:59]
    v_sub_u32 v11, v11, v10            ; 256*count
    v_add_u32 v10, v{LQ}, v10
    s_movk_i32 s6, 256
    s_movk_i32 s7, 512
    v_cmp_lt_u32 s[{S_TMP+2}:{S_TMP+3}], s6, v11
    v_cmp_lt_u32 s[{S_TMP+4}:{S_TMP+5}], s7, v11
    s_cmp_eq_u32 s{S_WV}, 12
    s_cselect_b64 s[{S_TMP+6}:{S_TMP+7}], 0xffff, -1
    s_cmp_gt_u32 s{S_WV}, 12
    s_barrier
    @STAMP bar4
    ; ---- fold
    s_cbranch_scc1 L_fold_done
    s_mov_b64 exec, s[{S_TMP+6}:{S_TMP+7}]
    ds_read_b128 v[16:19], v10 offset:{PART-256}
    ds_read_b128 v[20:23], v10 offset:{PART}
    ds_read_b128 v[24:27], v10 offset:{PART+256}
    s_waitcnt lgkmcnt(2)
    v_pk_add_f32 v[4:5], v[4:5], v[16:17]
    v_pk_add_f32 v[6:7], v[6:7], v[18:19]
    s_and_b64 exec, exec, s[{S_TMP+2}:{S_TMP+3}]
    s_waitcnt lgkmcnt(1)
    v_pk_add_f32 v[4:5], v[4:5], v[20:21]
    v_pk_add_f32 v[6:7], v[6:7], v[22:23]
    s_and_b64 exec, exec, s[{S_TMP+4}:{S_TMP+5}]
    s_waitcnt lgkmcnt(0)
    v_pk_add_f32 v[4:5], v[4:5], v[24:25]
    v_pk_add_f32 v[6:7], v[6:7], v[26:27]
L_fold:
    s_add_u32 s7, s7, 256
    v_cmp_lt_u32 vcc, s7, v11
    s_and_b64 exec, exec, vcc
    s_cbranch_execz L_fold2
    ds_read_b128 v[16:19], v10 offset:{PART+512}
    v_add_u32 v10, 256, v10
    s_waitcnt lgkmcnt(0)
    v_pk_add_f32 v[4:5], v[4:5], v[16:17]
    v_pk_add_f32 v[6:7], v[6:7], v[18:19]
    s_branch L_fold
L_fold2:
    s_mov_b64 exec, s[{S_TMP+6}:{S_TMP+7}]
    s_cmp_eq_u32 s{S_MORE}, 0
    s_cbranch_scc1 L_fold4
    ds_write_b128 v1, v[4:7] offset:{AGG}
    s_branch L_fold_done
L_fold4:
    s_mov_b32 s6, {NEG_LN2}
    s_mov_b32 s7, {NEG_LN2}
    v_pk_mul_f32 v[4:5], v[4:5], s[6:7]
    v_pk_mul_f32 v[6:7], v[6:7], s[6:7]
    v_cvt_pk_bf16_f32 v4, v4, v5
    v_cvt_pk_bf16_f32 v5, v6, v7
    ds_write_b64 v{BW}, v[4:5]
L_fold_done:
    s_mov_b64 exec, -1
    s_lshl_b32 s6, s{S_TMP}, 5
    s_add_u32 s6, s6, s{S_X0}
    s_lshl_b32 s7, s{S_TMP+1}, 11
    s_add_u32 s6, s6, s7
    s_cmp_eq_u32 s{S_TMP+1}, 3
    s_cselect_b32 s{S_TMP+2}, 0x10001, -1
    s_cmp_eq_u32 s{S_MORE}, 0
    s_waitcnt lgkmcnt(0)
    s_barrier
    s_cbranch_scc1 L_final
    s_add_u32 s{S_RND}, s{S_RND}, 12
L_again:
    v_lshrrev_b32 v0, 4, v1
    s_waitcnt vmcnt(0)
    s_branch L_round
L_final:
    @STAMP bar5
    ds_read_b128 v[48:51], v{BR}
    ds_read_b128 v[52:55], v{BR} offset:1088
    s_movk_i32 s7, 0x207
    s_waitcnt lgkmcnt(1)
    v_mfma_f32_16x16x32_bf16 v[56:59], v[40:43], v[48:51], v[56:59]
    s_waitcnt lgkmcnt(0)
    v_mfma_f32_16x16x32_bf16 v[56:59], v[44:47], v[52:55], v[56:59]
    s_nop 5
    s_mov_b32 exec_lo, s{S_TMP+2}
    s_mov_b32 exec_hi, s{S_TMP+2}
    """)
    for i in range(4):
        e(f'v_mul_f32 v{4+i}, s{S_L2E}, v{56+i}')
    for i in range(4):
        e(f'v_exp_f32 v{4+i}, v{4+i}')
    e('v_cmp_class_f32 vcc, v56, s7')
    for i in range(4):
        e(f'v_add_f32 v{4+i}, 1.0, v{4+i}')
    for i in range(4):
        e(f'v_rcp_f32 v{4+i}, v{4+i}')
    for i in range(4):
        e(f'v_mul_f32 v{4+i}, v{56+i}, v{4+i}')
    e(f"""
    v_cvt_pk_bf16_f32 v4, v4, v5
    v_cvt_pk_bf16_f32 v5, v6, v7
    buffer_store_dwordx2 v[4:5], v{OO}, s[{SRD_OUT}:{SRD_OUT+3}], s6 offen
    s_cmp_lg_u32 s{S_SAFE}, 0
    s_cbranch_scc1 L_k2_end
    s_mov_b64 exec, vcc
    ds_write_b32 v{ZERO}, v{TMP+2} offset:{FLAG}
    s_mov_b64 exec, -1
    s_waitcnt lgkmcnt(0)
    s_barrier
    ds_read_b32 v2, v{ZERO} offset:{FLAG}
    s_waitcnt lgkmcnt(0)
    v_readfirstlane_b32 s6, v2
    s_cmp_eq_u32 s6, {'s6' if 'nosafe' in X_ else 0}
    s_cbranch_scc1 L_k2_end
    s_mov_b32 s{S_SAFE}, 1
    s_mov_b32 s{S_RND}, 0
    v_mov_b32 v{DS}, 0
    v_mov_b32 v{DS+1}, 0
    s_branch L_again
L_k2_end:
    @FLUSH 0
    s_endpgm
    """)
    phase1_tail()
    main_loop(True)
    e('L_skip_loop:')
    e('s_waitcnt vmcnt(0)')
    e('s_branch L_loop_done')
    e(f"""
L_icheck:
    s_mov_b32 exec_hi, 0
L_ipoll:
    v_cmp_ne_u32 vcc, 1, v52
    s_cbranch_vccz L_ipoll_done
    s_add_u32 s{S_SPIN}, s{S_SPIN}, 1
    s_cmp_lt_u32 s{S_SPIN}, {SPIN_MAX}
    s_cbranch_scc0 L_ipoll_done
    buffer_load_dword v52, v47, {srd(SRD_B)}, 0 offen sc1
    s_waitcnt vmcnt(0)
    s_branch L_ipoll
L_ipoll_done:
    s_mov_b64 exec, -1
    s_branch L_iok
L_later:
    v_cmp_eq_u32 vcc, 38, v15
    s_lshl_b32 s6, s{S_B}, 2
    s_add_u32 s6, s6, {TABF}
    v_cndmask_b32 v38, v34, v2, vcc
    buffer_load_dword v15, v38, {srd(SRD_REC)}, s6 offen sc1
    s_mul_i32 s7, s{S_RND}, 3
    s_sub_u32 s7, s7, 1
    v_add_u32 v13, s7, v13
    s_lshl_b32 s6, s{S_RND}, 4
    s_add_u32 s6, s6, {OVF - 192}
    v_add3_u32 v35, v2, v{CH16}, s6
    s_waitcnt vmcnt(0)
    v_sub_u32_sdwa v37, v15, v13 {SDW} src0_sel:WORD_1 src1_sel:DWORD
    v_and_b32 v15, 0xffff, v15
    v_lshl_add_u32 v35, v15, 4, v35
    v_mov_b32 v32, v35
    s_branch L_loads
    """)

HEADER = f"""; MPNN edge-MLP layer in one launch, one workgroup per CU.
;  phase 1: bucket a chunk of edges by destination range (LDS counting sort), P = -log2e * x @ W1 (bf16), Q = -log2e * x @ W2
;  phase 2: per bucket of {NB} nodes: sort by node, gather P rows, MFMA unpack (+a*w3+Q), silu sum, update GEMM
; @launch grid=(256,1,1) block=(1024,1,1) lds={K2_LDS}
.amdgcn_target "amdgcn-amd-amdhsa--gfx950"
.text"""

def main():
    k2()
    e('.section .rodata,"a"')
    e('.p2align 6')
    kd('gather_scatter__mpnn_edge_mlp__graph_kernel', 128, 80)
    path = sys.argv[1] if len(sys.argv) > 1 else 'gather_scatter__mpnn_edge_mlp__graph.s'
    open(path, 'w').write(HEADER + '\n' + '\n'.join(out) + '\n')

main()
```

```python
import sys
def red(k, word, nwg0, nwg, nwv, op, dst, wlo=None):
    c = [f'v_mov_b32 v10, {"0x7fffffff" if op=="min" else "0x80000000"}']
    if isinstance(nwv, tuple): wlo, nwv = nwv
    else: wlo = (4 if (k == 0 and word >= 2) else 0)
    for w in range(wlo, nwv):
        for ch in range((nwg+63)//64):
            c.append(f's_mov_b32 s20, {(k*4<<20) + ((nwg0+ch*64)*16+w)*128 + 4*word}')
            c.append(f'buffer_load_dword v11, v9, s[4:7], s20 offen')
            c.append(f'v_cmp_gt_u32 vcc, {min(64, nwg-ch*64)}, v0')
            c.append('s_waitcnt vmcnt(0)')
            c.append('v_subrev_u32 v11, s8, v11')
            c.append('v_cndmask_b32 v11, v10, v11, vcc')
            c.append(f'v_{op}_i32 v10, v10, v11')
    c.append('s_nop 1')
    c.append(f'v_readlane_b32 s{dst}, v10, 0')
    for l in range(1, 64):
        c.append(f'v_readlane_b32 s21, v10, {l}')
        c.append('s_nop 1')
        c.append(f's_{op}_i32 s{dst}, s{dst}, s21')
    return '\n'.join('    '+x for x in c)
def mk(src, name, q, X=10000, k1wg=250, k1wv=7):
    s = open(src).read()
    lines = s.split('\n')
    idx = max(i for i,l in enumerate(lines) if '@launch' in l)
    lines[idx] = lines[idx].replace('@launch grid', '@launch kernel=gather_scatter__mpnn_edge_mlp__graph_kernel grid')
    lines.insert(idx+1, '; @launch kernel=spin_kernel grid=(1,1,1) block=(64,1,1) lds=0')
    s = '\n'.join(lines)
    code = f'''.globl spin_kernel
.p2align 8
.type spin_kernel,@function
spin_kernel:
    s_cmp_ge_u32 s2, 1
    s_cbranch_scc1 L_spin_end
    s_load_dwordx2 s[4:5], s[0:1], 64
    s_waitcnt lgkmcnt(0)
    s_add_u32 s4, s4, {32<<20}
    s_addc_u32 s5, s5, 0
    s_mov_b32 s6, 0x800000
    s_mov_b32 s7, 0x20000
    v_mov_b32 v1, 0
    v_lshlrev_b32 v9, 11, v0
    buffer_load_dword v4, v1, s[4:7], 0 offen
    s_waitcnt vmcnt(0)
    v_readfirstlane_b32 s8, v4
    s_nop 4
{red(0, 0, 0, k1wg, 1, 'min', 9)}
    s_add_u32 s8, s8, s9
{red(*q, 10) if q else '    s_mov_b32 s10, 0'}
    s_min_u32 s10, s10, 100000
    s_add_u32 s10, s10, {X}
L_spin:
    s_memrealtime s[12:13]
    s_waitcnt lgkmcnt(0)
    s_sub_u32 s12, s12, s8
    s_cmp_lt_u32 s12, s10
    s_cbranch_scc1 L_spin
L_spin_end:
    s_endpgm
'''
    kd = '''.p2align 6
.amdhsa_kernel spin_kernel
.amdhsa_next_free_vgpr 16
.amdhsa_next_free_sgpr 32
.amdhsa_accum_offset 16
.amdhsa_group_segment_fixed_size 0
.amdhsa_kernarg_size 72
.amdhsa_user_sgpr_count 2
.amdhsa_user_sgpr_kernarg_segment_ptr 1
.amdhsa_system_sgpr_workgroup_id_x 1
.end_amdhsa_kernel
'''
    s = s.replace('.section .rodata,"a"', code + '.section .rodata,"a"') + kd
    open(name, 'w').write(s)
if __name__ == '__main__':
    import os, subprocess
    for i, sp in enumerate(sys.argv[1:]):
        f = sp.split(':'); nm = f[0]; op = f[1] if len(f) > 1 else 'max'
        wv = (int(f[2]), int(f[3])) if len(f) > 3 else (4, 14)
        wg = (int(f[4]), int(f[5])) if len(f) > 5 else (48, 208)
        env = dict(os.environ, STAMP='2', RTS=nm)
        subprocess.check_call(['python', 'gen.py', 'dsrc.s'], env=env)
        if nm == 'F': mk('dsrc.s', f'd{i+1}.s', None, k1wg=256)
        elif nm == 'end': mk('dsrc.s', f'd{i+1}.s', (0, 1, 0, 256, (0, 4), op), k1wg=256)
        elif nm == 'start': mk('dsrc.s', f'd{i+1}.s', (0, 0, 0, 256, 16, op), k1wg=256)
        else: mk('dsrc.s', f'd{i+1}.s', (0, 2, wg[0], wg[1], wv, op), k1wg=256)
```

```python
import sys, struct

NODES = 12500
EDGES = 800000
NB = 49
G = 250
CH = 3200
K1_BLOCK = 896
WS_P = 0
WS_Q = 0x200000
WS_TAB = 0x520000
WS_WUF = 0x560000
WS_REC = 0x600000
REC_STRIDE = 69632
T3 = 32768
TABF = 49152
OVF = 50176
CS = 208
INC = 10923

def f32(x):
    return '0x%08x' % struct.unpack('<I', struct.pack('<f', x))[0]
NEG_LOG2E = f32(-1.4426950408889634)
NEG_LN2 = f32(-0.6931471805599453)

out = []
def e(s=''):
    for line in s.split('\n'):
        line = line.strip()
        if not line:
            continue
        if line.startswith('@STAMP2'):
            if STAMP == 2: stamp(line[7:].strip())
            continue
        if line.startswith('@STAMP'):
            stamp(line[6:].strip()); continue
        if line.startswith('@INIT'):
            stamp_init(); continue
        if line.startswith('@FLUSH'):
            stamp('end'); stamp_rt(1); stamp_flush(int(line[6:])); continue
        if line.endswith(':') or line.startswith('.') or line.startswith(';'):
            out.append(line)
        else:
            out.append('    ' + line)

import os
STAMP = int(os.environ.get('STAMP', '0'))
nstamp = [0]
RTS = os.environ.get('RTS', '').split(',')
kidx_ = [0]
def stamp(name=''):
    if not STAMP: return
    if STAMP == 2:
        k = kidx_[0]
        for j in range(2):
            if len(RTS) > 2*k+j and RTS[2*k+j] == name:
                e(f"""s_waitcnt lgkmcnt(0)
                s_memrealtime s[98:99]
                s_waitcnt lgkmcnt(0)
                s_mov_b32 s{76+j}, s98""")
        return
    if STAMP == 4:
        if name not in ('entry', 'end', 'bar3', 'bar4', 'bar3rt', 'bar4rt', 'loopdone', 'pipeprologue'): return
        if name in ('bar3', 'bar4'): stamp(name + 'rt')
    i = nstamp[0]; nstamp[0] += 1
    e(f"""s_waitcnt lgkmcnt(0)
    {'s_memrealtime' if (STAMP == 3 or name.endswith('rt')) else 's_memtime'} s[98:99]
    s_waitcnt lgkmcnt(0)
    s_mov_b32 s{76+i}, s98""")
def stamp_rt(idx):
    if not STAMP: return
    e(f"""s_waitcnt lgkmcnt(0)
    s_memrealtime s[98:99]
    s_waitcnt lgkmcnt(0)
    s_mov_b32 s{74+idx}, s98""")
def stamp_flush(kidx):
    if not STAMP: return
    e(f"""s_mov_b64 exec, 1
    s_add_u32 s96, s96, {(32+4*kidx)<<20}
    s_addc_u32 s97, s97, 0
    s_mov_b32 s98, 0x400000
    s_mov_b32 s99, 0x20000
    s_lshl_b32 s100, s2, 4
    s_add_u32 s100, s100, s95
    s_lshl_b32 s100, s100, 7
    v_mov_b32 v2, 0""")
    for q in range(1 if STAMP == 2 else 5):
        for i in range(4):
            e(f'v_mov_b32 v{4+4*q+i}, s{74+4*q+i}')
        e(f'buffer_store_dwordx4 v[{4+4*q}:{7+4*q}], v2, s[96:99], s100 offen offset:{16*q}')
    kidx_[0] += 1
def stamp_init():
    if not STAMP: return
    nstamp[0] = 0
    e('s_memrealtime s[98:99]')
    e('s_load_dwordx2 s[96:97], s[0:1], 64')
    for i in range(75, 78 if STAMP == 2 else 94): e(f's_mov_b32 s{i}, 0')
    e('v_readfirstlane_b32 s95, v0')
    e('s_lshr_b32 s95, s95, 6')
    e('s_waitcnt lgkmcnt(0)')
    e('s_mov_b32 s74, s98')
    stamp('entry')

def vr(a, n=1):
    return f'v{a}' if n == 1 else f'v[{a}:{a+n-1}]'
def sr(a, n=1):
    return f's{a}' if n == 1 else f's[{a}:{a+n-1}]'

def scan(v):
    for d in ('row_shr:1', 'row_shr:2', 'row_shr:4', 'row_shr:8'):
        e('s_nop 1')
        e(f'v_add_u32_dpp v{v}, v{v}, v{v} {d} row_mask:0xf bank_mask:0xf bound_ctrl:0')
    e('s_nop 1')
    e(f'v_add_u32_dpp v{v}, v{v}, v{v} row_bcast:15 row_mask:0xa bank_mask:0xf')
    e('s_nop 1')
    e(f'v_add_u32_dpp v{v}, v{v}, v{v} row_bcast:31 row_mask:0xc bank_mask:0xf')

def kd(name, vgpr, sgpr):
    if STAMP: sgpr = 102
    e(f'''.amdhsa_kernel {name}
.amdhsa_next_free_vgpr {vgpr}
.amdhsa_next_free_sgpr {sgpr}
.amdhsa_accum_offset {(vgpr+3)//4*4}
.amdhsa_group_segment_fixed_size 0
.amdhsa_kernarg_size 72
.amdhsa_user_sgpr_count 2
.amdhsa_user_sgpr_kernarg_segment_ptr 1
.amdhsa_system_sgpr_workgroup_id_x 1
.amdhsa_float_denorm_mode_32 {0 if 'nodenorm' in os.environ.get('X','') else 3}
.end_amdhsa_kernel''')

SDW = 'dst_sel:DWORD dst_unused:UNUSED_PAD'
CNT, BASE, ST, FLAG, NONCE = 0, 256, 512, 768, 776
QS = 1024
NTAB = QS + 16384
AGG = NTAB + 5120
PART = AGG + 16384
RECS = PART + 32768
XS = RECS + 256*CS
WUS = XS + 64*144
AGGB = WUS + 128*144
K2_LDS = AGGB + 8704
CNT1 = NTAB
GT = NTAB + 1024
W12 = PART
CELL = RECS
PADREC = 0xffff
T0, T1, C, E, G0, G1, BS0, BS1, BX, AX, N, D, TMP, ACC, DS = 0, 16, 32, 48, 64, 72, 80, 84, 88, 90, 92, 96, 100, 104, 108
IDX, CH16, AV, ZERO, X, Y, Z, LQ, LA, AR, AN = 110, 111, 112, 113, 114, 115, 116, 117, 118, 119, 120
WA, XA, BR, BW, OO, QG32, GD4 = 121, 122, 123, 124, 125, 126, 127
S_B, S_WV, S_X0 = 3, 4, 5
SRD_P, SRD_TAB, SRD_REC, SRD_OUT, SRD_A, SRD_B, SRD_C = 8, 12, 16, 20, 24, 28, 32
S_MASK = 36
S_RND, S_SAFE, S_TOT, S_NT, S_QN, S_RN, S_MORE, S_SPIN = 54, 55, 56, 57, 58, 59, 60, 61
S_M = 62
S_TMP = 64
S_L2E = 72
S_PUB = 73
SPIN_MAX = 400000

X_ = os.environ.get('X', '').split(',')
PRIO = [int(x) for x in os.environ.get('PRIO', '3,1').split(',') if x]
def mf(T, a, b, c):
    if 'nomfma' in X_: return
    e(f'v_mfma_f32_32x32x16_bf16 v[{T}:{T+15}], v[{a}:{a+3}], v[{b}:{b+3}], v[{c}:{c+15}]')
def mf8(T):
    if 'nomfma' in X_: return
    e(f'v_mfma_f32_32x32x8_bf16 v[{T}:{T+15}], v[{AX}:{AX+1}], v[{BX}:{BX+1}], v[{T}:{T+15}]')
BUILD_AX = f'v_lshlrev_b64 v[{AX}:{AX+1}], v{CH16}, v[{AV}:{AV+1}]'
def ld(g, off):
    if 'nogather' in X_: return 's_nop 0\ns_nop 0'
    return f'buffer_load_dwordx4 v[{g}:{g+3}], v[{IDX}:{IDX+1}], s[{SRD_P}:{SRD_P+3}], 0 idxen offen' + (f' offset:{off}' if off else '')
def load_c():
    e(f'v_add_u32_sdwa v{Y}, v{X}, v{LQ} {SDW} src0_sel:WORD_0 src1_sel:DWORD')
    for i in range(4):
        e(f'ds_read_b128 v[{C+4*i}:{C+4*i+3}], v{Y} offset:{QS}')
def exps(T, a, b):
    if 'noexp' in X_: return
    for i in range(a, b):
        e(f'v_exp_f32 v{E+i}, v{T+i}')
def p2(r):
    return f'v[{r}:{r+1}]'
def pk_phase(T, first, safe):
    if 'nopk' in X_: return
    if safe:
        for i in range(8):
            e(f'v_pk_add_f32 {p2(E+2*i)}, {p2(E+2*i)}, 1.0 op_sel_hi:[1,0]')
        for i in range(16):
            e(f'v_rcp_f32 v{E+i}, v{E+i}')
        for gd in range(4):
            for s in range(2):
                if first and gd == 0:
                    e(f'v_pk_mul_f32 {p2(N+2*s)}, {p2(T+2*s)}, {p2(E+2*s)}')
                else:
                    e(f'v_pk_fma_f32 {p2(N+2*s)}, {p2(T+4*gd+2*s)}, {p2(E+4*gd+2*s)}, {p2(N+2*s)}')
        return
    for gd in range(4):
        if first and gd == 0:
            for s in range(2):
                e(f'v_pk_add_f32 {p2(D+2*s)}, {p2(E+2*s)}, 1.0 op_sel_hi:[1,0]')
            continue
        for s in range(2):
            ns = (T+2*s) if (first and gd == 1) else (N+2*s)
            e(f'v_pk_fma_f32 {p2(TMP+2*s)}, {p2(ns)}, {p2(E+4*gd+2*s)}, {p2(ns)}')
        for s in range(2):
            e(f'v_pk_fma_f32 {p2(N+2*s)}, {p2(T+4*gd+2*s)}, {p2(D+2*s)}, {p2(TMP+2*s)}')
        for s in range(2):
            e(f'v_pk_fma_f32 {p2(D+2*s)}, {p2(D+2*s)}, {p2(E+4*gd+2*s)}, {p2(D+2*s)}')

def capture(fn, *a):
    n0 = len(out)
    fn(*a)
    r = [x.strip() for x in out[n0:]]
    del out[n0:]
    return r

def weave(main, fillers, start=0, step=2):
    fillers = list(fillers)
    for i, m in enumerate(main):
        e(m)
        if i >= start and (i - start) % step == 0 and fillers:
            e(fillers.pop(0))
    for f in fillers:
        e(f)

NCOVER = int(os.environ.get('NCOVER', '12'))
WSTEP = int(os.environ.get('WSTEP', '2'))
def msection(Tn, Gn, Tc, extra):
    mf(Tn, Gn, BS0, C)
    exps(Tc, 0, 3)
    mf(Tn, Gn+4, BS1, Tn)
    exps(Tc, 3, 6)
    mf8(Tn)
    exps(Tc, 6, 8)
    for x in extra: e(x)
    exps(Tc, 8, NCOVER)

def main_loop(safe):
    L = 'L_safe' if safe else 'L_fast'
    M = f's[{S_M}:{S_M+1}]'
    e('.p2align 6')
    e(f'{L}_loop:')
    msection(T1, G1, T0, [BUILD_AX, f'v_cmp_gt_i32 vcc, 0, v{X}', f'v_add_u32 v{AN}, 4, v{AN}'])
    e(ld(G1, 0))
    flush = f"""s_mov_b64 exec, {M}
    s_cbranch_execz {L}_nf
    ds_write_b128 v{Z}, v[{ACC}:{ACC+3}] offset:{PART}
    v_add_u32_e64 v{Z}, v{Y}, v{LA}
    ds_read_b128 v[{ACC}:{ACC+3}], v{Z} offset:{PART}
{L}_nf:
    s_mov_b64 exec, vcc
    s_cbranch_execz {L}_nc
    """ + '\n'.join(capture(load_c)) + f"""
{L}_nc:
    s_mov_b64 exec, -1
    s_mov_b64 {M}, vcc"""
    weave(capture(exps, T0, NCOVER, 16), [ld(G1+4, 64), flush], 1, 2)
    fl = [f'ds_read_u16 v{IDX}, v{AR} offset:64', f'ds_read_u16 v{AV}, v{AR} offset:50', f'ds_read_b32 v{X}, v{AN} offset:{NTAB+4}']
    weave(capture(pk_phase, T0, True, safe), fl, 1, WSTEP)
    e(f's_sub_u32 s{S_NT}, s{S_NT}, 1')
    e('s_waitcnt vmcnt(2) lgkmcnt(1)')
    msection(T0, G0, T1, [BUILD_AX])
    e(ld(G0, 0))
    weave(capture(exps, T1, NCOVER, 16), [ld(G0+4, 64)], 1, 2)
    fl = [f'ds_read_u16 v{IDX}, v{AR} offset:80', f'ds_read_u16 v{AV}, v{AR} offset:66']
    if 'iter' in X_ and not safe:
        fl += [('s_memrealtime' if 'iterrt' in X_ else 's_memtime') + ' s[98:99]', f's_mov_b32 m0, s{S_NT}\ns_nop 0']
    if PRIO and not safe:
        fl += [f's_cmp_eq_u32 s{S_NT}, {PRIO[0]}\ns_cbranch_scc0 {L}_p1\ns_setprio 2\n{L}_p1:\ns_cmp_eq_u32 s{S_NT}, {PRIO[1]}\ns_cbranch_scc0 {L}_p2\ns_setprio 1\n{L}_p2:']
    weave(capture(pk_phase, T1, False, safe), fl, 1, WSTEP)
    if not safe:
        for i in range(4):
            e(f'v_rcp_f32 v{TMP+i}, v{D+i}')
        e(f'v_pk_fma_f32 {p2(DS)}, {p2(D)}, {p2(D+2)}, {p2(DS)}')
    e(f'v_add_u32_e64 v{AR}, 32, v{AR}')
    e(f's_cmp_lg_u32 s{S_NT}, 0')
    e('s_waitcnt vmcnt(2) lgkmcnt(0)')
    if 'iter' in X_ and not safe:
        e('s_movreld_b32 s84, s98\ns_nop 0')
    for s in range(2):
        if safe:
            e(f'v_pk_add_f32 {p2(ACC+2*s)}, {p2(N+2*s)}, {p2(ACC+2*s)}')
        else:
            e(f'v_pk_fma_f32 {p2(ACC+2*s)}, {p2(N+2*s)}, {p2(TMP+2*s)}, {p2(ACC+2*s)}')
    e(f's_cbranch_scc1 {L}_loop')
    e(f'ds_write_b128 v{Z}, v[{ACC}:{ACC+3}] offset:{PART}')

RLF = os.environ.get('RLF', 'sc1')
def srd(r): return f's[{r}:{r+3}]'
def scan64(dst, src):
    e(f"""
    s_nop 1
    v_add_u32_dpp v{dst}, v{src}, v{src} row_shr:1 row_mask:0xf bank_mask:0xf bound_ctrl:0
    """)
    for d in ('row_shr:2', 'row_shr:4', 'row_shr:8'):
        e('s_nop 1')
        e(f'v_add_u32_dpp v{dst}, v{dst}, v{dst} {d} row_mask:0xf bank_mask:0xf bound_ctrl:0')
    e(f"""
    s_nop 1
    v_add_u32_dpp v{dst}, v{dst}, v{dst} row_bcast:15 row_mask:0xa bank_mask:0xf
    s_nop 1
    v_add_u32_dpp v{dst}, v{dst}, v{dst} row_bcast:31 row_mask:0xc bank_mask:0xf
    """)

def ovf_scan():
    for i in range(4): e(f'v_add_u32 v{44+i}, {2*INC}, v{52+i}')
    for i in range(4): e(f'v_lshrrev_b32 v{44+i}, 15, v{44+i}')
    for i in range(4): e(f'v_sub_u32 v{44+i}, v{44+i}, 12 clamp')
    e("""
    v_add_u32 v48, v44, v45
    v_add_u32 v49, v48, v46
    v_add_u32 v50, v49, v47
    """)
    scan64(61, 50)
    e("""
    v_sub_u32 v56, v61, v50
    v_add_u32 v57, v56, v44
    v_add_u32 v58, v56, v48
    v_add_u32 v59, v56, v49
    """)

TSH = int(os.environ.get('TSH', '0'))
W3 = QG32
def phase1():
    NE, NP = 5, 4
    A, B, Cc = SRD_A, SRD_B, SRD_C
    w3load = f'buffer_load_dwordx2 v[{W3}:{W3+1}], v{OO}, {srd(SRD_OUT)}, s49 offen'
    recsrd = f"""s_add_u32 s{SRD_REC}, s{SRD_P}, {WS_REC}
    s_addc_u32 s{SRD_REC+1}, s{SRD_P+1}, 0"""
    e(f"""
    @INIT
    s_cmp_ge_u32 s2, 256
    s_cbranch_scc1 L_k2_end
    v_readfirstlane_b32 s{S_WV}, v0
    s_load_dwordx2 s[{SRD_P}:{SRD_P+1}], s[0:1], 64
    s_load_dwordx2 s[{SRD_OUT}:{SRD_OUT+1}], s[0:1], 32
    s_and_b32 s{S_B}, s2, 7
    s_lshl_b32 s{S_B}, s{S_B}, 5
    s_lshr_b32 s{S_TMP}, s2, 3
    s_add_u32 s{S_B}, s{S_B}, s{S_TMP}
    s_sub_u32 s{S_B}, 255, s{S_B}
    s_mul_i32 s{S_X0}, s{S_B}, {NB*128}
    s_lshr_b32 s{S_WV}, s{S_WV}, 6
    s_mov_b32 s{A+3}, 0x20000
    s_mov_b32 s{B+3}, 0x20000
    s_mov_b32 s{Cc+3}, 0x20000
    s_mov_b32 s{SRD_P+3}, 0x20000
    s_mov_b32 s{SRD_TAB+2}, {256*512}
    s_mov_b32 s{SRD_TAB+3}, 0x20000
    s_mov_b32 s{SRD_REC+2}, {G*REC_STRIDE}
    s_mov_b32 s{SRD_REC+3}, 0x20000
    s_mov_b32 s{SRD_OUT+2}, {129*128}
    s_mov_b32 s{SRD_OUT+3}, 0x20000
    s_movk_i32 s49, 16384
    v_and_b32 v{OO}, 15, v0
    v_lshlrev_b32 v{OO}, 3, v{OO}
    s_cmp_lt_u32 s{S_WV}, 4
    s_cbranch_scc1 L_p
    s_cmp_ge_u32 s{S_WV}, 14
    s_cbranch_scc1 L_aux
    v_subrev_u32 v9, 256, v0
    v_lshlrev_b32 v1, 4, v9
    v_lshlrev_b32 v25, 2, v9
    v_mov_b32 v24, 0
    s_cmp_lt_u32 s{S_B}, {G}
    s_cbranch_scc1 L_edge
    s_load_dwordx2 s[{B}:{B+1}], s[0:1], 56
    s_memrealtime s[40:41]
    s_memtime s[42:43]
    s_mov_b32 s{B+2}, 8
    s_lshl_b32 s44, s{S_WV}, 8
    s_or_b32 s44, s44, s2
    s_waitcnt lgkmcnt(0)
    s_cmp_lg_u32 s44, 0x400
    s_cbranch_scc1 L_clear1
    s_or_b32 s45, s40, 1
    s_and_b32 s46, s42, 0xc0c0c0c0
    v_mov_b32 v4, s45
    v_mov_b32 v5, s46
    s_mov_b64 exec, 1
    buffer_store_dwordx2 v[4:5], v24, {srd(B)}, 0 offen sc1
    s_mov_b64 exec, -1
L_clear1:
    {w3load}
    ds_write_b32 v25, v24 offset:{CNT1}
    {recsrd}
    s_waitcnt lgkmcnt(0)
    s_barrier
    s_barrier
    s_waitcnt vmcnt(0)
    s_branch L_common
L_edge:
    s_load_dwordx2 s[{A}:{A+1}], s[0:1], 24
    s_load_dwordx2 s[{B}:{B+1}], s[0:1], 16
    s_load_dwordx2 s[{Cc}:{Cc+1}], s[0:1], 8
    s_mov_b32 s{A+2}, {EDGES*4}
    s_mov_b32 s{B+2}, {EDGES*4}
    s_mov_b32 s{Cc+2}, {EDGES*2}
    s_mul_i32 s40, s{S_B}, {CH*4}
    s_add_u32 s41, s40, {2560*4}
    s_mul_i32 s42, s{S_B}, {CH*2}
    s_add_u32 s43, s42, {2560*2}
    v_lshlrev_b32 v2, 3, v9
    v_lshlrev_b32 v3, 1, v9
    s_waitcnt lgkmcnt(0)
    buffer_load_dwordx4 v[4:7], v1, {srd(A)}, s40 offen
    buffer_load_dword v8, v25, {srd(A)}, s41 offen
    buffer_load_dwordx4 v[12:15], v1, {srd(B)}, s40 offen
    buffer_load_dwordx2 v[20:21], v2, {srd(Cc)}, s42 offen
    buffer_load_dword v16, v25, {srd(B)}, s41 offen
    buffer_load_ushort v22, v3, {srd(Cc)}, s43 offen
    {w3load}
    ds_write_b32 v25, v24 offset:{CNT1}
    {recsrd}
    s_mul_i32 s40, s{S_B}, {REC_STRIDE}
    s_add_u32 s41, s40, {80*128}
    s_add_u32 s42, s40, {160*128}
    s_add_u32 s43, s40, {240*128}
    s_mov_b32 s45, {-NB*4 & 0xffffffff}
    s_mov_b32 s46, 0xffff0000
    s_mov_b32 s47, {48<<13}
    s_mov_b32 s48, {CELL}
    v_mov_b32 v3, {INC}
    v_lshrrev_b32 v26, 3, v9           ; cell
    v_and_b32 v27, 0x70, v1            ; 16*k
    v_mul_u32_u24 v62, {CS}, v26
    v_add3_u32 v62, v62, v27, s48
    v_bfe_u32 v27, v9, 2, 1
    v_mul_u32_u24 v27, {0 if 'fullline' in X_ else 12*INC}, v27
    v_lshlrev_b32 v26, 2, v26
    s_waitcnt lgkmcnt(0)
    s_barrier
    @STAMP bar1
    s_waitcnt vmcnt(5)
    """)
    R = range(NE)
    for i in R: e(f'v_mul_u32_u24 v{28+i}, 42800, v{4+i}')
    for i in R: e(f'v_lshrrev_b32 v{44+i}, 21, v{28+i}')
    for i in R:
        e(f'v_lshlrev_b32 v{28+i}, 2, v{44+i}')
        e(f'ds_add_rtn_u32 v{36+i}, v{28+i}, v3 offset:{CNT1}')
    for i in R: e(f'v_lshl_add_u32 v{4+i}, v{4+i}, 2, 4')
    for i in R: e(f'v_mad_i32_i24 v{4+i}, v{44+i}, s45, v{4+i}')
    e('s_waitcnt vmcnt(0)')
    e('@STAMP allloaded')
    for i in R:
        a = 20 + i//2
        if i % 2 == 0:
            e(f'v_lshl_or_b32 v{12+i}, v{a}, 16, v{12+i}')
        else:
            e(f'v_and_or_b32 v{12+i}, v{a}, s46, v{12+i}')
    for i in R:
        e(f's_waitcnt lgkmcnt({NE-1-i+2*i})')
        e(f'v_min_u32 v{44+i}, s47, v{36+i}')
        e(f'v_bfe_u32 v{52+i}, v{44+i}, 13, 2')
        e(f'v_lshrrev_b32 v{44+i}, 13, v{44+i}')
        e(f'v_mad_u32_u24 v{44+i}, v{28+i}, {CS//16}, v{44+i}')
        e(f'v_lshl_add_u32 v{44+i}, v{44+i}, 2, s48')
        e(f'ds_write_b32 v{44+i}, v{12+i}')
        e(f'v_mad_i32_i24 v{52+i}, v{52+i}, -3, v{44+i}')
        e(f'ds_write_b8 v{52+i}, v{4+i} offset:12')
    e(f"""
    v_max3_u32 v2, v36, v37, v38
    v_max3_u32 v2, v2, v39, v40
    v_cmp_le_u32 s[50:51], s47, v2
    s_waitcnt lgkmcnt(0)
    s_barrier
    @STAMP bar2p
    """)
    for p in range(NP):
        e(f'ds_read_b32 v{48+p}, v26 offset:{CNT1 + p*320}')
        e(f'ds_read_b128 v[{64+4*p}:{67+4*p}], v62 offset:{p*80*CS}')
    for p in range(NP):
        if p == NP-1:
            e(f's_cmp_ge_u32 s{S_WV}, 6')
            e('s_cbranch_scc1 L_copied')
        e(f's_waitcnt lgkmcnt({2*(NP-1-p)})')
        e(f'v_cmp_lt_u32 vcc, v27, v{48+p}')
        e('s_and_b64 exec, exec, vcc')
        e(f's_cbranch_execz L_c{p}')
        e(f'buffer_store_dwordx4 v[{64+4*p}:{67+4*p}], v1, {srd(SRD_REC)}, s{40+p} offen sc1')
        e(f'L_c{p}:')
        e('s_mov_b64 exec, -1')
    e(f"""
L_copied:
    s_cmp_eq_u64 s[50:51], 0
    s_cbranch_scc0 L_overflow
    """)

def phase1_tail():
    NE = 5
    A, B, Cc = SRD_A, SRD_B, SRD_C
    w3load = f'buffer_load_dwordx2 v[{W3}:{W3+1}], v{OO}, {srd(SRD_OUT)}, s49 offen'
    recsrd = f"""s_add_u32 s{SRD_REC}, s{SRD_P}, {WS_REC}
    s_addc_u32 s{SRD_REC+1}, s{SRD_P+1}, 0"""
    e(f"""
L_p:
    s_load_dwordx2 s[{A}:{A+1}], s[0:1], 0
    s_add_u32 s40, s{S_X0}, {(NB+1)*128}
    s_min_u32 s{A+2}, s40, {NODES*128}
    s_movk_i32 s41, 4096
    s_movk_i32 s42, 8192
    s_movk_i32 s43, 12288
    s_add_u32 s44, s{S_X0}, 4096
    v_lshlrev_b32 v1, 4, v0
    s_waitcnt lgkmcnt(0)
    buffer_load_dwordx4 v[40:43], v1, {srd(A)}, s{S_X0} offen
    buffer_load_dwordx4 v[44:47], v1, {srd(A)}, s44 offen
    buffer_load_dwordx4 v[24:27], v1, {srd(SRD_OUT)}, 0 offen
    buffer_load_dwordx4 v[28:31], v1, {srd(SRD_OUT)}, s41 offen
    buffer_load_dwordx4 v[32:35], v1, {srd(SRD_OUT)}, s42 offen
    {w3load}
    buffer_load_dwordx4 v[36:39], v1, {srd(SRD_OUT)}, s43 offen
    {recsrd}
    v_lshrrev_b32 v2, 3, v0
    v_and_b32 v3, 0x70, v1
    v_mul_u32_u24 v4, 192, v2
    v_add_u32 v4, v4, v3
    v_mul_u32_u24 v5, 144, v2
    v_add_u32 v5, v5, v3
    v_add_u32 v5, {XS}, v5
    v_bfe_u32 v6, v0, 5, 1             ; h
    v_bfe_u32 v7, v0, 2, 2             ; r
    v_lshl_add_u32 v8, v6, 3, v7
    v_mul_u32_u24 v8, 192, v8          ; (8h + r)*192
    v_bfe_u32 v9, v0, 4, 1
    v_and_b32 v10, 3, v0               ; c
    v_lshl_add_u32 v11, v9, 2, v10     ; gamma
    s_lshr_b32 s45, s{S_WV}, 1         ; which
    s_and_b32 s46, s{S_WV}, 1
    s_sub_u32 s47, 4, s45
    v_lshlrev_b32 v11, s47, v11
    s_mul_i32 s47, s45, {64*192}
    v_add3_u32 v8, v8, v11, s47
    s_mul_i32 s47, s45, 56
    s_add_u32 s47, s47, 8
    v_add_u32 v12, s47, v8
    v_and_b32 v13, 31, v0
    v_mul_u32_u24 v14, 144, v13
    v_lshl_add_u32 v14, v6, 4, v14
    s_mul_i32 s47, s46, {32*144}
    s_add_u32 s47, s47, {XS}
    v_add_u32 v14, s47, v14
    s_mov_b32 s48, {NEG_LOG2E}
    s_waitcnt vmcnt(6)
    ds_write_b128 v5, v[40:43]
    s_waitcnt vmcnt(5)
    ds_write_b128 v5, v[44:47] offset:{32*144}
    """)
    for i in range(4):
        e(f's_waitcnt vmcnt({[4, 3, 2, 0][i]})')
        e(f'ds_write_b128 v4, v[{24+4*i}:{27+4*i}] offset:{W12 + 32*192*i}')
    e("""
    s_waitcnt lgkmcnt(0)
    s_barrier
    """)
    def step_reads(s_):
        e(f'ds_read_b128 v[{16+12*s_}:{19+12*s_}], v14 offset:{32*s_}')
        for t_ in range(2):
            for h in range(2):
                r = 20 + 12*s_ + 4*t_ + 2*h
                e(f'ds_read_b64_tr_b16 v[{r}:{r+1}], v{8 if t_ == 0 else 12} offset:{W12 + (16*s_ + 4*h)*192}')
    for s_ in range(3): step_reads(s_)
    for s_ in range(4):
        e(f's_waitcnt lgkmcnt({[10, 10, 5, 0][s_]})')
        for t_ in range(2):
            d = 64 + 16*t_
            e(f'v_mfma_f32_32x32x16_bf16 v[{d}:{d+15}], v[{16+12*s_}:{19+12*s_}], v[{20+12*s_+4*t_}:{23+12*s_+4*t_}], ' + ('0' if s_ == 0 else f'v[{d}:{d+15}]'))
        if s_ == 0: step_reads(3)
    e(f"""
    s_cmp_eq_u32 s45, 0
    s_cbranch_scc0 L_q
    s_add_u32 s40, s{S_X0}, {NB*128}
    s_min_u32 s{SRD_P+2}, s40, {NODES*128}
    s_lshl_b32 s46, s46, 12
    s_add_u32 s46, s46, s{S_X0}
    v_lshlrev_b32 v2, 6, v9
    v_lshl_add_u32 v2, v10, 4, v2
    v_lshl_add_u32 v2, v7, 2, v2
    v_lshl_add_u32 v2, v6, 9, v2       ; + 4h rows
    s_nop 3
    """)
    for v in range(16):
        e(f'v_mul_f32 v{64+v}, s48, v{64+v}')
        e(f'v_mul_f32 v{80+v}, s48, v{80+v}')
        e(f'v_cvt_pk_bf16_f32 v{64+v}, v{64+v}, v{80+v}')
        e(f'buffer_store_dword v{64+v}, v2, {srd(SRD_P)}, s46 offen offset:{(8*(v//4) + v%4)*128} sc1')
    e(f"""
    s_branch L_third
L_q:
    s_lshl_b32 s46, s46, 13
    v_lshlrev_b32 v2, 2, v13
    v_lshl_add_u32 v2, v6, 10, v2
    v_add_u32 v2, s46, v2
    s_nop 7
    """)
    for v in range(16):
        e(f'v_mul_f32 v{64+v}, s48, v{64+v}')
        e(f'v_mul_f32 v{80+v}, s48, v{80+v}')
        off = QS + (8*(v//4) + v%4)*256
        e(f'ds_write_b32 v2, v{64+v} offset:{off}')
        e(f'ds_write_b32 v2, v{80+v} offset:{off+128}')
    e(f"""
L_third:
    v_lshlrev_b32 v2, 2, v0
    v_mul_u32_u24 v3, {CS}, v0
    v_add_u32 v3, {CELL+128}, v3
    v_lshlrev_b32 v4, 6, v0
    s_mul_i32 s40, s{S_B}, {REC_STRIDE}
    s_add_u32 s40, s40, {T3}
    s_mov_b32 s41, {24*INC}
    s_waitcnt lgkmcnt(0)
    s_barrier
    ds_read_b32 v5, v2 offset:{CNT1}
    s_waitcnt lgkmcnt(0)
    v_cmp_lt_u32 vcc, s41, v5
    s_and_b64 exec, exec, vcc
    s_cbranch_execz L_third1
    ds_read_b128 v[16:19], v3
    ds_read_b128 v[20:23], v3 offset:16
    ds_read_b128 v[24:27], v3 offset:32
    ds_read_b128 v[28:31], v3 offset:48
    s_waitcnt lgkmcnt(0)
    buffer_store_dwordx4 v[16:19], v4, {srd(SRD_REC)}, s40 offen sc1
    buffer_store_dwordx4 v[20:23], v4, {srd(SRD_REC)}, s40 offen offset:16 sc1
    buffer_store_dwordx4 v[24:27], v4, {srd(SRD_REC)}, s40 offen offset:32 sc1
    buffer_store_dwordx4 v[28:31], v4, {srd(SRD_REC)}, s40 offen offset:48 sc1
L_third1:
    s_mov_b64 exec, -1
    s_branch L_common
L_aux:
    s_load_dwordx2 s[{A}:{A+1}], s[0:1], 40
    s_load_dwordx2 s[{B}:{B+1}], s[0:1], 56
    s_mov_b32 s{A+2}, 16384
    s_mov_b32 s{B+2}, 8
    v_subrev_u32 v9, 896, v0
    v_lshlrev_b32 v1, 4, v9
    v_lshrrev_b32 v2, 3, v9
    v_mul_u32_u24 v2, 144, v2
    v_and_b32 v3, 0x70, v1
    v_add_u32 v2, v2, v3
    v_add_u32 v2, {WUS}, v2
    v_and_b32 v60, 0x3f0, v1
    v_mov_b32 v53, 0
    s_movk_i32 s41, 4096
    s_movk_i32 s42, 8192
    s_movk_i32 s43, 12288
    s_setprio 3
    s_waitcnt lgkmcnt(0)
    {recsrd}
    s_barrier
    {w3load}
    """)
    for i in range(8):
        e(f'buffer_load_dwordx4 v[{16+4*i}:{19+4*i}], v1, {srd(A)}, {["0", "s41", "s42", "s43"][i//2]} offen offset:{2048*(i%2)}')
    e(f"""
    s_barrier
    buffer_load_dwordx2 v[62:63], v53, {srd(B)}, 0 offen sc1
    s_waitcnt vmcnt(1)
    """)
    for i in range(8):
        e(f'ds_write_b128 v2, v[{16+4*i}:{19+4*i}] offset:{16*144*i}')
    e(f"""
    s_cmp_eq_u32 s{S_WV}, 14
    s_cbranch_scc1 L_common
L_row:
    ds_read_b128 v[52:55], v60 offset:{CNT1}
    s_waitcnt lgkmcnt(0)
    """)
    for i in range(4): e(f'v_lshl_add_u32 v{40+i}, v{52+i}, 1, v{52+i}')
    for i in range(4): e(f'v_lshrrev_b32 v{40+i}, 15, v{40+i}')
    e(f"""
    v_max3_u32 v6, v40, v41, v42
    v_max_u32 v6, v6, v43
    v_cmp_lt_u32 vcc, 36, v6
    s_cbranch_vccz L_row1
    """)
    ovf_scan()
    for i in range(4): e(f'v_lshl_or_b32 v{56+i}, v{40+i}, 16, v{56+i}')
    e(f"""
    s_mul_i32 s40, s{S_B}, {REC_STRIDE}
    s_add_u32 s40, s40, {TABF}
    buffer_store_dwordx4 v[56:59], v60, {srd(SRD_REC)}, s40 offen sc1
L_row1:
    """)
    for i in range(4): e(f'v_min_u32 v{40+i}, 37, v{40+i}')
    e(f"""
    v_lshl_or_b32 v40, v41, 8, v40
    v_lshl_or_b32 v42, v43, 8, v42
    v_lshl_or_b32 v53, v42, 16, v40
    s_branch L_common
L_overflow:
    v_and_b32 v60, 0x3f0, v1
    ds_read_b128 v[52:55], v60 offset:{CNT1}
    s_waitcnt lgkmcnt(0)
    """)
    ovf_scan()
    e(f"""
    ds_write_b128 v60, v[56:59] offset:{GT}
    s_add_u32 s44, s40, {OVF - 192}
    """)
    for i in range(NE):
        e(f"""
        v_cmp_le_u32 vcc, s47, v{36+i}
        s_and_b64 exec, exec, vcc
        s_cbranch_execz L_o{i}
        ds_read_b32 v44, v{28+i} offset:{GT}
        v_lshrrev_b32 v45, 13, v{36+i}
        v_and_b32 v46, 3, v45
        s_waitcnt lgkmcnt(0)
        v_lshl_add_u32 v45, v44, 2, v45
        v_lshlrev_b32 v45, 2, v45
        v_mad_i32_i24 v46, v46, -3, v45
        buffer_store_dword v{12+i}, v45, {srd(SRD_REC)}, s44 offen sc1
        buffer_store_byte v{4+i}, v46, {srd(SRD_REC)}, s44 offen offset:12 sc1
L_o{i}:
        s_mov_b64 exec, -1""")
    e('s_branch L_common')

def k2():
    e(""".globl gather_scatter__mpnn_edge_mlp__graph_kernel
.p2align 8
.type gather_scatter__mpnn_edge_mlp__graph_kernel,@function
gather_scatter__mpnn_edge_mlp__graph_kernel:""")
    def mk(i): return f's[{S_MASK+2*i}:{S_MASK+2*i+1}]'
    phase1()
    PFPOS = int(os.environ.get('PFPOS', '0'))
    pf = f'buffer_load_dword v{E+15}, v12, s[{SRD_P}:{SRD_P+3}], 0 idxen'
    if PFPOS == 1:
        PFA = f"""s_lshr_b32 s6, s2, 3
        s_mul_i32 s6, s6, 25
        s_sub_u32 s7, 784, s6
        s_min_u32 s7, s7, 25
        s_bfm_b64 s[{S_TMP+2}:{S_TMP+3}], s7, 0
        s_mul_i32 s7, s{S_WV}, 784
        s_add_u32 s6, s6, s7
        v_add_u32 v12, s6, v46"""
        PF1 = f's_mov_b64 exec, s[{S_TMP+2}:{S_TMP+3}]\n{pf}'; PF2 = ''
    elif PFPOS == 2:
        PFA = 's_lshr_b32 s6, s2, 3\ns_mul_i32 s6, s6, 391\nv_add_u32 v12, s6, v0'
        PF1 = ''; PF2 = f's_cmp_gt_u32 s{S_WV}, 6\ns_cbranch_scc1 L_no_pf\n{pf}\nL_no_pf:'
    else:
        PFA = PF1 = PF2 = ''
    e(f"""
L_common:
    @STAMP issued
    s_load_dwordx2 s[{SRD_OUT}:{SRD_OUT+1}], s[0:1], 48
    s_load_dwordx2 s[{SRD_B}:{SRD_B+1}], s[0:1], 56
    s_mov_b32 s{SRD_B+2}, 8
    s_mov_b32 s{SRD_OUT+2}, {NODES*128}
    s_add_u32 s{SRD_TAB}, s{SRD_P}, {WS_TAB}
    s_addc_u32 s{SRD_TAB+1}, s{SRD_P+1}, 0
    s_or_b32 s{SRD_P+1}, s{SRD_P+1}, {128<<16}
    s_mov_b32 s{SRD_P+2}, {NODES}
    s_mov_b32 s{S_RND}, 0
    s_mov_b32 s{S_SAFE}, 0
    s_mov_b32 s{S_PUB}, 15
    s_mov_b32 s{S_L2E}, {NEG_LOG2E}
    v_lshlrev_b32 v1, 4, v0            ; 16 t
    v_and_b32 v{LQ}, 0xf0, v1
    v_and_b32 v{LA}, 0x3f00, v1
    v_and_b32 v{CH16}, 0x30, v1
    v_mov_b32 v{DS}, 0
    v_mov_b32 v{DS+1}, 0
    v_mov_b32 v{ZERO}, 0
    v_lshrrev_b32 v32, 1, v0
    v_and_b32 v34, 12, v32             ; 4*gD
    v_xor_b32 v32, v32, v0
    v_and_b32 v32, 16, v32
    v_cmp_eq_u32 vcc, 0, v32
    v_and_b32 v33, 16, v1
    v_mov_b32 v41, 0x3f80
    v_lshlrev_b32 v33, v33, v41
    v_bfe_u32 v41, v0, 1, 3
    v_or_b32 v41, v41, v32
    v_cndmask_b32 v{W3}, 0, v{W3}, vcc
    v_cndmask_b32 v{W3+1}, 0, v{W3+1}, vcc
    """)
    for d in range(8):
        e(f'v_cmp_eq_u32 {mk(d)}, {d}, v41')
    for d in range(8):
        e(f'v_cndmask_b32 v{BS0+d}, 0, v33, {mk(d)}')
    e(f"""
    v_lshlrev_b32 v36, 16, v{W3}
    v_and_b32 v37, 0xffff0000, v{W3}
    v_lshlrev_b32 v38, 16, v{W3+1}
    v_and_b32 v39, 0xffff0000, v{W3+1}
    v_mul_f32 v36, s{S_L2E}, v36
    v_mul_f32 v37, s{S_L2E}, v37
    v_mul_f32 v38, s{S_L2E}, v38
    v_mul_f32 v39, s{S_L2E}, v39
    v_cvt_pk_bf16_f32 v{BX}, v36, v37
    v_cvt_pk_bf16_f32 v{BX+1}, v38, v39
    s_and_b32 s{S_TMP}, s{S_WV}, 3     ; mt
    s_lshr_b32 s{S_TMP+1}, s{S_WV}, 2  ; nt
    v_bfe_u32 v35, v0, 4, 2            ; kq
    v_bfe_u32 v{WA}, v0, 2, 2
    v_lshl_add_u32 v{WA}, v35, 3, v{WA}
    v_mul_u32_u24 v{WA}, 144, v{WA}
    v_lshrrev_b32 v36, 1, v{CH16}
    s_lshl_b32 s6, s{S_TMP}, 5
    s_add_u32 s6, s6, {WUS}
    v_add3_u32 v{WA}, v{WA}, v36, s6
    v_and_b32 v36, 0x30, v0            ; 16*kq
    v_mad_u32_u24 v{XA}, v{LQ}, 9, v36
    s_mul_i32 s6, s{S_TMP+1}, {16*144}
    s_add_u32 s6, s6, {XS}
    v_add_u32 v{XA}, s6, v{XA}
    s_mul_i32 s7, s{S_TMP+1}, 2176
    s_add_u32 s7, s7, {AGGB}
    v_mad_u32_u24 v{BR}, v36, 17, v{LQ}
    v_add_u32 v{BR}, s7, v{BR}         ; 272*kq + 16*(l&15)
    v_lshrrev_b32 v14, 5, v{LQ}
    v_mul_u32_u24 v{BW}, 272, v14
    v_and_b32 v14, 8, v{OO}
    s_lshl_b32 s6, s{S_TMP}, 6
    s_add_u32 s7, s7, s6
    v_add3_u32 v{BW}, v{BW}, v14, s7
    v_add_u32 v{BW}, v{BW}, v36        ; (j>>1)*272 + 16*(n&15) + 8*(j&1)
    v_lshlrev_b32 v{OO}, 3, v{LQ}
    v_lshl_add_u32 v{OO}, v35, 3, v{OO}
    v_bfe_u32 v14, v0, 2, 1
    v_and_b32 v15, 32, v0
    v_lshl_add_u32 v{QG32}, v14, 6, v15
    v_mov_b32 v{GD4}, v34
    s_mov_b32 s{S_SPIN}, 0
    s_waitcnt lgkmcnt(0)
    ds_write_b32 v{ZERO}, v{ZERO} offset:{FLAG}
L_round:
    ds_read_b128 v[4:7], v1 offset:{QS}
    v_mov_b32 v36, 0
    v_mov_b32 v37, 0
    v_mov_b32 v38, 0
    v_mov_b32 v39, 0
    v_and_b32 v33, 0xfc, v0
    ds_write_b32 v33, v36
    ds_write_b128 v1, v[36:39] offset:{PART}
    ds_write_b128 v1, v[36:39] offset:{PART+16384}
    v_lshrrev_b32 v2, 2, v0            ; g
    v_lshlrev_b32 v14, 9, v2
    v_mul_u32_u24 v2, {REC_STRIDE}, v2
    v_and_b32 v3, 3, v0
    v_mul_u32_u24 v13, 3, v3
    s_lshl_b32 s6, s{S_B}, 7
    v_add3_u32 v35, v2, v{CH16}, s6
    s_lshl_b32 s6, s{S_B}, 6
    s_add_u32 s6, s6, {T3-128}
    v_add3_u32 v32, v2, v{CH16}, s6
    v_mov_b32 v34, 0x7ffffff0
    v_and_b32 v46, 63, v0
    {PFA}
    v_lshlrev_b32 v47, 2, v46
    v_lshrrev_b32 v57, 6, v{LA}        ; 4n
    v_and_b32 v58, 15, v0              ; j
    v_and_b32 v61, 12, v57             ; 4*qd
    v_mov_b32 v3, 1
    s_movk_i32 s{S_TMP}, 0xfc
    s_waitcnt lgkmcnt(3)
    """)
    for i in range(4):
        e(f'v_exp_f32 v{8+i}, v{4+i}')
    for i in range(4):
        e(f'v_add_f32 v{8+i}, 1.0, v{8+i}')
    for i in range(4):
        e(f'v_rcp_f32 v{8+i}, v{8+i}')
    for i in range(4):
        e(f'v_mul_f32 v{8+i}, v{4+i}, v{8+i}')
    e(f"""
    s_lshl_b32 s6, s{S_B}, 9
    s_lshr_b32 s7, s{S_B}, 2
    s_lshl_b32 s7, s7, 3
    s_and_b32 s{S_TMP+1}, s{S_B}, 3
    s_lshl_b32 s{S_TMP+1}, s{S_TMP+1}, 3
    s_mov_b32 s{S_TMP+4}, 0xc0c0c0c0
    v_lshlrev_b32 v48, 3, v46
    s_cmp_eq_u32 s{S_WV}, s{S_PUB}
    s_waitcnt vmcnt(0) lgkmcnt(0)
    s_cbranch_scc1 L_icheck
L_iok:
    @STAMP drained
    s_barrier
    @STAMP bar1q
    ds_read_b64 v[62:63], v{ZERO} offset:{NONCE}
    s_cmp_eq_u32 s{S_WV}, s{S_PUB}
    s_mov_b32 s{S_PUB}, -1
    s_cbranch_scc0 L_poll0
    buffer_store_dwordx2 v[52:53], v48, {srd(SRD_TAB)}, s6 offen sc1
    s_waitcnt vmcnt(0)
L_poll0:
    s_setprio 0
    s_waitcnt lgkmcnt(0)
    s_barrier
    {'s_sleep ' + os.environ['SLP0'] if os.environ.get('SLP0') else ''}
L_poll:
    buffer_load_dwordx2 v[50:51], v14, {srd(SRD_TAB)}, s7 offen sc1
    s_add_u32 s{S_SPIN}, s{S_SPIN}, 1
    s_waitcnt vmcnt(0)
    v_and_b32 v15, s{S_TMP+4}, v51
    v_cmp_ne_u32 vcc, v50, v62
    v_cmp_ne_u32 s[{S_TMP+6}:{S_TMP+7}], v15, v63
    s_or_b64 exec, vcc, s[{S_TMP+6}:{S_TMP+7}]
    s_cbranch_execz L_poll_done
    s_sleep {int(os.environ.get('SLP', '2'))}
    s_cmp_lt_u32 s{S_SPIN}, {SPIN_MAX}
    s_cbranch_scc1 L_poll
    v_mov_b32 v51, 0
L_poll_done:
    s_mov_b64 exec, -1
    {'s_barrier' if 'allfirst' in X_ else ''}
    @STAMP tab
    v_bfe_u32 v15, v51, s{S_TMP+1}, 6
    s_cmp_lg_u32 s{S_RND}, 0
    s_cbranch_scc1 L_later
    v_sub_u32 v37, v15, v13
L_loads:
    v_cmp_lt_i32 {mk(0)}, 0, v37
    v_cmp_lt_i32 {mk(3)}, 12, v37
    v_cmp_lt_i32 {mk(6)}, 24, v37
    v_cndmask_b32 v38, v34, v35, {mk(0)}
    buffer_load_dwordx4 v[16:19], v38, {srd(SRD_REC)}, 0 offen {RLF}
    v_cndmask_b32 v39, v34, v35, {mk(3)}
    buffer_load_dwordx4 v[20:23], v39, {srd(SRD_REC)}, 0 offen offset:64 {RLF}
    v_cndmask_b32 v40, v34, v32, {mk(6)}
    buffer_load_dwordx4 v[24:27], v40, {srd(SRD_REC)}, 0 offen offset:128 {RLF}
    v_cmp_lt_i32 vcc, 36, v37
    v_cmp_lt_i32 {mk(1)}, 1, v37
    v_cmp_lt_i32 {mk(2)}, 2, v37
    v_cmp_lt_i32 {mk(4)}, 13, v37
    v_cmp_lt_i32 {mk(5)}, 14, v37
    v_cmp_lt_i32 {mk(7)}, 25, v37
    v_cmp_lt_i32 {mk(8)}, 26, v37
    s_mov_b64 exec, vcc
    ds_write_b32 v{ZERO}, v3 offset:240
    """)
    for k in range(3):
        if k == 2:
            e(f's_cmp_eq_u64 {mk(6)}, 0')
            e('s_cbranch_scc1 L_skipA')
        e(f's_waitcnt vmcnt({2-k})')
        if k == 0: e('@STAMP rec0')
        m = 19 + 4*k
        for i in range(3):
            e(f's_mov_b64 exec, {mk(3*k+i)}')
            e(f'v_and_b32_sdwa v{28+3*k+i}, v{m}, s{S_TMP} {SDW} src0_sel:BYTE_{i} src1_sel:DWORD')
            e(f'ds_add_rtn_u32 v{37+3*k+i}, v{28+3*k+i}, v3')
    e(f"""
L_skipA:
    {PF1}
    s_mov_b64 exec, -1
    s_mov_b32 s{S_TMP}, {RECS}
    s_waitcnt lgkmcnt(0)
    @STAMP atomics
    s_barrier
    @STAMP bar2
    ; ---- phase B
    {PF2}
    ds_read_b32 v48, v47
    ds_read_b32 v52, v57 offset:4
    s_waitcnt lgkmcnt(1)
    v_add_u32 v49, 7, v48
    v_lshrrev_b32 v49, 3, v49
    v_readlane_b32 s{S_MORE}, v48, 60
    s_nop 0
    v_add_u32_dpp v50, v49, v49 row_shr:1 row_mask:0xf bank_mask:0xf bound_ctrl:0
    """)
    for d in ('row_shr:2', 'row_shr:4', 'row_shr:8'):
        e('s_nop 1')
        e(f'v_add_u32_dpp v50, v50, v50 {d} row_mask:0xf bank_mask:0xf bound_ctrl:0')
    e(f"""
    s_nop 1
    v_add_u32_dpp v50, v50, v50 row_bcast:15 row_mask:0xa bank_mask:0xf
    s_nop 1
    v_add_u32_dpp v50, v50, v50 row_bcast:31 row_mask:0xc bank_mask:0xf
    v_sub_u32 v49, v50, v49            ; uoff
    v_readlane_b32 s{S_TOT}, v50, 50
    v_lshl_add_u32 v51, v49, 5, s{S_TMP}
    s_waitcnt lgkmcnt(0)
    ds_write_b32 v47, v51 offset:{BASE}
    ds_read_b32 v54, v57 offset:{BASE+4}
    """)
    for sl in range(6):
        e(f's_mov_b64 exec, {mk(sl)}')
        e(f'ds_read_b32 v{64+sl}, v{28+sl} offset:{BASE}')
    e(f"""
    s_mov_b64 exec, -1
    v_sub_u32 v15, 0, v52
    v_and_b32 v15, 7, v15              ; npad
    v_cvt_f32_u32 v53, v15
    s_add_u32 s6, s{S_TOT}, 3
    s_lshr_b32 s6, s6, 2               ; nT
    s_lshr_b32 s{S_QN}, s6, 4
    s_and_b32 s{S_RN}, s6, 15
    v_mul_f32 v8, v53, -v8
    v_mul_f32 v9, v53, -v9
    v_mul_f32 v10, v53, -v10
    v_mul_f32 v11, v53, -v11
    s_cmp_lt_u32 s{S_WV}, s{S_RN}
    s_addc_u32 s{S_NT}, s{S_QN}, 0
    s_min_u32 s6, s{S_WV}, s{S_RN}
    s_mul_i32 s7, s{S_WV}, s{S_QN}
    s_add_u32 s6, s6, s7
    s_lshl_b32 s7, s6, 4               ; ustart*4
    s_lshl_b32 s6, s6, 7               ; ustart*32
    s_add_u32 s6, s6, {RECS}
    s_cmp_eq_u32 s{S_RND}, 0
    s_cbranch_scc1 L_agg0
    ds_read_b128 v[4:7], v1 offset:{AGG}
    s_waitcnt lgkmcnt(0)
    v_pk_add_f32 v[8:9], v[8:9], v[4:5]
    v_pk_add_f32 v[10:11], v[10:11], v[6:7]
L_agg0:
    s_waitcnt lgkmcnt(0)
    """)
    recreg = [16, 17, 18, 20, 21, 22, 24, 25, 26]
    for sl in range(6):
        e(f's_mov_b64 exec, {mk(sl)}')
        e(f'v_lshl_add_u32 v{64+sl}, v{37+sl}, 2, v{64+sl}')
        e(f'ds_write_b32 v{64+sl}, v{recreg[sl]}')
    e(f"""
    s_cmp_eq_u64 {mk(6)}, 0
    s_cbranch_scc1 L_skipB
    """)
    for sl in range(6, 9):
        e(f's_mov_b64 exec, {mk(sl)}')
        e(f'ds_read_b32 v{64+sl}, v{28+sl} offset:{BASE}')
    e('s_waitcnt lgkmcnt(0)')
    for sl in range(6, 9):
        e(f's_mov_b64 exec, {mk(sl)}')
        e(f'v_lshl_add_u32 v{64+sl}, v{37+sl}, 2, v{64+sl}')
        e(f'ds_write_b32 v{64+sl}, v{recreg[sl]}')
    e(f"""
L_skipB:
    s_mov_b64 exec, -1
    v_mad_u32_u24 v{AR}, v{QG32}, s{S_NT}, v{GD4}
    v_mul_u32_u24 v{AN}, s{S_NT}, v61
    v_add_u32 v{AR}, s6, v{AR}
    v_add_u32 v{AN}, s7, v{AN}
    v_mov_b32 v55, {PADREC}
    s_cmp_ge_u32 s{S_WV}, 13
    s_cbranch_scc1 L_special
    ds_write_b128 v1, v[8:11] offset:{AGG}
    v_cmp_gt_u32 vcc, v15, v58
    v_add_u32 v57, v52, v58
    v_lshl_add_u32 v57, v57, 2, v54
    v_lshrrev_b32 v54, 3, v54
    v_lshl_add_u32 v54, v58, 2, v54
    v_lshlrev_b32 v58, 3, v58          ; 8j
    v_mov_b32 v59, v{LA}
    s_mov_b64 exec, vcc
    ds_write_b32 v57, v55
    s_mov_b32 exec_lo, 0x10001
    s_mov_b32 exec_hi, 0x10001
    v_or_b32 v59, 0x80000000, v59
    s_mov_b64 exec, -1
    v_cmp_gt_u32 vcc, v52, v58
    s_mov_b64 exec, vcc
    ds_write_b32 v54, v59 offset:{NTAB-RECS//8}
L_ntab:
    v_add_u32 v58, 128, v58
    v_cmp_gt_u32 vcc, v52, v58
    s_and_b64 exec, exec, vcc
    s_cbranch_execz L_tables_done
    v_add_u32 v54, 64, v54
    ds_write_b32 v54, v{LA} offset:{NTAB-RECS//8}
    s_branch L_ntab
L_special:
    s_cmp_eq_u32 s{S_WV}, 14
    s_cbranch_scc0 L_special2
    s_add_u32 s6, s{S_QN}, 1
    s_lshl_b32 s{S_TMP}, s{S_RN}, 2    ; 4 rn
    s_mul_i32 s7, s{S_TMP}, s6         ; thr
    v_cvt_f32_u32 v52, s6
    v_cvt_f32_u32 v53, s{S_QN}
    v_rcp_f32 v52, v52
    v_rcp_f32 v53, v53
    v_subrev_u32 v54, s7, v49
    v_cvt_f32_u32 v55, v49
    v_cvt_f32_u32 v54, v54
    v_add_f32 v55, 0.5, v55
    v_add_f32 v54, 0.5, v54
    v_mul_f32 v55, v55, v52
    v_mul_f32 v54, v54, v53
    v_cvt_u32_f32 v55, v55
    v_cvt_u32_f32 v54, v54
    v_cmp_gt_u32 vcc, s7, v49
    v_min_u32 v54, 64, v54
    v_add_u32 v54, s{S_TMP}, v54
    v_cndmask_b32 v54, v54, v55, vcc
    v_min_u32 v54, 64, v54
    v_add_lshl_u32 v54, v54, v46, 8    ; 256*(slot+1)
    ds_write_b32 v47, v54 offset:{ST}
    s_branch L_tables_done
L_special2:
    s_cmp_eq_u32 s{S_WV}, 15
    s_cbranch_scc0 L_tables_done
    s_lshl_b32 s6, s{S_TOT}, 5
    s_add_u32 s6, s6, {RECS}
    s_lshl_b32 s7, s{S_TOT}, 2
    v_add_u32 v57, s6, v47
    v_add_u32 v54, s7, v47
    v_mov_b32 v59, {0x80000000 + NB*256}
    s_mov_b64 exec, 0xffffff
    ds_write_b32 v57, v55
    s_mov_b64 exec, 7
    ds_write_b32 v54, v59 offset:{NTAB}
L_tables_done:
    s_mov_b64 exec, -1
    s_waitcnt lgkmcnt(0)
    s_barrier
    @STAMP bar3
    s_cmp_eq_u32 s{S_NT}, 0
    s_cbranch_scc1 L_skip_loop
    s_setprio {3 if PRIO else 0}
    ds_read_u16 v{IDX}, v{AR}
    ds_read_u16 v{N}, v{AR} offset:16
    ds_read_b32 v{X}, v{AN} offset:{NTAB}
    ds_read_u16 v{AV}, v{AR} offset:2
    ds_read_u16 v{N+1}, v{AR} offset:32
    ds_read_u16 v{N+2}, v{AR} offset:18
    s_mov_b64 s[{S_M}:{S_M+1}], 0
    s_waitcnt lgkmcnt(5)
    {ld(G0, 0)}
    {ld(G0+4, 64)}
    s_waitcnt lgkmcnt(3)
    v_mov_b32 v{IDX}, v{N}
    {ld(G1, 0)}
    {ld(G1+4, 64)}
    """)
    load_c()
    e(f"""
    ds_read_b32 v{X}, v{AN} offset:{NTAB+4}
    v_add_u32 v{Z}, v{Y}, v{LA}
    v_mov_b32 v{ACC}, 0
    v_mov_b32 v{ACC+1}, 0
    v_mov_b32 v{ACC+2}, 0
    v_mov_b32 v{ACC+3}, 0
    s_waitcnt lgkmcnt(5)
    {BUILD_AX}
    v_mov_b32 v{IDX}, v{N+1}
    v_mov_b32 v{AV}, v{N+2}
    s_waitcnt vmcnt(2) lgkmcnt(1)
    """)
    mf(T0, G0, BS0, C)
    mf(T0, G0+4, BS1, T0)
    mf8(T0)
    e(f"""
    {ld(G0, 0)}
    {ld(G0+4, 64)}
    {BUILD_AX}
    ds_read_u16 v{IDX}, v{AR} offset:48
    ds_read_u16 v{AV}, v{AR} offset:34
    s_nop 3
    s_waitcnt vmcnt(2) lgkmcnt(0)
    @STAMP pipeprologue
    s_cmp_lg_u32 s{S_SAFE}, 0
    s_cbranch_scc1 L_safe_loop
    """)
    main_loop(False)
    e(f"""
L_loop_done:
    @STAMP loopdone
    s_setprio 0
    v_lshrrev_b32 v13, 6, v{LA}        ; 4n
    v_add_u32 v1, v{LA}, v{LQ}         ; 16 t
    ds_read_b128 v[48:51], v{XA}
    ds_read_b128 v[52:55], v{XA} offset:64
    ds_read_b64_tr_b16 v[32:33], v{WA} offset:0
    ds_read_b64_tr_b16 v[34:35], v{WA} offset:576
    ds_read_b64_tr_b16 v[36:37], v{WA} offset:4608
    ds_read_b64_tr_b16 v[38:39], v{WA} offset:5184
    ds_read_b64_tr_b16 v[40:41], v{WA} offset:9216
    ds_read_b64_tr_b16 v[42:43], v{WA} offset:9792
    ds_read_b64_tr_b16 v[44:45], v{WA} offset:13824
    ds_read_b64_tr_b16 v[46:47], v{WA} offset:14400
    ds_read2_b32 v[10:11], v13 offset0:{(ST+4)//4} offset1:{(ST+8)//4}
    ds_read_b128 v[4:7], v1 offset:{AGG}
    v_add_f32 v{TMP}, v{DS}, v{DS+1}
    s_movk_i32 s6, 0x207
    s_and_b32 s{S_TMP}, s{S_WV}, 3     ; mt
    v_cmp_class_f32 vcc, v{TMP}, s6
    s_lshr_b32 s{S_TMP+1}, s{S_WV}, 2  ; nt
    v_mov_b32 v{TMP+2}, 1
    s_mov_b64 exec, vcc
    ds_write_b32 v{ZERO}, v{TMP+2} offset:{FLAG}
    s_mov_b64 exec, -1
    s_waitcnt lgkmcnt(0)
    v_mfma_f32_16x16x32_bf16 v[56:59], v[32:35], v[48:51], 0
    v_mfma_f32_16x16x32_bf16 v[56:59], v[36:39], v[52:55], v[56:59]
    v_sub_u32 v11, v11, v10            ; 256*count
    v_add_u32 v10, v{LQ}, v10
    s_movk_i32 s6, 256
    s_movk_i32 s7, 512
    v_cmp_lt_u32 s[{S_TMP+2}:{S_TMP+3}], s6, v11
    v_cmp_lt_u32 s[{S_TMP+4}:{S_TMP+5}], s7, v11
    s_cmp_eq_u32 s{S_WV}, 12
    s_cselect_b64 s[{S_TMP+6}:{S_TMP+7}], 0xffff, -1
    s_cmp_gt_u32 s{S_WV}, 12
    s_barrier
    @STAMP bar4
    ; ---- fold
    s_cbranch_scc1 L_fold_done
    s_mov_b64 exec, s[{S_TMP+6}:{S_TMP+7}]
    ds_read_b128 v[16:19], v10 offset:{PART-256}
    ds_read_b128 v[20:23], v10 offset:{PART}
    ds_read_b128 v[24:27], v10 offset:{PART+256}
    s_waitcnt lgkmcnt(2)
    v_pk_add_f32 v[4:5], v[4:5], v[16:17]
    v_pk_add_f32 v[6:7], v[6:7], v[18:19]
    s_and_b64 exec, exec, s[{S_TMP+2}:{S_TMP+3}]
    s_waitcnt lgkmcnt(1)
    v_pk_add_f32 v[4:5], v[4:5], v[20:21]
    v_pk_add_f32 v[6:7], v[6:7], v[22:23]
    s_and_b64 exec, exec, s[{S_TMP+4}:{S_TMP+5}]
    s_waitcnt lgkmcnt(0)
    v_pk_add_f32 v[4:5], v[4:5], v[24:25]
    v_pk_add_f32 v[6:7], v[6:7], v[26:27]
L_fold:
    s_add_u32 s7, s7, 256
    v_cmp_lt_u32 vcc, s7, v11
    s_and_b64 exec, exec, vcc
    s_cbranch_execz L_fold2
    ds_read_b128 v[16:19], v10 offset:{PART+512}
    v_add_u32 v10, 256, v10
    s_waitcnt lgkmcnt(0)
    v_pk_add_f32 v[4:5], v[4:5], v[16:17]
    v_pk_add_f32 v[6:7], v[6:7], v[18:19]
    s_branch L_fold
L_fold2:
    s_mov_b64 exec, s[{S_TMP+6}:{S_TMP+7}]
    s_cmp_eq_u32 s{S_MORE}, 0
    s_cbranch_scc1 L_fold4
    ds_write_b128 v1, v[4:7] offset:{AGG}
    s_branch L_fold_done
L_fold4:
    s_mov_b32 s6, {NEG_LN2}
    s_mov_b32 s7, {NEG_LN2}
    v_pk_mul_f32 v[4:5], v[4:5], s[6:7]
    v_pk_mul_f32 v[6:7], v[6:7], s[6:7]
    v_cvt_pk_bf16_f32 v4, v4, v5
    v_cvt_pk_bf16_f32 v5, v6, v7
    ds_write_b64 v{BW}, v[4:5]
L_fold_done:
    s_mov_b64 exec, -1
    s_lshl_b32 s6, s{S_TMP}, 5
    s_add_u32 s6, s6, s{S_X0}
    s_lshl_b32 s7, s{S_TMP+1}, 11
    s_add_u32 s6, s6, s7
    s_cmp_eq_u32 s{S_TMP+1}, 3
    s_cselect_b32 s{S_TMP+2}, 0x10001, -1
    s_cmp_eq_u32 s{S_MORE}, 0
    s_waitcnt lgkmcnt(0)
    s_barrier
    s_cbranch_scc1 L_final
    s_add_u32 s{S_RND}, s{S_RND}, 12
L_again:
    v_lshrrev_b32 v0, 4, v1
    s_waitcnt vmcnt(0)
    s_branch L_round
L_final:
    @STAMP bar5
    ds_read_b128 v[48:51], v{BR}
    ds_read_b128 v[52:55], v{BR} offset:1088
    s_movk_i32 s7, 0x207
    s_waitcnt lgkmcnt(1)
    v_mfma_f32_16x16x32_bf16 v[56:59], v[40:43], v[48:51], v[56:59]
    s_waitcnt lgkmcnt(0)
    v_mfma_f32_16x16x32_bf16 v[56:59], v[44:47], v[52:55], v[56:59]
    s_nop 5
    s_mov_b32 exec_lo, s{S_TMP+2}
    s_mov_b32 exec_hi, s{S_TMP+2}
    """)
    for i in range(4):
        e(f'v_mul_f32 v{4+i}, s{S_L2E}, v{56+i}')
    for i in range(4):
        e(f'v_exp_f32 v{4+i}, v{4+i}')
    e('v_cmp_class_f32 vcc, v56, s7')
    for i in range(4):
        e(f'v_add_f32 v{4+i}, 1.0, v{4+i}')
    for i in range(4):
        e(f'v_rcp_f32 v{4+i}, v{4+i}')
    for i in range(4):
        e(f'v_mul_f32 v{4+i}, v{56+i}, v{4+i}')
    e(f"""
    v_cvt_pk_bf16_f32 v4, v4, v5
    v_cvt_pk_bf16_f32 v5, v6, v7
    buffer_store_dwordx2 v[4:5], v{OO}, s[{SRD_OUT}:{SRD_OUT+3}], s6 offen
    s_cmp_lg_u32 s{S_SAFE}, 0
    s_cbranch_scc1 L_k2_end
    s_mov_b64 exec, vcc
    ds_write_b32 v{ZERO}, v{TMP+2} offset:{FLAG}
    s_mov_b64 exec, -1
    s_waitcnt lgkmcnt(0)
    s_barrier
    ds_read_b32 v2, v{ZERO} offset:{FLAG}
    s_waitcnt lgkmcnt(0)
    v_readfirstlane_b32 s6, v2
    s_cmp_eq_u32 s6, {'s6' if 'nosafe' in X_ else 0}
    s_cbranch_scc1 L_k2_end
    s_mov_b32 s{S_SAFE}, 1
    s_mov_b32 s{S_RND}, 0
    v_mov_b32 v{DS}, 0
    v_mov_b32 v{DS+1}, 0
    s_branch L_again
L_k2_end:
    @FLUSH 0
    s_endpgm
    """)
    phase1_tail()
    main_loop(True)
    e('L_skip_loop:')
    e('s_waitcnt vmcnt(0)')
    e('s_branch L_loop_done')
    e(f"""
L_icheck:
    v_cmp_eq_u32 vcc, 0, v62
    s_cbranch_vccz L_itag
    s_add_u32 s{S_SPIN}, s{S_SPIN}, 1
    s_cmp_lt_u32 s{S_SPIN}, {SPIN_MAX}
    s_cbranch_scc0 L_itag
    buffer_load_dwordx2 v[62:63], v{ZERO}, {srd(SRD_B)}, 0 offen sc1
    s_waitcnt vmcnt(0)
    s_branch L_icheck
L_itag:
    ds_write_b64 v{ZERO}, v[62:63] offset:{NONCE}
    v_mov_b32 v52, v62
    v_or_b32 v53, v53, v63
    s_waitcnt lgkmcnt(0)
    s_branch L_iok
L_later:
    v_cmp_eq_u32 vcc, 37, v15
    s_lshl_b32 s6, s{S_B}, 2
    s_add_u32 s6, s6, {TABF}
    v_cndmask_b32 v38, v34, v2, vcc
    buffer_load_dword v15, v38, {srd(SRD_REC)}, s6 offen sc1
    s_mul_i32 s7, s{S_RND}, 3
    v_add_u32 v13, s7, v13
    s_lshl_b32 s6, s{S_RND}, 4
    s_add_u32 s6, s6, {OVF - 192}
    v_add3_u32 v35, v2, v{CH16}, s6
    s_waitcnt vmcnt(0)
    v_sub_u32_sdwa v37, v15, v13 {SDW} src0_sel:WORD_1 src1_sel:DWORD
    v_and_b32 v15, 0xffff, v15
    v_lshl_add_u32 v35, v15, 4, v35
    v_mov_b32 v32, v35
    s_branch L_loads
    """)

HEADER = f"""; MPNN edge-MLP layer in one launch, one workgroup per CU.
;  phase 1: bucket a chunk of edges by destination range (LDS counting sort), P = -log2e * x @ W1 (bf16), Q = -log2e * x @ W2
;  phase 2: per bucket of {NB} nodes: sort by node, gather P rows, MFMA unpack (+a*w3+Q), silu sum, update GEMM
; @launch grid=(256,1,1) block=(1024,1,1) lds={K2_LDS}
.amdgcn_target "amdgcn-amd-amdhsa--gfx950"
.text"""

def main():
    k2()
    e('.section .rodata,"a"')
    e('.p2align 6')
    kd('gather_scatter__mpnn_edge_mlp__graph_kernel', 128, 80)
    path = sys.argv[1] if len(sys.argv) > 1 else 'gather_scatter__mpnn_edge_mlp__graph.s'
    open(path, 'w').write(HEADER + '\n' + '\n'.join(out) + '\n')

main()
```
